```python
import torch

def _softmax(x, axis=-1):
    return torch.softmax(x, dim=axis)
def _gelu(x):
    return torch.nn.functional.gelu(x, approximate="tanh")
def _silu(x):
    return torch.nn.functional.silu(x)
def _sigmoid(x):
    return torch.sigmoid(x)
def _layernorm(x, axis=-1, eps=1e-5):
    m = x.mean(dim=axis, keepdim=True)
    v = x.var(dim=axis, keepdim=True, unbiased=False)
    return (x - m) / torch.sqrt(v + eps)
def _scatter_add(tgt, idx, src, axis=0):
    return tgt.clone().index_add_(axis, idx, src)
def _segment_sum(src, seg, n):
    out = torch.zeros((n,) + src.shape[1:], dtype=src.dtype)
    return out.index_add_(0, seg, src)
def _pad(x, pw):
    flat = tuple(v for pair in reversed(pw) for v in pair)
    return torch.nn.functional.pad(x, flat)

kernel_name = 'parallel_sum__mha_block_cached__swiglu_ffn__decode'

def setup_inputs():

    _w = (lambda a: (lambda t: t.to(torch.bfloat16) if t.is_floating_point() else t)(torch.as_tensor(a)))
    def _A_setup():
        B, Sq, D = 2, 1, 640
        H, Sk, Dh = 32, 4096, 192
        return {
            "x": _w((lambda *s: torch.randn(*s, dtype=torch.bfloat16) * 0.05)(B, Sq, D)),
            "k_cache": _w((lambda *s: torch.randn(*s, dtype=torch.bfloat16) * 3.2)(B, H, Sk, Dh)),
            "v_cache": _w((lambda *s: torch.randn(*s, dtype=torch.bfloat16) * 1.6)(B, H, Sk, Dh)),
            "wq": _w((lambda *s: torch.randn(*s, dtype=torch.bfloat16) * 3.2)(D, H * Dh) * (D ** -0.5)),
            "wo": _w((lambda *s: torch.randn(*s, dtype=torch.bfloat16) * 1.6)(H * Dh, D) * ((H * Dh) ** -0.5)),
        }
    _A_in = _A_setup()

    def _B_setup():
        B, S, D, F = 2, 1, 640, 1536
        return {
            "x": _w((lambda *s: torch.randn(*s, dtype=torch.bfloat16) * 0.05)(B, S, D)),
            "w_gate": _w((lambda *s: torch.randn(*s, dtype=torch.bfloat16) * 0.05)(D, F)),
            "w_up": _w((lambda *s: torch.randn(*s, dtype=torch.bfloat16) * 0.05)(D, F)),
            "w_down": _w((lambda *s: torch.randn(*s, dtype=torch.bfloat16) * 0.05)(F, D)),
        }
    _B_in = _B_setup()

    return {
        "A_x": _A_in["x"],
        "A_k_cache": _A_in["k_cache"],
        "A_v_cache": _A_in["v_cache"],
        "A_wq": _A_in["wq"],
        "A_wo": _A_in["wo"],
        "B_x": _B_in["x"],
        "B_w_gate": _B_in["w_gate"],
        "B_w_up": _B_in["w_up"],
        "B_w_down": _B_in["w_down"],
    }

def reference(A_x, A_k_cache, A_v_cache, A_wq, A_wo, B_x, B_w_gate, B_w_up, B_w_down):
    def _A_ref(x, k_cache, v_cache, wq, wo):
        B, Sq, D = x.shape
        H, Dh = 32, 192
        q = (lambda x, *d: x.permute(*d))((x @ wq).reshape(B, Sq, H, Dh), 0, 2, 1, 3)
        scores = torch.einsum("bhqd,bhkd->bhqk", q, k_cache) * (Dh ** -0.5)
        p = _softmax(scores, axis=-1)
        o = torch.einsum("bhqk,bhkd->bhqd", p, v_cache)
        return (lambda x, *d: x.permute(*d))(o, 0, 2, 1, 3).reshape(B, Sq, H * Dh) @ wo

    def _B_ref(x, w_gate, w_up, w_down):
        g = _silu(x @ w_gate)
        u = x @ w_up
        return (g * u) @ w_down

    x = A_x
    xn = _layernorm(x, axis=-1)
    return x + _A_ref(xn, A_k_cache, A_v_cache, A_wq, A_wo) + _B_ref(xn, B_w_gate, B_w_up, B_w_down)
```

```python
import sys

NAME = 'parallel_sum__mha_block_cached__swiglu_ffn__decode_kernel'

D = 640; H = 32; SK = 4096; DH = 192; F = 1536
K_BYTES = 2 * H * SK * DH * 2
WQ_BYTES = D * H * DH * 2
WO_BYTES = H * DH * D * 2
WG_BYTES = D * F * 2
WD_BYTES = F * D * 2
X_BYTES = 2 * D * 2

WS_EPOCH = 0
WS_E1 = 0x10000
WS_E2F = 0xD0000
WS_E2 = 0xE0000
WS_E3 = 0x140000
WS_E4 = 0x1C0000
WS_USED = 0x260000
WS_DBG = 0x300000
WS_SRD_BYTES = 0x800000

L_XN = 0
L_Q = 2560
L_HV = 2944
L_ON = 3200
L_ML = 3968
L_FLAG = 4032
L_OL = 4096
L_UQ = 10240
L_UF = 40960
L_WB = 56320
L_WD = 87040
LDS_BYTES = 95232

LOG2E = 0x3FB8AA3B
SCALE = 0x3D93CD3A
INV640 = 0x3ACCCCCD
EPS_BF = 0x37280000


class Gen:
    def __init__(self, **opt):
        self.L = []
        self.opt = dict(NP=4, ntk='nt', ntv='nt', ntw='nt', dbg=False, spin=1 << 16, stamps=False)
        self.opt.update(opt)
        self.lab = 0

    def a(self, s):
        self.L.append('  ' + s)

    def label(self, s):
        self.L.append(s + ':')

    def newlab(self, p='L'):
        self.lab += 1
        return f'{p}_{self.lab}'

    def c(self, s):
        self.L.append('  ; ' + s)

    def srd(self, r, base, nbytes):
        self.a(f's_mov_b32 s{r}, s{base}')
        self.a(f's_and_b32 s{r+1}, s{base+1}, 0xffff')
        self.a(f's_mov_b32 s{r+2}, {nbytes}')
        self.a(f's_mov_b32 s{r+3}, 0x20000')

    def dpp(self, op, dst, src0, src1, ctrl):
        self.a(f'{op}_dpp v{dst}, v{src0}, v{src1} {ctrl} row_mask:0xf bank_mask:0xf')

    def swap_reduce(self, op, v, t, which):
        self.a(f'v_mov_b32 v{t}, v{v}')
        self.a('s_nop 1')
        self.a(f'v_permlane{which}_swap_b32 v{v}, v{t}')
        self.a(f'{op} v{v}, v{v}, v{t}')

    def stamp(self, idx):
        if not self.opt['stamps']:
            return
        self.a('s_memrealtime s[90:91]')
        self.a('s_waitcnt lgkmcnt(0)')
        self.a(f'v_mov_b32 v250, s90')
        self.a(f's_lshl_b32 s92, s2, 3')
        self.a(f's_add_u32 s92, s92, s28')
        self.a(f's_lshl_b32 s92, s92, 6')
        self.a(f's_add_u32 s92, s92, {WS_DBG + 4*idx}')
        self.a(f'v_mov_b32 v251, 0')
        self.a('s_mov_b64 s[94:95], exec')
        self.a('s_mov_b64 exec, 1')
        self.a(f'buffer_store_dword v250, v251, s[52:55], s92 offen')
        self.a('s_mov_b64 exec, s[94:95]')

    def poll_check(self, regs, again, cnt='s70'):
        first = True
        for r in regs:
            self.a(f'v_cmp_ne_u64 vcc, s[36:37], v[{r+2}:{r+3}]')
            if first:
                self.a('s_mov_b64 s[72:73], vcc')
                first = False
            else:
                self.a('s_or_b64 s[72:73], s[72:73], vcc')
        done = self.newlab('L_pd')
        self.a('s_cmp_eq_u64 s[72:73], 0')
        self.a(f's_cbranch_scc1 {done}')
        self.a(f's_sub_u32 {cnt}, {cnt}, 1')
        self.a(f's_cmp_eq_u32 {cnt}, 0')
        self.a(f's_cbranch_scc1 {done}')
        self.a('s_sleep 1')
        self.a(f's_branch {again}')
        self.label(done)

    def build(self):
        o = self.opt
        NP = o['NP']
        a = self.a
        head = [f'; fused LN + q-proj + split-KV attention + out-proj + SwiGLU FFN (decode), one launch',
                f'; @launch grid=(256,1,1) block=(512,1,1) lds={LDS_BYTES}',
                '.amdgcn_target "amdgcn-amd-amdhsa--gfx950"', '.text', f'.globl {NAME}', '.p2align 8',
                f'.type {NAME},@function', f'{NAME}:']
        a('s_cmp_ge_u32 s2, 256')
        a('s_cbranch_scc1 L_end')
        a('s_load_dwordx16 s[4:19], s[0:1], 0')
        a('s_load_dwordx8 s[20:27], s[0:1], 64')
        a('v_lshrrev_b32 v1, 6, v0')
        a('v_and_b32 v0, 63, v0')
        a('s_and_b32 s29, s2, 7')
        a('v_readfirstlane_b32 s28, v1')
        a('s_lshr_b32 s34, s2, 3')
        a('s_lshr_b32 s30, s34, 3')
        a('s_and_b32 s31, s34, 7')
        a('s_lshl_b32 s35, s29, 2')
        a('s_add_u32 s35, s35, s30')
        a('s_lshr_b32 s32, s31, 2')
        a('s_and_b32 s33, s31, 3')
        a('s_waitcnt lgkmcnt(0)')
        a(f's_load_dwordx2 s[36:37], s[26:27], {WS_EPOCH}')
        self.srd(52, 26, WS_SRD_BYTES)
        self.stamp(0)
        a('s_cmp_ge_u32 s28, 4')
        a('s_cbranch_scc1 L_aux')
        self.stream()
        self.label('L_aux')
        self.aux()
        self.label('L_tail')
        self.tail()
        self.label('L_end')
        a('s_endpgm')
        nv = 256
        foot = ['.section .rodata,"a"', '.p2align 6', f'.amdhsa_kernel {NAME}',
                f'  .amdhsa_next_free_vgpr {nv}', '  .amdhsa_next_free_sgpr 96', f'  .amdhsa_accum_offset {nv}',
                '  .amdhsa_group_segment_fixed_size 0', '  .amdhsa_kernarg_size 96',
                '  .amdhsa_user_sgpr_count 2', '  .amdhsa_user_sgpr_kernarg_segment_ptr 1',
                '  .amdhsa_system_sgpr_workgroup_id_x 1', '  .amdhsa_float_denorm_mode_32 3',
                '.end_amdhsa_kernel']
        return '\n'.join(head + self.L + foot) + '\n'

    def stream(self):
        o = self.opt; a = self.a
        NP = o['NP']
        VOFF = 1
        M = 2
        Q = 8
        ACC = 20
        S = 32
        T = 48
        RB = 72
        assert RB + 24 * NP <= 250
        self.c('==== stream waves ====')
        self.srd(40, 6, K_BYTES)
        self.srd(44, 8, K_BYTES)
        a('s_lshl_b32 s56, s32, 5')
        a('s_add_u32 s56, s56, s35')
        a('s_lshl_b32 s56, s56, 12')
        a('s_lshl_b32 s57, s33, 10')
        a('s_add_u32 s56, s56, s57')
        a('s_lshl_b32 s57, s28, 8')
        a('s_add_u32 s56, s56, s57')
        a('s_mul_i32 s58, s56, 384')
        a(f'v_lshrrev_b32 v{T}, 3, v0')
        a(f'v_mul_u32_u24 v{T}, 384, v{T}')
        a(f'v_and_b32 v{T+1}, 7, v0')
        a(f'v_lshlrev_b32 v{T+2}, 4, v{T+1}')
        a(f'v_add_u32 v{VOFF}, v{T}, v{T+2}')
        a(f'v_and_b32 v{T+2}, 1, v0')
        a(f'v_mov_b32 v{T+3}, 0xffff')
        a(f'v_mov_b32 v{T+4}, 0xffff0000')
        a(f'v_cmp_eq_u32 vcc, 1, v{T+2}')
        a(f'v_lshrrev_b32 v{T+1}, 1, v{T+1}')
        a('s_nop 0')
        a(f'v_cndmask_b32 v{T+3}, v{T+3}, v{T+4}, vcc')
        for r in range(4):
            a(f'v_cmp_eq_u32 vcc, {r}, v{T+1}')
            a('s_nop 1')
            a(f'v_cndmask_b32 v{M+r}, 0, v{T+3}, vcc')
        for i in range(12):
            a(f'v_mov_b32 v{ACC+i}, 0')
        a('s_mov_b32 s59, s58')
        a('s_barrier')

        seq = [('K', p) for p in range(16)] + [('V', p) for p in range(16)]

        def issue(idx):
            if idx >= len(seq):
                return []
            kind, p = seq[idx]
            srd = 40 if kind == 'K' else 44
            nt = o['ntk'] if kind == 'K' else o['ntv']
            R = RB + 24 * (idx % NP)
            out = []
            if kind == 'V' and p == 0:
                out.append('s_mov_b32 s59, s58')
            for g in range(2):
                for i in range(3):
                    r = R + 12 * g + 4 * i
                    out.append(f'buffer_load_dwordx4 v[{r}:{r+3}], v{VOFF}, s[{srd}:{srd+3}], s59 offen offset:{3072*g+128*i} {nt}')
            out.append('s_add_u32 s59, s59, 6144')
            return out

        for idx in range(NP):
            for s in issue(idx):
                a(s)
        self.stamp(1)
        a('s_barrier')
        self.stamp(2)
        a(f'v_and_b32 v{T}, 7, v0')
        a(f'v_lshlrev_b32 v{T}, 4, v{T}')
        for i in range(3):
            a(f'ds_read_b128 v[{Q+4*i}:{Q+4*i+3}], v{T} offset:{L_Q + 128*i}')
        a(f'v_mov_b32 v{T+8}, 0xff800000')
        MX = T + 8
        a(f's_mov_b32 s60, {SCALE}')
        a(f's_mov_b32 s61, 0xffff0000')
        a(f's_mov_b32 s62, {LOG2E}')
        a('s_waitcnt lgkmcnt(0)')

        def outstanding_after(idx):
            last = min(idx + NP - 1, len(seq) - 1)
            return (last - idx) * 6

        for p in range(16):
            idx = p
            R = RB + 24 * (idx % NP)
            self.c(f'K pair {p}')
            a(f's_waitcnt vmcnt({outstanding_after(idx)})')
            A, B = T, T + 1
            a(f'v_mov_b32 v{A}, 0')
            a(f'v_mov_b32 v{B}, 0')
            for g, acc in ((0, A), (1, B)):
                for i in range(3):
                    for r in range(4):
                        a(f'v_dot2c_f32_bf16 v{acc}, v{R+12*g+4*i+r}, v{Q+4*i+r}')
            nxt = issue(idx + NP)
            fill = list(nxt)

            def f(n=1):
                for _ in range(n):
                    a(fill.pop(0) if fill else 's_nop 0')
            q1 = 'quad_perm:[1,0,3,2]'; q2 = 'quad_perm:[2,3,0,1]'; hm = 'row_half_mirror'
            self.dpp('v_add_f32', A, A, A, q1)
            f(2)
            self.dpp('v_add_f32', B, B, B, q1)
            self.dpp('v_add_f32', A, A, A, q2)
            f(1)
            self.dpp('v_add_f32', B, B, B, q2)
            self.dpp('v_add_f32', A, A, A, hm)
            f(1)
            self.dpp('v_add_f32', B, B, B, hm)
            while fill:
                f(1)
            a(f'v_cvt_pk_bf16_f32 v{T+2}, v{A}, v{B}')
            a(f'v_lshlrev_b32 v{T+3}, 16, v{T+2}')
            a(f'v_and_b32 v{T+4}, s61, v{T+2}')
            a(f'v_mul_f32 v{T+3}, s60, v{T+3}')
            a(f'v_mul_f32 v{T+4}, s60, v{T+4}')
            a(f'v_max3_f32 v{MX}, v{MX}, v{T+3}, v{T+4}')
            a(f'v_cvt_pk_bf16_f32 v{S+p}, v{T+3}, v{T+4}')
        self.c('wave max')
        a('s_nop 1')
        self.dpp('v_max_f32', MX, MX, MX, 'row_ror:8')
        self.swap_reduce('v_max_f32', MX, T, 16)
        self.swap_reduce('v_max_f32', MX, T, 32)
        a(f'v_cvt_pk_bf16_f32 v{T}, v{MX}, v{MX}')
        a(f'v_lshlrev_b32 v{MX}, 16, v{T}')
        NM = T + 9
        a(f'v_mul_f32 v{NM}, s62, v{MX}')
        a(f'v_sub_f32 v{NM}, 0, v{NM}')
        LA = T + 10
        a(f'v_mov_b32 v{LA}, 0')
        if o['dbg']:
            a('s_lshl_b32 s63, s2, 2'); a('s_add_u32 s63, s63, s28'); a('s_lshl_b32 s63, s63, 12')
            a(f's_add_u32 s63, s63, {WS_DBG + 0x100000}')
            a(f'v_lshlrev_b32 v{T}, 2, v0')
            for p in range(16):
                a(f'buffer_store_dword v{S+p}, v{T}, s[52:55], s63 offen offset:{256*p}')
            a('s_waitcnt vmcnt(0)')
        PA = T + 12
        for p in range(16):
            idx = 16 + p
            R = RB + 24 * (idx % NP)
            self.c(f'V pair {p}')
            e0, e1 = T, T + 1
            a(f'v_lshlrev_b32 v{e0}, 16, v{S+p}')
            a(f'v_and_b32 v{e1}, s61, v{S+p}')
            a(f'v_fma_f32 v{e0}, v{e0}, s62, v{NM}')
            a(f'v_fma_f32 v{e1}, v{e1}, s62, v{NM}')
            a(f'v_exp_f32 v{e0}, v{e0}')
            a(f'v_exp_f32 v{e1}, v{e1}')
            a('s_nop 0')
            a(f'v_cvt_pk_bf16_f32 v{T+2}, v{e0}, v{e0}')
            a(f'v_cvt_pk_bf16_f32 v{T+3}, v{e1}, v{e1}')
            for r in range(4):
                a(f'v_and_b32 v{PA+r}, v{T+2}, v{M+r}')
            for r in range(4):
                a(f'v_and_b32 v{PA+4+r}, v{T+3}, v{M+r}')
            a(f'v_add_f32 v{LA}, v{LA}, v{e0}')
            a(f'v_add_f32 v{LA}, v{LA}, v{e1}')
            if o['dbg'] and False:
                pass
            a(f's_waitcnt vmcnt({outstanding_after(idx)})')
            for g in range(2):
                for i in range(3):
                    r = R + 12 * g + 4 * i
                    a(f'v_mfma_f32_16x16x32_bf16 v[{ACC+4*i}:{ACC+4*i+3}], v[{PA+4*g}:{PA+4*g+3}], v[{r}:{r+3}], v[{ACC+4*i}:{ACC+4*i+3}]')
            for s in issue(idx + NP):
                a(s)
        self.c('wave epilogue')
        self.stamp(3)
        a('s_nop 1')
        self.dpp('v_add_f32', LA, LA, LA, 'row_ror:8')
        self.swap_reduce('v_add_f32', LA, T, 16)
        self.swap_reduce('v_add_f32', LA, T, 32)
        a(f'v_lshrrev_b32 v{T}, 5, v0')
        a(f's_lshl_b32 s63, s28, 1')
        a(f'v_add_u32 v{T}, s63, v{T}')
        a(f'v_mul_u32_u24 v{T}, 768, v{T}')
        a(f'v_and_b32 v{T+1}, 7, v0')
        a(f'v_lshlrev_b32 v{T+1}, 5, v{T+1}')
        a(f'v_and_b32 v{T+2}, 16, v0')
        a(f'v_add3_u32 v{T}, v{T}, v{T+1}, v{T+2}')
        a(f's_lshl_b32 s63, s28, 2')
        a(f'v_mov_b32 v{T+3}, s63')
        a('s_mov_b32 exec_lo, 0x00ff00ff')
        a('s_mov_b32 exec_hi, 0xff00ff00')
        for i in range(3):
            a(f'ds_write_b128 v{T}, v[{ACC+4*i}:{ACC+4*i+3}] offset:{L_OL + 256*i}')
        a('s_mov_b64 exec, 1')
        a(f'ds_write_b32 v{T+3}, v{MX} offset:{L_ML}')
        a(f'ds_write_b32 v{T+3}, v{LA} offset:{L_ML+16}')
        a('s_mov_b64 exec, -1')
        a('s_waitcnt lgkmcnt(0)')
        a('s_branch L_tail')

    def gemv_unit(self, W, XB, ntile, nstep, lastvalid, addr, rowstride, tilebytes, acc):
        a = self.a
        for t in range(nstep):
            for tile in range(ntile):
                av = addr if t < nstep - 1 else addr + 1
                base = t * 32 * rowstride + tile * tilebytes
                r = W + 4 * (tile % 4)
                a(f'ds_read_b64_tr_b16 v[{r}:{r+1}], v{av} offset:{base}')
                a(f'ds_read_b64_tr_b16 v[{r+2}:{r+3}], v{av} offset:{base + 4*rowstride}')
                if tile % 4 == 3 or tile == ntile - 1:
                    a('s_waitcnt lgkmcnt(0)')
                    for tt in range(tile - tile % 4, tile + 1):
                        rr = W + 4 * (tt % 4)
                        a(f'v_mfma_f32_16x16x32_bf16 v[{acc+4*tt}:{acc+4*tt+3}], v[{rr}:{rr+3}], v[{XB+4*t}:{XB+4*t+3}], v[{acc+4*tt}:{acc+4*tt+3}]')

    def aux(self):
        o = self.opt; a = self.a
        ntw = o['ntw']
        self.c('==== aux waves ====')
        a('s_sub_u32 s38, s28, 4')
        self.srd(40, 4, X_BYTES)
        a('v_lshrrev_b32 v1, 5, v0')
        a('v_and_b32 v2, 31, v0')
        a('v_mul_u32_u24 v3, 1280, v1')
        a('v_mul_u32_u24 v4, 40, v2')
        a('v_add_u32 v3, v3, v4')
        a('buffer_load_dwordx4 v[8:11], v3, s[40:43], 0 offen')
        a('buffer_load_dwordx4 v[12:15], v3, s[40:43], 0 offen offset:16')
        a('buffer_load_dwordx2 v[16:17], v3, s[40:43], 0 offen offset:32')
        a('s_cmp_eq_u32 s38, 3')
        a('s_cbranch_scc1 L_aux_ffn_ld')
        self.srd(44, 10, WQ_BYTES)
        a('v_lshrrev_b32 v4, 3, v0')
        a('v_mul_u32_u24 v4, 12288, v4')
        a('v_and_b32 v5, 7, v0')
        a('v_lshlrev_b32 v5, 4, v5')
        a('v_add_u32 v4, v4, v5')
        a('s_mul_i32 s56, s31, 983040')
        a('s_mul_i32 s57, s35, 384')
        a('s_add_u32 s56, s56, s57')
        a('s_lshl_b32 s57, s38, 7')
        a('s_add_u32 s56, s56, s57')
        a('s_mul_i32 s57, s38, 10240')
        a(f's_add_u32 s57, s57, {L_UQ}')
        for i in range(10):
            a('s_mov_b32 m0, s57')
            a('s_add_u32 s57, s57, 1024')
            a(f'buffer_load_dwordx4 v4, s[44:47], s56 offen {ntw} lds')
            a('s_add_u32 s56, s56, 98304')
        a('s_barrier')
        a('s_waitcnt vmcnt(10)')
        a('s_branch L_aux_ln')
        self.label('L_aux_ffn_ld')
        a('s_cmp_ge_u32 s34, 16')
        a('s_cselect_b32 s56, s18, s16')
        a('s_cselect_b32 s57, s19, s17')
        self.srd(44, 56, WG_BYTES)
        for i in range(3):
            a(f'v_add_u32 v5, {64*i}, v0')
            a('v_mul_u32_u24 v6, 2731, v5')
            a('v_lshrrev_b32 v6, 16, v6')
            a('v_mul_u32_u24 v7, 24, v6')
            a('v_sub_u32 v5, v5, v7')
            a('v_mul_u32_u24 v6, 3072, v6')
            a('v_lshlrev_b32 v5, 4, v5')
            a(f'v_add_u32 v{40+i}, v5, v6')
        a('s_and_b32 s56, s34, 15')
        a('s_mul_i32 s56, s56, 122880')
        a('s_mul_i32 s57, s29, 384')
        a('s_add_u32 s56, s56, s57')
        a(f's_mov_b32 s57, {L_UF}')
        for i in range(15):
            a('s_mov_b32 m0, s57')
            a('s_add_u32 s57, s57, 1024')
            a(f'buffer_load_dwordx4 v{40+i%3}, s[44:47], s56 offen {ntw} lds')
            if i % 3 == 2:
                a('s_add_u32 s56, s56, 24576')
        a('s_barrier')
        a('s_waitcnt vmcnt(15)')
        self.label('L_aux_ln')
        self.stamp(1)
        X = 20
        for k in range(10):
            a(f'v_lshlrev_b32 v{X+2*k}, 16, v{8+k}')
            a(f'v_and_b32 v{X+2*k+1}, 0xffff0000, v{8+k}')
        a(f'v_add_f32 v44, v{X}, v{X+1}')
        a(f'v_add_f32 v45, v{X+2}, v{X+3}')
        for k in range(2, 10):
            a(f'v_add_f32 v{44+k%2}, v{44+k%2}, v{X+2*k}')
            a(f'v_add_f32 v{44+k%2}, v{44+k%2}, v{X+2*k+1}')
        a('v_add_f32 v44, v44, v45')

        def red32(v):
            for ctrl in ('quad_perm:[1,0,3,2]', 'quad_perm:[2,3,0,1]', 'row_half_mirror', 'row_mirror'):
                a('s_nop 1')
                self.dpp('v_add_f32', v, v, v, ctrl)
            self.swap_reduce('v_add_f32', v, 47, 16)
        red32(44)
        a(f's_mov_b32 s56, {INV640}')
        a('v_mul_f32 v44, s56, v44')
        a('v_mov_b32 v45, 0')
        a('v_mov_b32 v46, 0')
        for k in range(20):
            a(f'v_sub_f32 v48, v{X+k}, v44')
            a(f'v_fmac_f32 v{45+k%2}, v48, v48')
        a('v_add_f32 v45, v45, v46')
        red32(45)
        a('v_mul_f32 v45, s56, v45')
        a('v_cvt_pk_bf16_f32 v46, v44, v45')
        a('v_lshlrev_b32 v44, 16, v46')
        a('v_and_b32 v45, 0xffff0000, v46')
        a(f'v_add_f32 v45, {EPS_BF}, v45')
        a('v_cvt_pk_bf16_f32 v45, v45, v45')
        a('v_and_b32 v45, 0xffff0000, v45')
        a('v_sqrt_f32 v45, v45')
        a('s_nop 0')
        a('v_cvt_pk_bf16_f32 v45, v45, v45')
        a('v_and_b32 v45, 0xffff0000, v45')
        a('v_rcp_f32 v45, v45')
        for k in range(10):
            a(f'v_sub_f32 v48, v{X+2*k}, v44')
            a(f'v_sub_f32 v49, v{X+2*k+1}, v44')
            a('v_cvt_pk_bf16_f32 v48, v48, v49')
            a('v_and_b32 v49, 0xffff0000, v48')
            a('v_lshlrev_b32 v48, 16, v48')
            a('v_mul_f32 v48, v48, v45')
            a('v_mul_f32 v49, v49, v45')
            a(f'v_cvt_pk_bf16_f32 v{8+k}, v48, v49')
        for k in range(5):
            a(f'ds_write_b64 v3, v[{8+2*k}:{9+2*k}] offset:{L_XN + 8*k}')
        a('v_and_b32 v4, 15, v0')
        a('v_lshrrev_b32 v5, 4, v0')
        a('v_and_b32 v6, 1, v0')
        a('v_mul_u32_u24 v6, 1280, v6')
        a('v_lshlrev_b32 v7, 4, v5')
        a('v_add_u32 v6, v6, v7')
        a('v_lshlrev_b32 v50, 3, v5')
        a('v_lshrrev_b32 v51, 2, v4')
        a('v_add_u32 v50, v50, v51')
        a('v_and_b32 v51, 3, v4')
        a('v_lshlrev_b32 v51, 3, v51')
        a('s_waitcnt lgkmcnt(0)')
        a('s_cmp_eq_u32 s38, 3')
        a('s_cbranch_scc1 L_aux_ffn')

        XB = 8
        a('s_mul_i32 s56, s31, 160')
        a('v_add_u32 v6, s56, v6')
        for t in range(3):
            a(f'ds_read_b128 v[{XB+4*t}:{XB+4*t+3}], v6 offset:{L_XN + 64*t}')
        a('s_mul_i32 s56, s38, 10240')
        a(f's_add_u32 s56, s56, {L_UQ}')
        a('v_lshlrev_b32 v52, 7, v50')
        a('v_add3_u32 v52, v52, v51, s56')
        a('v_cmp_le_u32 vcc, 2, v5')
        a('v_subrev_u32 v53, 2048, v52')
        a('s_nop 0')
        a('v_cndmask_b32 v53, v52, v53, vcc')
        ACC = 24
        for k in range(16):
            a(f'v_mov_b32 v{ACC+k}, 0')
        a('s_waitcnt lgkmcnt(0)')
        for r in range(4):
            a(f'v_cndmask_b32 v{XB+8+r}, v{XB+8+r}, 0, vcc')
        a('s_waitcnt vmcnt(0)')
        self.stamp(2)
        self.gemv_unit(W=56, XB=XB, ntile=4, nstep=3, lastvalid=2, addr=52, rowstride=128, tilebytes=32, acc=ACC)
        a('v_and_b32 v6, 1, v4')
        a('v_mul_u32_u24 v6, 12288, v6')
        a('v_lshrrev_b32 v7, 1, v4')
        a('v_lshl_add_u32 v7, v5, 1, v7')
        a('v_lshlrev_b32 v7, 4, v7')
        a('v_add_u32 v6, v6, v7')
        a('s_mul_i32 s56, s35, 24576')
        a('s_lshl_b32 s57, s38, 12')
        a('s_add_u32 s56, s56, s57')
        a('s_lshl_b32 s57, s31, 9')
        a('s_add_u32 s56, s56, s57')
        a(f's_add_u32 s56, s56, {WS_E1}')
        a('v_and_b32 v7, 2, v4')
        a('v_cmp_eq_u32 vcc, 2, v7')
        a('s_waitcnt lgkmcnt(0)')
        a('s_add_u32 s36, s36, 1')
        a('v_mov_b32 v10, s36')
        a('v_mov_b32 v11, s37')
        a('s_nop 7')
        a('s_mov_b64 s[74:75], exec')
        a('s_mov_b32 exec_lo, 0x000f000f')
        a('s_mov_b32 exec_hi, 0x000f000f')
        for tile in range(4):
            a(f'v_cndmask_b32 v8, v{ACC+4*tile}, v{ACC+4*tile+2}, vcc')
            a(f'v_cndmask_b32 v9, v{ACC+4*tile+1}, v{ACC+4*tile+3}, vcc')
            a(f'buffer_store_dwordx4 v[8:11], v6, s[52:55], s56 offen offset:{128*tile} sc1')
            a('s_nop 1')
        a('s_mov_b64 exec, s[74:75]')
        self.stamp(3)
        a('s_mul_i32 s56, s35, 24576')
        a('s_mul_i32 s57, s32, 12288')
        a('s_add_u32 s56, s56, s57')
        a('s_lshl_b32 s57, s38, 12')
        a('s_add_u32 s56, s56, s57')
        a(f's_add_u32 s56, s56, {WS_E1}')
        a('v_lshlrev_b32 v6, 4, v0')
        a(f's_mov_b32 s70, {o["spin"]}')
        self.label('L_q_poll')
        for i in range(4):
            a(f'buffer_load_dwordx4 v[{24+4*i}:{27+4*i}], v6, s[52:55], s56 offen offset:{1024*i} sc1')
        a('s_waitcnt vmcnt(0)')
        self.poll_check([24, 28, 32, 36], 'L_q_poll')
        a('v_add_f32 v24, v24, v28')
        a('v_add_f32 v25, v25, v29')
        a('v_add_f32 v32, v32, v36')
        a('v_add_f32 v33, v33, v37')
        a('v_add_f32 v24, v24, v32')
        a('v_add_f32 v25, v25, v33')
        self.swap_reduce('v_add_f32', 24, 26, 32)
        self.swap_reduce('v_add_f32', 25, 26, 32)
        a('v_cvt_pk_bf16_f32 v24, v24, v25')
        a('v_and_b32 v6, 31, v0')
        a('v_lshlrev_b32 v6, 2, v6')
        a('s_lshl_b32 s57, s38, 7')
        a('v_add_u32 v6, s57, v6')
        a(f'ds_write_b32 v6, v24 offset:{L_Q}')
        if o['dbg']:
            a('s_lshl_b32 s56, s2, 9'); a(f's_add_u32 s56, s56, {WS_DBG}')
            a('buffer_store_dword v24, v6, s[52:55], s56 offen')
        a('s_waitcnt lgkmcnt(0)')
        self.stamp(4)
        a('s_barrier')
        self.wblock_dma()
        a('s_waitcnt vmcnt(0)')
        a('s_branch L_tail')

        self.label('L_aux_ffn')
        a('s_and_b32 s56, s34, 15')
        a('s_mul_i32 s56, s56, 80')
        a('v_add_u32 v6, s56, v6')
        for t in range(2):
            a(f'ds_read_b128 v[{XB+4*t}:{XB+4*t+3}], v6 offset:{L_XN + 64*t}')
        a('v_mul_u32_u24 v52, 384, v50')
        a(f'v_add_u32 v52, {L_UF}, v52')
        a('v_add_u32 v52, v52, v51')
        a('v_lshrrev_b32 v53, 2, v4')
        a('v_mul_u32_u24 v53, 384, v53')
        a(f'v_add_u32 v53, {L_UF}, v53')
        a('v_add_u32 v53, v53, v51')
        a('v_cmp_le_u32 vcc, 1, v5')
        FACC = 64
        for k in range(48):
            a(f'v_mov_b32 v{FACC+k}, 0')
        a('s_waitcnt lgkmcnt(0)')
        for r in range(4):
            a(f'v_cndmask_b32 v{XB+4+r}, v{XB+4+r}, 0, vcc')
        a('s_waitcnt vmcnt(0)')
        self.gemv_unit(W=24, XB=XB, ntile=12, nstep=2, lastvalid=1, addr=52, rowstride=384, tilebytes=32, acc=FACC)
        a('v_and_b32 v6, 1, v4')
        a('v_mul_u32_u24 v6, 192, v6')
        a('v_lshlrev_b32 v7, 4, v5')
        a('v_add_u32 v6, v6, v7')
        a('s_mul_i32 s56, s29, 49152')
        a('s_mul_i32 s57, s34, 384')
        a('s_add_u32 s56, s56, s57')
        a(f's_add_u32 s56, s56, {WS_E2}')
        a('s_add_u32 s36, s36, 1')
        a('s_nop 7')
        a('s_mov_b32 exec_lo, 0x00030003')
        a('s_mov_b32 exec_hi, 0x00030003')
        for tile in range(12):
            r = tile // 3
            if tile % 3 == 0 and tile:
                a('s_add_u32 s56, s56, 12288')
            a(f'buffer_store_dwordx4 v[{FACC+4*tile}:{FACC+4*tile+3}], v6, s[52:55], s56 offen offset:{64*(tile%3)} sc1')
        a('s_mov_b64 exec, -1')
        a('s_barrier')
        a('s_waitcnt vmcnt(0)')
        a('v_mov_b32 v8, s36')
        a('v_mov_b32 v9, s37')
        a('s_lshl_b32 s56, s29, 8')
        a('s_lshl_b32 s57, s34, 3')
        a('s_add_u32 s57, s57, s56')
        a(f's_add_u32 s57, s57, {WS_E2F}')
        a(f's_add_u32 s56, s56, {WS_E2F}')
        a('v_mov_b32 v10, 0')
        a('s_mov_b64 exec, 1')
        a('buffer_store_dwordx2 v[8:9], v10, s[52:55], s57 offen sc1')
        a('s_mov_b64 exec, -1')
        a('v_and_b32 v10, 31, v0')
        a('v_lshlrev_b32 v10, 3, v10')
        a(f's_mov_b32 s70, {o["spin"]}')
        self.label('L_f_poll')
        a('buffer_load_dwordx2 v[14:15], v10, s[52:55], s56 offen sc1')
        a('s_waitcnt vmcnt(0)')
        self.poll_check([12], 'L_f_poll')
        a('v_and_b32 v10, 31, v0')
        a('v_min_u32 v11, 23, v10')
        a('v_lshlrev_b32 v11, 4, v11')
        a('v_lshrrev_b32 v12, 5, v0')
        a('v_mul_u32_u24 v12, 6144, v12')
        a('v_add_u32 v11, v11, v12')
        a('s_mul_i32 s56, s29, 49152')
        a('s_mul_i32 s57, s30, 12288')
        a('s_add_u32 s56, s56, s57')
        a(f's_add_u32 s56, s56, {WS_E2}')
        for i in range(16):
            a(f'buffer_load_dwordx4 v[{64+4*i}:{67+4*i}], v11, s[52:55], s56 offen offset:{384*(i%8)} sc1')
            if i == 7:
                a('s_add_u32 s56, s56, 3072')
        a('s_waitcnt vmcnt(0)')
        for i in range(1, 16):
            for r in range(4):
                a(f'v_add_f32 v{64+r}, v{64+r}, v{64+4*i+r}')
        a('v_cvt_pk_bf16_f32 v64, v64, v65')
        a('v_cvt_pk_bf16_f32 v65, v66, v67')
        a('v_mov_b32 v68, v64')
        a('v_mov_b32 v69, v65')
        a('s_nop 1')
        a('v_permlane32_swap_b32 v64, v68')
        a('v_permlane32_swap_b32 v65, v69')
        for p in range(2):
            g, u = 64 + p, 68 + p
            a(f'v_lshlrev_b32 v72, 16, v{g}')
            a(f'v_and_b32 v73, 0xffff0000, v{g}')
            for t in (72, 73):
                a(f'v_mul_f32 v74, {0xBFB8AA3B}, v{t}')
                a('v_exp_f32 v74, v74')
                a('s_nop 0')
                a('v_add_f32 v74, 1.0, v74')
                a('v_rcp_f32 v74, v74')
                a('s_nop 0')
                a(f'v_mul_f32 v{t}, v{t}, v74')
            a('v_cvt_pk_bf16_f32 v72, v72, v73')
            a('v_and_b32 v73, 0xffff0000, v72')
            a('v_lshlrev_b32 v72, 16, v72')
            a(f'v_and_b32 v75, 0xffff0000, v{u}')
            a(f'v_lshlrev_b32 v74, 16, v{u}')
            a('v_mul_f32 v72, v72, v74')
            a('v_mul_f32 v73, v73, v75')
            a(f'v_cvt_pk_bf16_f32 v{76+p}, v72, v73')
        a('v_cmp_le_u32 vcc, 12, v10')
        a('v_subrev_u32 v11, 12, v10')
        a('s_nop 0')
        a('v_cndmask_b32 v11, v10, v11, vcc')
        a('v_lshlrev_b32 v11, 3, v11')
        a('v_add_u32 v12, 128, v11')
        a('v_cndmask_b32 v11, v11, v12, vcc')
        a('v_subrev_u32 v12, 24, v10')
        a('v_lshrrev_b32 v13, 2, v12')
        a('v_lshlrev_b32 v13, 7, v13')
        a('v_and_b32 v12, 3, v12')
        a('v_lshl_add_u32 v12, v12, 3, v13')
        a('v_add_u32 v12, 96, v12')
        a('v_cmp_le_u32 vcc, 24, v10')
        a('s_nop 1')
        a('v_cndmask_b32 v11, v11, v12, vcc')
        a('v_cndmask_b32 v76, v76, 0, vcc')
        a('v_cndmask_b32 v77, v77, 0, vcc')
        a('s_mov_b32 exec_hi, 0')
        a(f'ds_write_b64 v11, v[76:77] offset:{L_HV}')
        a('s_mov_b64 exec, -1')
        a('s_waitcnt lgkmcnt(0)')
        self.stamp(4)
        a('s_branch L_tail')

    def wblock_dma(self):
        o = self.opt; a = self.a
        ntw = o['ntw']
        for i in range(5):
            a(f'v_add_u32 v5, {64*i}, v0')
            a('v_mul_u32_u24 v6, 6554, v5')
            a('v_lshrrev_b32 v6, 16, v6')
            a('v_mul_u32_u24 v7, 10, v6')
            a('v_sub_u32 v5, v5, v7')
            a('v_mul_u32_u24 v6, 1280, v6')
            a('v_lshlrev_b32 v5, 4, v5')
            a(f'v_add_u32 v{40+i}, v5, v6')
        self.srd(40, 12, WO_BYTES)
        self.srd(44, 20, WD_BYTES)
        a('s_mul_i32 s56, s35, 245760')
        a('s_mul_i32 s57, s31, 160')
        a('s_add_u32 s56, s56, s57')
        a('s_mul_i32 s57, s38, 81920')
        a('s_add_u32 s56, s56, s57')
        a('s_mul_i32 s57, s38, 10240')
        a(f's_add_u32 s57, s57, {L_WB}')
        for i in range(10):
            a('s_mov_b32 m0, s57')
            a('s_add_u32 s57, s57, 1024')
            a(f'buffer_load_dwordx4 v{40+i%5}, s[40:43], s56 offen {ntw} lds')
            if i == 4:
                a('s_add_u32 s56, s56, 40960')
        a('s_mul_i32 s56, s35, 61440')
        a('s_mul_i32 s57, s31, 160')
        a('s_add_u32 s56, s56, s57')
        lab0, lab1, labd = self.newlab('L_wd'), self.newlab('L_wd'), self.newlab('L_wd')
        a('s_cmp_eq_u32 s38, 0'); a(f's_cbranch_scc1 {lab0}')
        a('s_cmp_eq_u32 s38, 1'); a(f's_cbranch_scc1 {lab1}')

        def dma(i):
            a(f's_mov_b32 m0, {L_WD + 1024*i}')
            a(f's_add_u32 s57, s56, {40960*(i//5)}')
            a(f'buffer_load_dwordx4 v{40+i%5}, s[44:47], s57 offen {ntw} lds')
        dma(6); dma(7); a(f's_branch {labd}')
        self.label(lab0); dma(0); dma(1); dma(2); a(f's_branch {labd}')
        self.label(lab1); dma(3); dma(4); dma(5)
        self.label(labd)

    def tail(self):
        o = self.opt; a = self.a
        self.c('==== tail (all waves) ====')
        a('s_barrier')
        self.stamp(5)
        lab = self.newlab('L_tg')
        a('s_cmp_ge_u32 s28, 4'); a(f's_cbranch_scc1 {lab}')
        a('s_add_u32 s36, s36, 1')
        self.label(lab)
        a('s_cmp_ge_u32 s28, 2')
        a('s_cbranch_scc1 L_gather')
        a('s_lshl_b32 s56, s28, 6')
        a('v_add_u32 v1, s56, v0')
        a('v_min_u32 v2, 95, v1')
        a('v_lshlrev_b32 v2, 3, v2')
        for cidx in range(8):
            a(f'ds_read_b64 v[{8+2*cidx}:{9+2*cidx}], v2 offset:{L_OL + 768*cidx}')
        a('v_mov_b32 v3, 0')
        a(f'ds_read_b128 v[24:27], v3 offset:{L_ML}')
        a(f'ds_read_b128 v[28:31], v3 offset:{L_ML+16}')
        a(f's_mov_b32 s62, {LOG2E}')
        a('s_waitcnt lgkmcnt(0)')
        a('v_max3_f32 v32, v24, v25, v26')
        a('v_max_f32 v32, v32, v27')
        for w in range(4):
            a(f'v_sub_f32 v{24+w}, v{24+w}, v32')
            a(f'v_mul_f32 v{24+w}, s62, v{24+w}')
            a(f'v_exp_f32 v{24+w}, v{24+w}')
        a('s_nop 0')
        a('v_mul_f32 v33, v24, v28')
        for w in range(1, 4):
            a(f'v_fmac_f32 v33, v{24+w}, v{28+w}')
        for w in range(4):
            a(f'v_add_f32 v{8+4*w}, v{8+4*w}, v{10+4*w}')
            a(f'v_add_f32 v{9+4*w}, v{9+4*w}, v{11+4*w}')
        a('v_mul_f32 v36, v24, v8')
        a('v_mul_f32 v37, v24, v9')
        for w in range(1, 4):
            a(f'v_fmac_f32 v36, v{24+w}, v{8+4*w}')
            a(f'v_fmac_f32 v37, v{24+w}, v{9+4*w}')
        a('v_cmp_eq_u32 vcc, 96, v1')
        a('v_mov_b32 v38, s36')
        a('v_mov_b32 v39, s37')
        a('v_cndmask_b32 v36, v36, v32, vcc')
        a('v_cndmask_b32 v37, v37, v33, vcc')
        a('v_lshlrev_b32 v2, 4, v1')
        a('s_lshl_b32 s56, s35, 3')
        a('s_add_u32 s56, s56, s31')
        a('s_lshl_b32 s56, s56, 11')
        a(f's_add_u32 s56, s56, {WS_E3}')
        a('v_cmp_ge_u32 vcc, 96, v1')
        a('s_and_saveexec_b64 s[74:75], vcc')
        a('buffer_store_dwordx4 v[36:39], v2, s[52:55], s56 offen sc1')
        a('s_mov_b64 exec, s[74:75]')
        self.stamp(6)
        a('s_branch L_bar4')
        self.label('L_gather')
        a('s_sub_u32 s56, s28, 2')
        a('s_cmp_ge_u32 s56, 3')
        a('s_cselect_b32 s57, 1, 0')
        a('s_mul_i32 s58, s57, 3')
        a('s_sub_u32 s58, s56, s58')
        a('v_lshrrev_b32 v1, 5, v0')
        a('v_lshlrev_b32 v1, 11, v1')
        a('v_and_b32 v2, 31, v0')
        a('s_lshl_b32 s59, s58, 5')
        a('v_add_u32 v3, s59, v2')
        a('v_lshl_add_u32 v3, v3, 4, v1')
        a('v_add_u32 v4, 1536, v1')
        a('s_lshl_b32 s59, s35, 3')
        a('s_lshl_b32 s60, s57, 2')
        a('s_add_u32 s59, s59, s60')
        a('s_lshl_b32 s59, s59, 11')
        a(f's_add_u32 s59, s59, {WS_E3}')
        a('s_add_u32 s60, s59, 4096')
        a(f's_mov_b32 s70, {o["spin"]}')
        self.label('L_o_poll')
        a('buffer_load_dwordx4 v[8:11], v3, s[52:55], s59 offen sc1')
        a('buffer_load_dwordx4 v[12:15], v3, s[52:55], s60 offen sc1')
        a('buffer_load_dwordx4 v[16:19], v4, s[52:55], s59 offen sc1')
        a('buffer_load_dwordx4 v[20:23], v4, s[52:55], s60 offen sc1')
        a('s_waitcnt vmcnt(0)')
        self.poll_check([8, 12, 16, 20], 'L_o_poll')
        self.stamp(6)
        a(f's_mov_b32 s62, {LOG2E}')
        a('v_max_f32 v24, v16, v20')
        self.swap_reduce('v_max_f32', 24, 25, 32)
        a('v_sub_f32 v16, v16, v24')
        a('v_sub_f32 v20, v20, v24')
        a('v_mul_f32 v16, s62, v16')
        a('v_mul_f32 v20, s62, v20')
        a('v_exp_f32 v16, v16')
        a('v_exp_f32 v20, v20')
        a('s_nop 0')
        a('v_mul_f32 v26, v16, v17')
        a('v_fmac_f32 v26, v20, v21')
        a('v_mul_f32 v27, v16, v8')
        a('v_mul_f32 v28, v16, v9')
        a('v_fmac_f32 v27, v20, v12')
        a('v_fmac_f32 v28, v20, v13')
        self.swap_reduce('v_add_f32', 26, 25, 32)
        self.swap_reduce('v_add_f32', 27, 25, 32)
        self.swap_reduce('v_add_f32', 28, 25, 32)
        a('v_rcp_f32 v26, v26')
        a('s_nop 0')
        a('v_mul_f32 v27, v27, v26')
        a('v_mul_f32 v28, v28, v26')
        a('v_cvt_pk_bf16_f32 v27, v27, v28')
        a('s_mul_i32 s59, s57, 384')
        a('s_lshl_b32 s60, s58, 7')
        a('s_add_u32 s59, s59, s60')
        a('v_lshl_add_u32 v2, v2, 2, s59')
        a('s_mov_b32 exec_hi, 0')
        a(f'ds_write_b32 v2, v27 offset:{L_ON}')
        a('s_mov_b64 exec, -1')
        if o['dbg']:
            a('s_lshl_b32 s60, s2, 10'); a(f's_add_u32 s60, s60, {WS_DBG + 0x40000}')
            a('buffer_store_dword v27, v2, s[52:55], s60 offen')
        a('s_waitcnt lgkmcnt(0)')
        self.label('L_bar4')
        a('s_barrier')
        self.stamp(7)
        a('s_cmp_ge_u32 s28, 5')
        a('s_cbranch_scc1 L_reduce')
        a('v_and_b32 v4, 15, v0')
        a('v_lshrrev_b32 v5, 4, v0')
        a('v_and_b32 v6, 1, v0')
        a('v_lshlrev_b32 v7, 4, v5')
        a('v_mul_u32_u24 v8, 384, v6')
        a('v_add_u32 v8, v8, v7')
        a('v_lshlrev_b32 v9, 7, v6')
        a('v_add_u32 v9, v9, v7')
        for t in range(6):
            a(f'ds_read_b128 v[{16+4*t}:{19+4*t}], v8 offset:{L_ON + 64*t}')
        for t in range(2):
            a(f'ds_read_b128 v[{40+4*t}:{43+4*t}], v9 offset:{L_HV + 64*t}')
        a('v_lshlrev_b32 v10, 3, v5')
        a('v_lshrrev_b32 v11, 2, v4')
        a('v_add_u32 v10, v10, v11')
        a('v_mul_u32_u24 v10, 160, v10')
        a('v_and_b32 v11, 3, v4')
        a('v_lshlrev_b32 v11, 3, v11')
        a('s_lshl_b32 s56, s28, 5')
        a('v_add3_u32 v10, v10, v11, s56')
        a(f'v_add_u32 v10, {L_WB}, v10')
        a('v_cmp_le_u32 vcc, 2, v5')
        a('v_subrev_u32 v11, 2560, v10')
        a('s_nop 0')
        a('v_cndmask_b32 v11, v10, v11, vcc')
        for t in range(6):
            a(f'ds_read_b64_tr_b16 v[{48+4*t}:{49+4*t}], v10 offset:{5120*t}')
            a(f'ds_read_b64_tr_b16 v[{50+4*t}:{51+4*t}], v10 offset:{5120*t + 640}')
        a(f'ds_read_b64_tr_b16 v[72:73], v10 offset:{L_WD - L_WB}')
        a(f'ds_read_b64_tr_b16 v[74:75], v10 offset:{L_WD - L_WB + 640}')
        a(f'ds_read_b64_tr_b16 v[76:77], v11 offset:{L_WD - L_WB + 5120}')
        a(f'ds_read_b64_tr_b16 v[78:79], v11 offset:{L_WD - L_WB + 5120 + 640}')
        for k in range(8):
            a(f'v_mov_b32 v{80+k}, 0')
        a('s_waitcnt lgkmcnt(0)')
        for t in range(6):
            a(f'v_mfma_f32_16x16x32_bf16 v[80:83], v[{16+4*t}:{19+4*t}], v[{48+4*t}:{51+4*t}], v[80:83]')
        for t in range(2):
            a(f'v_mfma_f32_16x16x32_bf16 v[84:87], v[{40+4*t}:{43+4*t}], v[{72+4*t}:{75+4*t}], v[84:87]')
        a('v_and_b32 v6, 1, v5')
        a('v_mul_u32_u24 v6, 40960, v6')
        a('v_lshl_add_u32 v6, v4, 4, v6')
        a('s_mul_i32 s56, s31, 10')
        a('s_add_u32 s56, s56, s28')
        a('s_lshl_b32 s56, s56, 13')
        a('s_lshl_b32 s57, s35, 8')
        a('s_add_u32 s56, s56, s57')
        a(f's_add_u32 s56, s56, {WS_E4}')
        a('v_and_b32 v7, 16, v0')
        a('v_cmp_eq_u32 vcc, 16, v7')
        a('v_mov_b32 v90, s36')
        a('v_mov_b32 v91, s37')
        a('s_nop 7')
        a('v_cndmask_b32 v88, v80, v81, vcc')
        a('v_cndmask_b32 v89, v84, v85, vcc')
        a('s_mov_b32 exec_hi, 0')
        a('buffer_store_dwordx4 v[88:91], v6, s[52:55], s56 offen sc1')
        self.stamp(8)
        a('s_branch L_end')
        self.label('L_reduce')
        a('s_cmp_lg_u32 s28, 5')
        a('s_cbranch_scc1 L_end')
        a('s_cmp_ge_u32 s35, 10')
        a('s_cbranch_scc1 L_end')
        a('s_cmp_ge_u32 s35, 5')
        a('s_cselect_b32 s57, 1, 0')
        a('s_mul_i32 s58, s57, 5')
        a('s_sub_u32 s58, s35, s58')
        self.srd(40, 4, X_BYTES)
        self.srd(44, 22, X_BYTES)
        a('s_mul_i32 s59, s57, 1280')
        a('s_mul_i32 s60, s31, 160')
        a('s_add_u32 s59, s59, s60')
        a('s_lshl_b32 s60, s58, 5')
        a('s_add_u32 s59, s59, s60')
        a('v_and_b32 v4, 15, v0')
        a('v_lshlrev_b32 v4, 1, v4')
        a('buffer_load_ushort v5, v4, s[40:43], s59 offen')
        a('s_lshl_b32 s60, s31, 1')
        a('s_add_u32 s60, s60, s57')
        a('s_mul_i32 s60, s60, 5')
        a('s_add_u32 s60, s60, s58')
        a('s_lshl_b32 s60, s60, 13')
        a(f's_add_u32 s60, s60, {WS_E4}')
        a('v_lshlrev_b32 v6, 4, v0')
        a(f's_mov_b32 s70, {o["spin"]}')
        self.label('L_r_poll')
        for i in range(8):
            if i == 4:
                a('s_add_u32 s61, s60, 4096')
            so = 's60' if i < 4 else 's61'
            a(f'buffer_load_dwordx4 v[{8+4*i}:{11+4*i}], v6, s[52:55], {so} offen offset:{1024*(i%4)} sc1')
        a('s_waitcnt vmcnt(0)')
        self.poll_check([8 + 4 * i for i in range(8)], 'L_r_poll')
        for i in range(1, 8):
            a(f'v_add_f32 v8, v8, v{8+4*i}')
            a(f'v_add_f32 v9, v9, v{9+4*i}')
        self.swap_reduce('v_add_f32', 8, 10, 16)
        self.swap_reduce('v_add_f32', 9, 10, 16)
        self.swap_reduce('v_add_f32', 8, 10, 32)
        self.swap_reduce('v_add_f32', 9, 10, 32)
        a('v_cvt_pk_bf16_f32 v8, v8, v9')
        a('v_lshlrev_b32 v5, 16, v5')
        a('v_lshlrev_b32 v9, 16, v8')
        a('v_add_f32 v9, v5, v9')
        a('v_cvt_pk_bf16_f32 v9, v9, v9')
        a('v_lshlrev_b32 v9, 16, v9')
        a('v_and_b32 v8, 0xffff0000, v8')
        a('v_add_f32 v9, v9, v8')
        a('v_cvt_pk_bf16_f32 v9, v9, v9')
        a('s_mov_b64 exec, 0xffff')
        a('buffer_store_short v9, v4, s[44:47], s59 offen')
        a('s_cmp_lg_u32 s35, 0'); a('s_cbranch_scc1 L_end')
        a('s_cmp_lg_u32 s31, 0'); a('s_cbranch_scc1 L_end')
        a('v_mov_b32 v8, s36')
        a('v_mov_b32 v9, s37')
        a('v_mov_b32 v10, 0')
        a('s_mov_b64 exec, 1')
        a(f'buffer_store_dwordx2 v[8:9], v10, s[52:55], 0 offen offset:{WS_EPOCH} sc1')
        self.stamp(9)


if __name__ == '__main__':
    opts = {}
    for arg in sys.argv[2:]:
        k, v = arg.split('=')
        try:
            v = eval(v)
        except Exception:
            pass
        opts[k] = v
    src = Gen(**opts).build()
    open(sys.argv[1], 'w').write(src)
    print('wrote', sys.argv[1], len(src), 'bytes')
```

```python
import sys

NAME = 'parallel_sum__mha_block_cached__swiglu_ffn__decode_kernel'

D = 640; H = 32; SK = 4096; DH = 192; F = 1536
K_BYTES = 2 * H * SK * DH * 2
WQ_BYTES = D * H * DH * 2
WO_BYTES = H * DH * D * 2
WG_BYTES = D * F * 2
WD_BYTES = F * D * 2
X_BYTES = 2 * D * 2

WS_EPOCH = 0
WS_E1 = 0x10000
WS_E2F = 0xD0000
WS_E2 = 0xE0000
WS_E3 = 0x140000
WS_E4 = 0x1C0000
WS_USED = 0x260000
WS_DBG = 0x300000
WS_SRD_BYTES = 0x800000

L_XN = 0
L_Q = 2560
L_HV = 2944
L_ON = 3200
L_ML = 3968
L_FLAG = 4032
L_OL = 4096
L_UQ = 10240
L_UF = 40960
L_WB = 56320
L_WD = 87040
LDS_BYTES = 95232

LOG2E = 0x3FB8AA3B
SCALE = 0x3D93CD3A
INV640 = 0x3ACCCCCD
EPS_BF = 0x37280000


class Gen:
    def __init__(self, **opt):
        self.L = []
        self.opt = dict(NP=4, ntk='nt', ntv='nt', ntw='nt', dbg=False, spin=1 << 16, stamps=False, dbgtime=False)
        self.opt.update(opt)
        self.lab = 0

    def a(self, s):
        self.L.append('  ' + s)

    def label(self, s):
        self.L.append(s + ':')

    def newlab(self, p='L'):
        self.lab += 1
        return f'{p}_{self.lab}'

    def c(self, s):
        self.L.append('  ; ' + s)

    def srd(self, r, base, nbytes):
        self.a(f's_mov_b32 s{r}, s{base}')
        self.a(f's_and_b32 s{r+1}, s{base+1}, 0xffff')
        self.a(f's_mov_b32 s{r+2}, {nbytes}')
        self.a(f's_mov_b32 s{r+3}, 0x20000')

    def dpp(self, op, dst, src0, src1, ctrl):
        self.a(f'{op}_dpp v{dst}, v{src0}, v{src1} {ctrl} row_mask:0xf bank_mask:0xf')

    def swap_reduce(self, op, v, t, which):
        self.a(f'v_mov_b32 v{t}, v{v}')
        self.a('s_nop 1')
        self.a(f'v_permlane{which}_swap_b32 v{v}, v{t}')
        self.a(f'{op} v{v}, v{v}, v{t}')

    def stamp(self, idx):
        if not self.opt['stamps']:
            return
        self.a('s_memrealtime s[90:91]')
        self.a('s_waitcnt lgkmcnt(0)')
        self.a(f'v_mov_b32 v250, s90')
        self.a(f's_lshl_b32 s92, s2, 3')
        self.a(f's_add_u32 s92, s92, s28')
        self.a(f's_lshl_b32 s92, s92, 6')
        self.a(f's_add_u32 s92, s92, {WS_DBG + 4*idx}')
        self.a(f'v_mov_b32 v251, 0')
        self.a('s_mov_b64 s[94:95], exec')
        self.a('s_mov_b64 exec, 1')
        self.a(f'buffer_store_dword v250, v251, s[52:55], s92 offen')
        self.a('s_mov_b64 exec, s[94:95]')

    def tmark(self, i):
        if self.opt['dbgtime']:
            self.a(f's_memrealtime s[{76+2*i}:{77+2*i}]')
            self.a('s_waitcnt lgkmcnt(0)')

    def poll_check(self, regs, again, cnt='s70'):
        first = True
        for r in regs:
            self.a(f'v_cmp_ne_u64 vcc, s[36:37], v[{r+2}:{r+3}]')
            if first:
                self.a('s_mov_b64 s[72:73], vcc')
                first = False
            else:
                self.a('s_or_b64 s[72:73], s[72:73], vcc')
        done = self.newlab('L_pd')
        self.a('s_cmp_eq_u64 s[72:73], 0')
        self.a(f's_cbranch_scc1 {done}')
        self.a(f's_sub_u32 {cnt}, {cnt}, 1')
        self.a(f's_cmp_eq_u32 {cnt}, 0')
        self.a(f's_cbranch_scc1 {done}')
        self.a('s_sleep 1')
        self.a(f's_branch {again}')
        self.label(done)

    def build(self):
        o = self.opt
        NP = o['NP']
        a = self.a
        head = [f'; fused LN + q-proj + split-KV attention + out-proj + SwiGLU FFN (decode), one launch',
                f'; @launch grid=(256,1,1) block=(512,1,1) lds={LDS_BYTES}',
                '.amdgcn_target "amdgcn-amd-amdhsa--gfx950"', '.text', f'.globl {NAME}', '.p2align 8',
                f'.type {NAME},@function', f'{NAME}:']
        a('s_cmp_ge_u32 s2, 256')
        a('s_cbranch_scc1 L_end')
        a('s_load_dwordx16 s[4:19], s[0:1], 0')
        a('s_load_dwordx8 s[20:27], s[0:1], 64')
        a('v_lshrrev_b32 v1, 6, v0')
        a('v_and_b32 v0, 63, v0')
        a('s_and_b32 s29, s2, 7')
        a('v_readfirstlane_b32 s28, v1')
        a('s_lshr_b32 s34, s2, 3')
        a('s_lshr_b32 s30, s34, 3')
        a('s_and_b32 s31, s34, 7')
        a('s_lshl_b32 s35, s29, 2')
        a('s_add_u32 s35, s35, s30')
        a('s_lshr_b32 s32, s31, 2')
        a('s_and_b32 s33, s31, 3')
        a('s_waitcnt lgkmcnt(0)')
        a(f's_load_dwordx2 s[36:37], s[26:27], {WS_EPOCH}')
        self.srd(52, 26, WS_SRD_BYTES)
        self.stamp(0)
        self.tmark(0)
        a('s_cmp_ge_u32 s28, 4')
        a('s_cbranch_scc1 L_aux')
        self.stream()
        self.label('L_aux')
        self.aux()
        self.label('L_tail')
        self.tail()
        self.label('L_end')
        a('s_endpgm')
        nv = 256
        foot = ['.section .rodata,"a"', '.p2align 6', f'.amdhsa_kernel {NAME}',
                f'  .amdhsa_next_free_vgpr {nv}', '  .amdhsa_next_free_sgpr 96', f'  .amdhsa_accum_offset {nv}',
                '  .amdhsa_group_segment_fixed_size 0', '  .amdhsa_kernarg_size 96',
                '  .amdhsa_user_sgpr_count 2', '  .amdhsa_user_sgpr_kernarg_segment_ptr 1',
                '  .amdhsa_system_sgpr_workgroup_id_x 1', '  .amdhsa_float_denorm_mode_32 3',
                '.end_amdhsa_kernel']
        return '\n'.join(head + self.L + foot) + '\n'

    def stream(self):
        o = self.opt; a = self.a
        NP = o['NP']
        VOFF = 1
        M = 2
        Q = 8
        ACC = 20
        S = 32
        T = 48
        RB = 72
        assert RB + 24 * NP <= 250
        self.c('==== stream waves ====')
        self.srd(40, 6, K_BYTES)
        self.srd(44, 8, K_BYTES)
        a('s_lshl_b32 s56, s32, 5')
        a('s_add_u32 s56, s56, s35')
        a('s_lshl_b32 s56, s56, 12')
        a('s_lshl_b32 s57, s33, 10')
        a('s_add_u32 s56, s56, s57')
        a('s_lshl_b32 s57, s28, 8')
        a('s_add_u32 s56, s56, s57')
        a('s_mul_i32 s58, s56, 384')
        a(f'v_lshrrev_b32 v{T}, 3, v0')
        a(f'v_mul_u32_u24 v{T}, 384, v{T}')
        a(f'v_and_b32 v{T+1}, 7, v0')
        a(f'v_lshlrev_b32 v{T+2}, 4, v{T+1}')
        a(f'v_add_u32 v{VOFF}, v{T}, v{T+2}')
        a(f'v_and_b32 v{T+2}, 1, v0')
        a(f'v_mov_b32 v{T+3}, 0xffff')
        a(f'v_mov_b32 v{T+4}, 0xffff0000')
        a(f'v_cmp_eq_u32 vcc, 1, v{T+2}')
        a(f'v_lshrrev_b32 v{T+1}, 1, v{T+1}')
        a('s_nop 0')
        a(f'v_cndmask_b32 v{T+3}, v{T+3}, v{T+4}, vcc')
        for r in range(4):
            a(f'v_cmp_eq_u32 vcc, {r}, v{T+1}')
            a('s_nop 1')
            a(f'v_cndmask_b32 v{M+r}, 0, v{T+3}, vcc')
        for i in range(12):
            a(f'v_mov_b32 v{ACC+i}, 0')
        a('s_mov_b32 s59, s58')
        a('s_barrier')

        seq = [('K', p) for p in range(16)] + [('V', p) for p in range(16)]

        def issue(idx):
            if idx >= len(seq):
                return []
            kind, p = seq[idx]
            srd = 40 if kind == 'K' else 44
            nt = o['ntk'] if kind == 'K' else o['ntv']
            R = RB + 24 * (idx % NP)
            out = []
            if kind == 'V' and p == 0:
                out.append('s_mov_b32 s59, s58')
            for g in range(2):
                for i in range(3):
                    r = R + 12 * g + 4 * i
                    out.append(f'buffer_load_dwordx4 v[{r}:{r+3}], v{VOFF}, s[{srd}:{srd+3}], s59 offen offset:{3072*g+128*i} {nt}')
            out.append('s_add_u32 s59, s59, 6144')
            return out

        for idx in range(NP):
            for s in issue(idx):
                a(s)
        self.stamp(1)
        a('s_barrier')
        self.stamp(2)
        a(f'v_and_b32 v{T}, 7, v0')
        a(f'v_lshlrev_b32 v{T}, 4, v{T}')
        for i in range(3):
            a(f'ds_read_b128 v[{Q+4*i}:{Q+4*i+3}], v{T} offset:{L_Q + 128*i}')
        a(f'v_mov_b32 v{T+8}, 0xff800000')
        MX = T + 8
        a(f's_mov_b32 s60, {SCALE}')
        a(f's_mov_b32 s61, 0xffff0000')
        a(f's_mov_b32 s62, {LOG2E}')
        a('s_waitcnt lgkmcnt(0)')

        def outstanding_after(idx):
            last = min(idx + NP - 1, len(seq) - 1)
            return (last - idx) * 6

        for p in range(16):
            idx = p
            R = RB + 24 * (idx % NP)
            self.c(f'K pair {p}')
            a(f's_waitcnt vmcnt({outstanding_after(idx)})')
            A, B = T, T + 1
            a(f'v_mov_b32 v{A}, 0')
            a(f'v_mov_b32 v{B}, 0')
            for g, acc in ((0, A), (1, B)):
                for i in range(3):
                    for r in range(4):
                        a(f'v_dot2c_f32_bf16 v{acc}, v{R+12*g+4*i+r}, v{Q+4*i+r}')
            nxt = issue(idx + NP)
            fill = list(nxt)

            def f(n=1):
                for _ in range(n):
                    a(fill.pop(0) if fill else 's_nop 0')
            q1 = 'quad_perm:[1,0,3,2]'; q2 = 'quad_perm:[2,3,0,1]'; hm = 'row_half_mirror'
            self.dpp('v_add_f32', A, A, A, q1)
            f(2)
            self.dpp('v_add_f32', B, B, B, q1)
            self.dpp('v_add_f32', A, A, A, q2)
            f(1)
            self.dpp('v_add_f32', B, B, B, q2)
            self.dpp('v_add_f32', A, A, A, hm)
            f(1)
            self.dpp('v_add_f32', B, B, B, hm)
            while fill:
                f(1)
            a(f'v_cvt_pk_bf16_f32 v{T+2}, v{A}, v{B}')
            a(f'v_lshlrev_b32 v{T+3}, 16, v{T+2}')
            a(f'v_and_b32 v{T+4}, s61, v{T+2}')
            a(f'v_mul_f32 v{T+3}, s60, v{T+3}')
            a(f'v_mul_f32 v{T+4}, s60, v{T+4}')
            a(f'v_max3_f32 v{MX}, v{MX}, v{T+3}, v{T+4}')
            a(f'v_cvt_pk_bf16_f32 v{S+p}, v{T+3}, v{T+4}')
        self.c('wave max')
        a('s_nop 1')
        self.dpp('v_max_f32', MX, MX, MX, 'row_ror:8')
        self.swap_reduce('v_max_f32', MX, T, 16)
        self.swap_reduce('v_max_f32', MX, T, 32)
        a(f'v_cvt_pk_bf16_f32 v{T}, v{MX}, v{MX}')
        a(f'v_lshlrev_b32 v{MX}, 16, v{T}')
        NM = T + 9
        a(f'v_mul_f32 v{NM}, s62, v{MX}')
        a(f'v_sub_f32 v{NM}, 0, v{NM}')
        LA = T + 10
        a(f'v_mov_b32 v{LA}, 0')
        if o['dbg']:
            a('s_lshl_b32 s63, s2, 2'); a('s_add_u32 s63, s63, s28'); a('s_lshl_b32 s63, s63, 12')
            a(f's_add_u32 s63, s63, {WS_DBG + 0x100000}')
            a(f'v_lshlrev_b32 v{T}, 2, v0')
            for p in range(16):
                a(f'buffer_store_dword v{S+p}, v{T}, s[52:55], s63 offen offset:{256*p}')
            a('s_waitcnt vmcnt(0)')
        PA = T + 12
        for p in range(16):
            idx = 16 + p
            R = RB + 24 * (idx % NP)
            self.c(f'V pair {p}')
            e0, e1 = T, T + 1
            a(f'v_lshlrev_b32 v{e0}, 16, v{S+p}')
            a(f'v_and_b32 v{e1}, s61, v{S+p}')
            a(f'v_fma_f32 v{e0}, v{e0}, s62, v{NM}')
            a(f'v_fma_f32 v{e1}, v{e1}, s62, v{NM}')
            a(f'v_exp_f32 v{e0}, v{e0}')
            a(f'v_exp_f32 v{e1}, v{e1}')
            a('s_nop 0')
            a(f'v_cvt_pk_bf16_f32 v{T+2}, v{e0}, v{e0}')
            a(f'v_cvt_pk_bf16_f32 v{T+3}, v{e1}, v{e1}')
            for r in range(4):
                a(f'v_and_b32 v{PA+r}, v{T+2}, v{M+r}')
            for r in range(4):
                a(f'v_and_b32 v{PA+4+r}, v{T+3}, v{M+r}')
            a(f'v_add_f32 v{LA}, v{LA}, v{e0}')
            a(f'v_add_f32 v{LA}, v{LA}, v{e1}')
            if o['dbg'] and False:
                pass
            a(f's_waitcnt vmcnt({outstanding_after(idx)})')
            for g in range(2):
                for i in range(3):
                    r = R + 12 * g + 4 * i
                    a(f'v_mfma_f32_16x16x32_bf16 v[{ACC+4*i}:{ACC+4*i+3}], v[{PA+4*g}:{PA+4*g+3}], v[{r}:{r+3}], v[{ACC+4*i}:{ACC+4*i+3}]')
            for s in issue(idx + NP):
                a(s)
        self.c('wave epilogue')
        self.stamp(3)
        a('s_nop 1')
        self.dpp('v_add_f32', LA, LA, LA, 'row_ror:8')
        self.swap_reduce('v_add_f32', LA, T, 16)
        self.swap_reduce('v_add_f32', LA, T, 32)
        a(f'v_lshrrev_b32 v{T}, 5, v0')
        a(f's_lshl_b32 s63, s28, 1')
        a(f'v_add_u32 v{T}, s63, v{T}')
        a(f'v_mul_u32_u24 v{T}, 768, v{T}')
        a(f'v_and_b32 v{T+1}, 7, v0')
        a(f'v_lshlrev_b32 v{T+1}, 5, v{T+1}')
        a(f'v_and_b32 v{T+2}, 16, v0')
        a(f'v_add3_u32 v{T}, v{T}, v{T+1}, v{T+2}')
        a(f's_lshl_b32 s63, s28, 2')
        a(f'v_mov_b32 v{T+3}, s63')
        a('s_mov_b32 exec_lo, 0x00ff00ff')
        a('s_mov_b32 exec_hi, 0xff00ff00')
        for i in range(3):
            a(f'ds_write_b128 v{T}, v[{ACC+4*i}:{ACC+4*i+3}] offset:{L_OL + 256*i}')
        a('s_mov_b64 exec, 1')
        a(f'ds_write_b32 v{T+3}, v{MX} offset:{L_ML}')
        a(f'ds_write_b32 v{T+3}, v{LA} offset:{L_ML+16}')
        a('s_mov_b64 exec, -1')
        a('s_waitcnt lgkmcnt(0)')
        a('s_branch L_tail')

    def gemv_unit(self, W, XB, ntile, nstep, lastvalid, addr, rowstride, tilebytes, acc):
        a = self.a
        for t in range(nstep):
            for tile in range(ntile):
                av = addr if t < nstep - 1 else addr + 1
                base = t * 32 * rowstride + tile * tilebytes
                r = W + 4 * (tile % 4)
                a(f'ds_read_b64_tr_b16 v[{r}:{r+1}], v{av} offset:{base}')
                a(f'ds_read_b64_tr_b16 v[{r+2}:{r+3}], v{av} offset:{base + 4*rowstride}')
                if tile % 4 == 3 or tile == ntile - 1:
                    a('s_waitcnt lgkmcnt(0)')
                    for tt in range(tile - tile % 4, tile + 1):
                        rr = W + 4 * (tt % 4)
                        a(f'v_mfma_f32_16x16x32_bf16 v[{acc+4*tt}:{acc+4*tt+3}], v[{rr}:{rr+3}], v[{XB+4*t}:{XB+4*t+3}], v[{acc+4*tt}:{acc+4*tt+3}]')

    def aux(self):
        o = self.opt; a = self.a
        ntw = o['ntw']
        self.c('==== aux waves ====')
        a('s_sub_u32 s38, s28, 4')
        self.srd(40, 4, X_BYTES)
        a('v_lshrrev_b32 v1, 5, v0')
        a('v_and_b32 v2, 31, v0')
        a('v_mul_u32_u24 v3, 1280, v1')
        a('v_mul_u32_u24 v4, 40, v2')
        a('v_add_u32 v3, v3, v4')
        a('buffer_load_dwordx4 v[8:11], v3, s[40:43], 0 offen')
        a('buffer_load_dwordx4 v[12:15], v3, s[40:43], 0 offen offset:16')
        a('buffer_load_dwordx2 v[16:17], v3, s[40:43], 0 offen offset:32')
        a('s_cmp_eq_u32 s38, 3')
        a('s_cbranch_scc1 L_aux_ffn_ld')
        self.srd(44, 10, WQ_BYTES)
        a('v_lshrrev_b32 v4, 3, v0')
        a('v_mul_u32_u24 v4, 12288, v4')
        a('v_and_b32 v5, 7, v0')
        a('v_lshlrev_b32 v5, 4, v5')
        a('v_add_u32 v4, v4, v5')
        a('s_mul_i32 s56, s31, 983040')
        a('s_mul_i32 s57, s35, 384')
        a('s_add_u32 s56, s56, s57')
        a('s_lshl_b32 s57, s38, 7')
        a('s_add_u32 s56, s56, s57')
        a('s_mul_i32 s57, s38, 10240')
        a(f's_add_u32 s57, s57, {L_UQ}')
        for i in range(10):
            a('s_mov_b32 m0, s57')
            a('s_add_u32 s57, s57, 1024')
            a(f'buffer_load_dwordx4 v4, s[44:47], s56 offen {ntw} lds')
            a('s_add_u32 s56, s56, 98304')
        a('s_barrier')
        a('s_waitcnt vmcnt(10)')
        a('s_branch L_aux_ln')
        self.label('L_aux_ffn_ld')
        a('s_cmp_ge_u32 s34, 16')
        a('s_cselect_b32 s56, s18, s16')
        a('s_cselect_b32 s57, s19, s17')
        self.srd(44, 56, WG_BYTES)
        for i in range(3):
            a(f'v_add_u32 v5, {64*i}, v0')
            a('v_mul_u32_u24 v6, 2731, v5')
            a('v_lshrrev_b32 v6, 16, v6')
            a('v_mul_u32_u24 v7, 24, v6')
            a('v_sub_u32 v5, v5, v7')
            a('v_mul_u32_u24 v6, 3072, v6')
            a('v_lshlrev_b32 v5, 4, v5')
            a(f'v_add_u32 v{40+i}, v5, v6')
        a('s_and_b32 s56, s34, 15')
        a('s_mul_i32 s56, s56, 122880')
        a('s_mul_i32 s57, s29, 384')
        a('s_add_u32 s56, s56, s57')
        a(f's_mov_b32 s57, {L_UF}')
        for i in range(15):
            a('s_mov_b32 m0, s57')
            a('s_add_u32 s57, s57, 1024')
            a(f'buffer_load_dwordx4 v{40+i%3}, s[44:47], s56 offen {ntw} lds')
            if i % 3 == 2:
                a('s_add_u32 s56, s56, 24576')
        a('s_barrier')
        a('s_waitcnt vmcnt(15)')
        self.label('L_aux_ln')
        self.stamp(1)
        X = 20
        for k in range(10):
            a(f'v_lshlrev_b32 v{X+2*k}, 16, v{8+k}')
            a(f'v_and_b32 v{X+2*k+1}, 0xffff0000, v{8+k}')
        a(f'v_add_f32 v44, v{X}, v{X+1}')
        a(f'v_add_f32 v45, v{X+2}, v{X+3}')
        for k in range(2, 10):
            a(f'v_add_f32 v{44+k%2}, v{44+k%2}, v{X+2*k}')
            a(f'v_add_f32 v{44+k%2}, v{44+k%2}, v{X+2*k+1}')
        a('v_add_f32 v44, v44, v45')

        def red32(v):
            for ctrl in ('quad_perm:[1,0,3,2]', 'quad_perm:[2,3,0,1]', 'row_half_mirror', 'row_mirror'):
                a('s_nop 1')
                self.dpp('v_add_f32', v, v, v, ctrl)
            self.swap_reduce('v_add_f32', v, 47, 16)
        red32(44)
        a(f's_mov_b32 s56, {INV640}')
        a('v_mul_f32 v44, s56, v44')
        a('v_mov_b32 v45, 0')
        a('v_mov_b32 v46, 0')
        for k in range(20):
            a(f'v_sub_f32 v48, v{X+k}, v44')
            a(f'v_fmac_f32 v{45+k%2}, v48, v48')
        a('v_add_f32 v45, v45, v46')
        red32(45)
        a('v_mul_f32 v45, s56, v45')
        a('v_cvt_pk_bf16_f32 v46, v44, v45')
        a('v_lshlrev_b32 v44, 16, v46')
        a('v_and_b32 v45, 0xffff0000, v46')
        a(f'v_add_f32 v45, {EPS_BF}, v45')
        a('v_cvt_pk_bf16_f32 v45, v45, v45')
        a('v_and_b32 v45, 0xffff0000, v45')
        a('v_sqrt_f32 v45, v45')
        a('s_nop 0')
        a('v_cvt_pk_bf16_f32 v45, v45, v45')
        a('v_and_b32 v45, 0xffff0000, v45')
        a('v_rcp_f32 v45, v45')
        for k in range(10):
            a(f'v_sub_f32 v48, v{X+2*k}, v44')
            a(f'v_sub_f32 v49, v{X+2*k+1}, v44')
            a('v_cvt_pk_bf16_f32 v48, v48, v49')
            a('v_and_b32 v49, 0xffff0000, v48')
            a('v_lshlrev_b32 v48, 16, v48')
            a('v_mul_f32 v48, v48, v45')
            a('v_mul_f32 v49, v49, v45')
            a(f'v_cvt_pk_bf16_f32 v{8+k}, v48, v49')
        for k in range(5):
            a(f'ds_write_b64 v3, v[{8+2*k}:{9+2*k}] offset:{L_XN + 8*k}')
        a('v_and_b32 v4, 15, v0')
        a('v_lshrrev_b32 v5, 4, v0')
        a('v_and_b32 v6, 1, v0')
        a('v_mul_u32_u24 v6, 1280, v6')
        a('v_lshlrev_b32 v7, 4, v5')
        a('v_add_u32 v6, v6, v7')
        a('v_lshlrev_b32 v50, 3, v5')
        a('v_lshrrev_b32 v51, 2, v4')
        a('v_add_u32 v50, v50, v51')
        a('v_and_b32 v51, 3, v4')
        a('v_lshlrev_b32 v51, 3, v51')
        a('s_waitcnt lgkmcnt(0)')
        a('s_cmp_eq_u32 s38, 3')
        a('s_cbranch_scc1 L_aux_ffn')

        XB = 8
        a('s_mul_i32 s56, s31, 160')
        a('v_add_u32 v6, s56, v6')
        for t in range(3):
            a(f'ds_read_b128 v[{XB+4*t}:{XB+4*t+3}], v6 offset:{L_XN + 64*t}')
        a('s_mul_i32 s56, s38, 10240')
        a(f's_add_u32 s56, s56, {L_UQ}')
        a('v_lshlrev_b32 v52, 7, v50')
        a('v_add3_u32 v52, v52, v51, s56')
        a('v_cmp_le_u32 vcc, 2, v5')
        a('v_subrev_u32 v53, 2048, v52')
        a('s_nop 0')
        a('v_cndmask_b32 v53, v52, v53, vcc')
        ACC = 24
        for k in range(16):
            a(f'v_mov_b32 v{ACC+k}, 0')
        a('s_waitcnt lgkmcnt(0)')
        for r in range(4):
            a(f'v_cndmask_b32 v{XB+8+r}, v{XB+8+r}, 0, vcc')
        a('s_waitcnt vmcnt(0)')
        self.stamp(2)
        self.gemv_unit(W=56, XB=XB, ntile=4, nstep=3, lastvalid=2, addr=52, rowstride=128, tilebytes=32, acc=ACC)
        a('v_and_b32 v6, 1, v4')
        a('v_mul_u32_u24 v6, 12288, v6')
        a('v_lshrrev_b32 v7, 1, v4')
        a('v_lshl_add_u32 v7, v5, 1, v7')
        a('v_lshlrev_b32 v7, 4, v7')
        a('v_add_u32 v6, v6, v7')
        a('s_mul_i32 s56, s35, 24576')
        a('s_lshl_b32 s57, s38, 12')
        a('s_add_u32 s56, s56, s57')
        a('s_lshl_b32 s57, s31, 9')
        a('s_add_u32 s56, s56, s57')
        a(f's_add_u32 s56, s56, {WS_E1}')
        a('v_and_b32 v7, 2, v4')
        a('v_cmp_eq_u32 vcc, 2, v7')
        a('s_waitcnt lgkmcnt(0)')
        a('s_add_u32 s36, s36, 1')
        a('v_mov_b32 v10, s36')
        a('v_mov_b32 v11, s37')
        a('s_nop 7')
        a('s_mov_b64 s[74:75], exec')
        a('s_mov_b32 exec_lo, 0x000f000f')
        a('s_mov_b32 exec_hi, 0x000f000f')
        for tile in range(4):
            a(f'v_cndmask_b32 v8, v{ACC+4*tile}, v{ACC+4*tile+2}, vcc')
            a(f'v_cndmask_b32 v9, v{ACC+4*tile+1}, v{ACC+4*tile+3}, vcc')
            a(f'buffer_store_dwordx4 v[8:11], v6, s[52:55], s56 offen offset:{128*tile} sc1')
            a('s_nop 1')
        a('s_mov_b64 exec, s[74:75]')
        self.stamp(3)
        a('s_mul_i32 s56, s35, 24576')
        a('s_mul_i32 s57, s32, 12288')
        a('s_add_u32 s56, s56, s57')
        a('s_lshl_b32 s57, s38, 12')
        a('s_add_u32 s56, s56, s57')
        a(f's_add_u32 s56, s56, {WS_E1}')
        a('v_lshlrev_b32 v6, 4, v0')
        a(f's_mov_b32 s70, {o["spin"]}')
        self.label('L_q_poll')
        for i in range(4):
            a(f'buffer_load_dwordx4 v[{24+4*i}:{27+4*i}], v6, s[52:55], s56 offen offset:{1024*i} sc1')
        a('s_waitcnt vmcnt(0)')
        self.poll_check([24, 28, 32, 36], 'L_q_poll')
        a('v_add_f32 v24, v24, v28')
        a('v_add_f32 v25, v25, v29')
        a('v_add_f32 v32, v32, v36')
        a('v_add_f32 v33, v33, v37')
        a('v_add_f32 v24, v24, v32')
        a('v_add_f32 v25, v25, v33')
        self.swap_reduce('v_add_f32', 24, 26, 32)
        self.swap_reduce('v_add_f32', 25, 26, 32)
        a('v_cvt_pk_bf16_f32 v24, v24, v25')
        a('v_and_b32 v6, 31, v0')
        a('v_lshlrev_b32 v6, 2, v6')
        a('s_lshl_b32 s57, s38, 7')
        a('v_add_u32 v6, s57, v6')
        a(f'ds_write_b32 v6, v24 offset:{L_Q}')
        if o['dbg']:
            a('s_lshl_b32 s56, s2, 9'); a(f's_add_u32 s56, s56, {WS_DBG}')
            a('buffer_store_dword v24, v6, s[52:55], s56 offen')
        a('s_waitcnt lgkmcnt(0)')
        self.stamp(4)
        a('s_barrier')
        self.tmark(1)
        self.wblock_dma()
        a('s_waitcnt vmcnt(0)')
        a('s_branch L_tail')

        self.label('L_aux_ffn')
        a('s_and_b32 s56, s34, 15')
        a('s_mul_i32 s56, s56, 80')
        a('v_add_u32 v6, s56, v6')
        for t in range(2):
            a(f'ds_read_b128 v[{XB+4*t}:{XB+4*t+3}], v6 offset:{L_XN + 64*t}')
        a('v_mul_u32_u24 v52, 384, v50')
        a(f'v_add_u32 v52, {L_UF}, v52')
        a('v_add_u32 v52, v52, v51')
        a('v_lshrrev_b32 v53, 2, v4')
        a('v_mul_u32_u24 v53, 384, v53')
        a(f'v_add_u32 v53, {L_UF}, v53')
        a('v_add_u32 v53, v53, v51')
        a('v_cmp_le_u32 vcc, 1, v5')
        FACC = 64
        for k in range(48):
            a(f'v_mov_b32 v{FACC+k}, 0')
        a('s_waitcnt lgkmcnt(0)')
        for r in range(4):
            a(f'v_cndmask_b32 v{XB+4+r}, v{XB+4+r}, 0, vcc')
        a('s_waitcnt vmcnt(0)')
        self.gemv_unit(W=24, XB=XB, ntile=12, nstep=2, lastvalid=1, addr=52, rowstride=384, tilebytes=32, acc=FACC)
        a('v_and_b32 v6, 1, v4')
        a('v_mul_u32_u24 v6, 192, v6')
        a('v_lshlrev_b32 v7, 4, v5')
        a('v_add_u32 v6, v6, v7')
        a('s_mul_i32 s56, s29, 49152')
        a('s_mul_i32 s57, s34, 384')
        a('s_add_u32 s56, s56, s57')
        a(f's_add_u32 s56, s56, {WS_E2}')
        a('s_add_u32 s36, s36, 1')
        a('s_nop 7')
        a('s_mov_b32 exec_lo, 0x00030003')
        a('s_mov_b32 exec_hi, 0x00030003')
        for tile in range(12):
            r = tile // 3
            if tile % 3 == 0 and tile:
                a('s_add_u32 s56, s56, 12288')
            a(f'buffer_store_dwordx4 v[{FACC+4*tile}:{FACC+4*tile+3}], v6, s[52:55], s56 offen offset:{64*(tile%3)} sc1')
        a('s_mov_b64 exec, -1')
        a('s_barrier')
        a('s_waitcnt vmcnt(0)')
        a('v_mov_b32 v8, s36')
        a('v_mov_b32 v9, s37')
        a('s_lshl_b32 s56, s29, 8')
        a('s_lshl_b32 s57, s34, 3')
        a('s_add_u32 s57, s57, s56')
        a(f's_add_u32 s57, s57, {WS_E2F}')
        a(f's_add_u32 s56, s56, {WS_E2F}')
        a('v_mov_b32 v10, 0')
        a('s_mov_b64 exec, 1')
        a('buffer_store_dwordx2 v[8:9], v10, s[52:55], s57 offen sc1')
        a('s_mov_b64 exec, -1')
        a('v_and_b32 v10, 31, v0')
        a('v_lshlrev_b32 v10, 3, v10')
        a(f's_mov_b32 s70, {o["spin"]}')
        self.label('L_f_poll')
        a('buffer_load_dwordx2 v[14:15], v10, s[52:55], s56 offen sc1')
        a('s_waitcnt vmcnt(0)')
        self.poll_check([12], 'L_f_poll')
        a('v_and_b32 v10, 31, v0')
        a('v_min_u32 v11, 23, v10')
        a('v_lshlrev_b32 v11, 4, v11')
        a('v_lshrrev_b32 v12, 5, v0')
        a('v_mul_u32_u24 v12, 6144, v12')
        a('v_add_u32 v11, v11, v12')
        a('s_mul_i32 s56, s29, 49152')
        a('s_mul_i32 s57, s30, 12288')
        a('s_add_u32 s56, s56, s57')
        a(f's_add_u32 s56, s56, {WS_E2}')
        for i in range(16):
            a(f'buffer_load_dwordx4 v[{64+4*i}:{67+4*i}], v11, s[52:55], s56 offen offset:{384*(i%8)} sc1')
            if i == 7:
                a('s_add_u32 s56, s56, 3072')
        a('s_waitcnt vmcnt(0)')
        for i in range(1, 16):
            for r in range(4):
                a(f'v_add_f32 v{64+r}, v{64+r}, v{64+4*i+r}')
        a('v_cvt_pk_bf16_f32 v64, v64, v65')
        a('v_cvt_pk_bf16_f32 v65, v66, v67')
        a('v_mov_b32 v68, v64')
        a('v_mov_b32 v69, v65')
        a('s_nop 1')
        a('v_permlane32_swap_b32 v64, v68')
        a('v_permlane32_swap_b32 v65, v69')
        for p in range(2):
            g, u = 64 + p, 68 + p
            a(f'v_lshlrev_b32 v72, 16, v{g}')
            a(f'v_and_b32 v73, 0xffff0000, v{g}')
            for t in (72, 73):
                a(f'v_mul_f32 v74, {0xBFB8AA3B}, v{t}')
                a('v_exp_f32 v74, v74')
                a('s_nop 0')
                a('v_add_f32 v74, 1.0, v74')
                a('v_rcp_f32 v74, v74')
                a('s_nop 0')
                a(f'v_mul_f32 v{t}, v{t}, v74')
            a('v_cvt_pk_bf16_f32 v72, v72, v73')
            a('v_and_b32 v73, 0xffff0000, v72')
            a('v_lshlrev_b32 v72, 16, v72')
            a(f'v_and_b32 v75, 0xffff0000, v{u}')
            a(f'v_lshlrev_b32 v74, 16, v{u}')
            a('v_mul_f32 v72, v72, v74')
            a('v_mul_f32 v73, v73, v75')
            a(f'v_cvt_pk_bf16_f32 v{76+p}, v72, v73')
        a('v_cmp_le_u32 vcc, 12, v10')
        a('v_subrev_u32 v11, 12, v10')
        a('s_nop 0')
        a('v_cndmask_b32 v11, v10, v11, vcc')
        a('v_lshlrev_b32 v11, 3, v11')
        a('v_add_u32 v12, 128, v11')
        a('v_cndmask_b32 v11, v11, v12, vcc')
        a('v_subrev_u32 v12, 24, v10')
        a('v_lshrrev_b32 v13, 2, v12')
        a('v_lshlrev_b32 v13, 7, v13')
        a('v_and_b32 v12, 3, v12')
        a('v_lshl_add_u32 v12, v12, 3, v13')
        a('v_add_u32 v12, 96, v12')
        a('v_cmp_le_u32 vcc, 24, v10')
        a('s_nop 1')
        a('v_cndmask_b32 v11, v11, v12, vcc')
        a('v_cndmask_b32 v76, v76, 0, vcc')
        a('v_cndmask_b32 v77, v77, 0, vcc')
        a('s_mov_b32 exec_hi, 0')
        a(f'ds_write_b64 v11, v[76:77] offset:{L_HV}')
        a('s_mov_b64 exec, -1')
        a('s_waitcnt lgkmcnt(0)')
        self.stamp(4)
        a('s_branch L_tail')

    def wblock_dma(self):
        o = self.opt; a = self.a
        ntw = o['ntw']
        for i in range(5):
            a(f'v_add_u32 v5, {64*i}, v0')
            a('v_mul_u32_u24 v6, 6554, v5')
            a('v_lshrrev_b32 v6, 16, v6')
            a('v_mul_u32_u24 v7, 10, v6')
            a('v_sub_u32 v5, v5, v7')
            a('v_mul_u32_u24 v6, 1280, v6')
            a('v_lshlrev_b32 v5, 4, v5')
            a(f'v_add_u32 v{40+i}, v5, v6')
        self.srd(40, 12, WO_BYTES)
        self.srd(44, 20, WD_BYTES)
        a('s_mul_i32 s56, s35, 245760')
        a('s_mul_i32 s57, s31, 160')
        a('s_add_u32 s56, s56, s57')
        a('s_mul_i32 s57, s38, 81920')
        a('s_add_u32 s56, s56, s57')
        a('s_mul_i32 s57, s38, 10240')
        a(f's_add_u32 s57, s57, {L_WB}')
        for i in range(10):
            a('s_mov_b32 m0, s57')
            a('s_add_u32 s57, s57, 1024')
            a(f'buffer_load_dwordx4 v{40+i%5}, s[40:43], s56 offen {ntw} lds')
            if i == 4:
                a('s_add_u32 s56, s56, 40960')
        a('s_mul_i32 s56, s35, 61440')
        a('s_mul_i32 s57, s31, 160')
        a('s_add_u32 s56, s56, s57')
        lab0, lab1, labd = self.newlab('L_wd'), self.newlab('L_wd'), self.newlab('L_wd')
        a('s_cmp_eq_u32 s38, 0'); a(f's_cbranch_scc1 {lab0}')
        a('s_cmp_eq_u32 s38, 1'); a(f's_cbranch_scc1 {lab1}')

        def dma(i):
            a(f's_mov_b32 m0, {L_WD + 1024*i}')
            a(f's_add_u32 s57, s56, {40960*(i//5)}')
            a(f'buffer_load_dwordx4 v{40+i%5}, s[44:47], s57 offen {ntw} lds')
        dma(6); dma(7); a(f's_branch {labd}')
        self.label(lab0); dma(0); dma(1); dma(2); a(f's_branch {labd}')
        self.label(lab1); dma(3); dma(4); dma(5)
        self.label(labd)

    def tail(self):
        o = self.opt; a = self.a
        self.c('==== tail (all waves) ====')
        a('s_barrier')
        self.tmark(2)
        self.stamp(5)
        lab = self.newlab('L_tg')
        a('s_cmp_ge_u32 s28, 4'); a(f's_cbranch_scc1 {lab}')
        a('s_add_u32 s36, s36, 1')
        self.label(lab)
        a('s_cmp_ge_u32 s28, 2')
        a('s_cbranch_scc1 L_gather')
        a('s_lshl_b32 s56, s28, 6')
        a('v_add_u32 v1, s56, v0')
        a('v_min_u32 v2, 95, v1')
        a('v_lshlrev_b32 v2, 3, v2')
        for cidx in range(8):
            a(f'ds_read_b64 v[{8+2*cidx}:{9+2*cidx}], v2 offset:{L_OL + 768*cidx}')
        a('v_mov_b32 v3, 0')
        a(f'ds_read_b128 v[24:27], v3 offset:{L_ML}')
        a(f'ds_read_b128 v[28:31], v3 offset:{L_ML+16}')
        a(f's_mov_b32 s62, {LOG2E}')
        a('s_waitcnt lgkmcnt(0)')
        a('v_max3_f32 v32, v24, v25, v26')
        a('v_max_f32 v32, v32, v27')
        for w in range(4):
            a(f'v_sub_f32 v{24+w}, v{24+w}, v32')
            a(f'v_mul_f32 v{24+w}, s62, v{24+w}')
            a(f'v_exp_f32 v{24+w}, v{24+w}')
        a('s_nop 0')
        a('v_mul_f32 v33, v24, v28')
        for w in range(1, 4):
            a(f'v_fmac_f32 v33, v{24+w}, v{28+w}')
        for w in range(4):
            a(f'v_add_f32 v{8+4*w}, v{8+4*w}, v{10+4*w}')
            a(f'v_add_f32 v{9+4*w}, v{9+4*w}, v{11+4*w}')
        a('v_mul_f32 v36, v24, v8')
        a('v_mul_f32 v37, v24, v9')
        for w in range(1, 4):
            a(f'v_fmac_f32 v36, v{24+w}, v{8+4*w}')
            a(f'v_fmac_f32 v37, v{24+w}, v{9+4*w}')
        a('v_cmp_eq_u32 vcc, 96, v1')
        a('v_mov_b32 v38, s36')
        a('v_mov_b32 v39, s37')
        a('v_cndmask_b32 v36, v36, v32, vcc')
        a('v_cndmask_b32 v37, v37, v33, vcc')
        a('v_lshlrev_b32 v2, 4, v1')
        a('s_lshl_b32 s56, s35, 3')
        a('s_add_u32 s56, s56, s31')
        a('s_lshl_b32 s56, s56, 11')
        a(f's_add_u32 s56, s56, {WS_E3}')
        a('v_cmp_ge_u32 vcc, 96, v1')
        a('s_and_saveexec_b64 s[74:75], vcc')
        a('buffer_store_dwordx4 v[36:39], v2, s[52:55], s56 offen sc1')
        a('s_mov_b64 exec, s[74:75]')
        self.stamp(6)
        a('s_branch L_bar4')
        self.label('L_gather')
        a('s_sub_u32 s56, s28, 2')
        a('s_cmp_ge_u32 s56, 3')
        a('s_cselect_b32 s57, 1, 0')
        a('s_mul_i32 s58, s57, 3')
        a('s_sub_u32 s58, s56, s58')
        a('v_lshrrev_b32 v1, 5, v0')
        a('v_lshlrev_b32 v1, 11, v1')
        a('v_and_b32 v2, 31, v0')
        a('s_lshl_b32 s59, s58, 5')
        a('v_add_u32 v3, s59, v2')
        a('v_lshl_add_u32 v3, v3, 4, v1')
        a('v_add_u32 v4, 1536, v1')
        a('s_lshl_b32 s59, s35, 3')
        a('s_lshl_b32 s60, s57, 2')
        a('s_add_u32 s59, s59, s60')
        a('s_lshl_b32 s59, s59, 11')
        a(f's_add_u32 s59, s59, {WS_E3}')
        a('s_add_u32 s60, s59, 4096')
        a(f's_mov_b32 s70, {o["spin"]}')
        self.label('L_o_poll')
        a('buffer_load_dwordx4 v[8:11], v3, s[52:55], s59 offen sc1')
        a('buffer_load_dwordx4 v[12:15], v3, s[52:55], s60 offen sc1')
        a('buffer_load_dwordx4 v[16:19], v4, s[52:55], s59 offen sc1')
        a('buffer_load_dwordx4 v[20:23], v4, s[52:55], s60 offen sc1')
        a('s_waitcnt vmcnt(0)')
        self.poll_check([8, 12, 16, 20], 'L_o_poll')
        self.stamp(6)
        a(f's_mov_b32 s62, {LOG2E}')
        a('v_max_f32 v24, v16, v20')
        self.swap_reduce('v_max_f32', 24, 25, 32)
        a('v_sub_f32 v16, v16, v24')
        a('v_sub_f32 v20, v20, v24')
        a('v_mul_f32 v16, s62, v16')
        a('v_mul_f32 v20, s62, v20')
        a('v_exp_f32 v16, v16')
        a('v_exp_f32 v20, v20')
        a('s_nop 0')
        a('v_mul_f32 v26, v16, v17')
        a('v_fmac_f32 v26, v20, v21')
        a('v_mul_f32 v27, v16, v8')
        a('v_mul_f32 v28, v16, v9')
        a('v_fmac_f32 v27, v20, v12')
        a('v_fmac_f32 v28, v20, v13')
        self.swap_reduce('v_add_f32', 26, 25, 32)
        self.swap_reduce('v_add_f32', 27, 25, 32)
        self.swap_reduce('v_add_f32', 28, 25, 32)
        a('v_rcp_f32 v26, v26')
        a('s_nop 0')
        a('v_mul_f32 v27, v27, v26')
        a('v_mul_f32 v28, v28, v26')
        a('v_cvt_pk_bf16_f32 v27, v27, v28')
        a('s_mul_i32 s59, s57, 384')
        a('s_lshl_b32 s60, s58, 7')
        a('s_add_u32 s59, s59, s60')
        a('v_lshl_add_u32 v2, v2, 2, s59')
        a('s_mov_b32 exec_hi, 0')
        a(f'ds_write_b32 v2, v27 offset:{L_ON}')
        a('s_mov_b64 exec, -1')
        if o['dbg']:
            a('s_lshl_b32 s60, s2, 10'); a(f's_add_u32 s60, s60, {WS_DBG + 0x40000}')
            a('buffer_store_dword v27, v2, s[52:55], s60 offen')
        a('s_waitcnt lgkmcnt(0)')
        self.label('L_bar4')
        a('s_barrier')
        self.tmark(3)
        self.stamp(7)
        a('s_cmp_ge_u32 s28, 5')
        a('s_cbranch_scc1 L_reduce')
        a('v_and_b32 v4, 15, v0')
        a('v_lshrrev_b32 v5, 4, v0')
        a('v_and_b32 v6, 1, v0')
        a('v_lshlrev_b32 v7, 4, v5')
        a('v_mul_u32_u24 v8, 384, v6')
        a('v_add_u32 v8, v8, v7')
        a('v_lshlrev_b32 v9, 7, v6')
        a('v_add_u32 v9, v9, v7')
        for t in range(6):
            a(f'ds_read_b128 v[{16+4*t}:{19+4*t}], v8 offset:{L_ON + 64*t}')
        for t in range(2):
            a(f'ds_read_b128 v[{40+4*t}:{43+4*t}], v9 offset:{L_HV + 64*t}')
        a('v_lshlrev_b32 v10, 3, v5')
        a('v_lshrrev_b32 v11, 2, v4')
        a('v_add_u32 v10, v10, v11')
        a('v_mul_u32_u24 v10, 160, v10')
        a('v_and_b32 v11, 3, v4')
        a('v_lshlrev_b32 v11, 3, v11')
        a('s_lshl_b32 s56, s28, 5')
        a('v_add3_u32 v10, v10, v11, s56')
        a(f'v_add_u32 v10, {L_WB}, v10')
        a('v_cmp_le_u32 vcc, 2, v5')
        a('v_subrev_u32 v11, 2560, v10')
        a('s_nop 0')
        a('v_cndmask_b32 v11, v10, v11, vcc')
        for t in range(6):
            a(f'ds_read_b64_tr_b16 v[{48+4*t}:{49+4*t}], v10 offset:{5120*t}')
            a(f'ds_read_b64_tr_b16 v[{50+4*t}:{51+4*t}], v10 offset:{5120*t + 640}')
        a(f'ds_read_b64_tr_b16 v[72:73], v10 offset:{L_WD - L_WB}')
        a(f'ds_read_b64_tr_b16 v[74:75], v10 offset:{L_WD - L_WB + 640}')
        a(f'ds_read_b64_tr_b16 v[76:77], v11 offset:{L_WD - L_WB + 5120}')
        a(f'ds_read_b64_tr_b16 v[78:79], v11 offset:{L_WD - L_WB + 5120 + 640}')
        for k in range(8):
            a(f'v_mov_b32 v{80+k}, 0')
        a('s_waitcnt lgkmcnt(0)')
        for t in range(6):
            a(f'v_mfma_f32_16x16x32_bf16 v[80:83], v[{16+4*t}:{19+4*t}], v[{48+4*t}:{51+4*t}], v[80:83]')
        for t in range(2):
            a(f'v_mfma_f32_16x16x32_bf16 v[84:87], v[{40+4*t}:{43+4*t}], v[{72+4*t}:{75+4*t}], v[84:87]')
        a('v_and_b32 v6, 1, v5')
        a('v_mul_u32_u24 v6, 40960, v6')
        a('v_lshl_add_u32 v6, v4, 4, v6')
        a('s_mul_i32 s56, s31, 10')
        a('s_add_u32 s56, s56, s28')
        a('s_lshl_b32 s56, s56, 13')
        a('s_lshl_b32 s57, s35, 8')
        a('s_add_u32 s56, s56, s57')
        a(f's_add_u32 s56, s56, {WS_E4}')
        a('v_and_b32 v7, 16, v0')
        a('v_cmp_eq_u32 vcc, 16, v7')
        a('v_mov_b32 v90, s36')
        a('v_mov_b32 v91, s37')
        a('s_nop 7')
        a('v_cndmask_b32 v88, v80, v81, vcc')
        a('v_cndmask_b32 v89, v84, v85, vcc')
        a('s_mov_b32 exec_hi, 0')
        a('buffer_store_dwordx4 v[88:91], v6, s[52:55], s56 offen sc1')
        self.stamp(8)
        a('s_branch L_end')
        self.label('L_reduce')
        a('s_cmp_lg_u32 s28, 5')
        a('s_cbranch_scc1 L_end')
        a('s_cmp_ge_u32 s35, 10')
        a('s_cbranch_scc1 L_end')
        a('s_cmp_ge_u32 s35, 5')
        a('s_cselect_b32 s57, 1, 0')
        a('s_mul_i32 s58, s57, 5')
        a('s_sub_u32 s58, s35, s58')
        self.srd(40, 4, X_BYTES)
        self.srd(44, 22, X_BYTES)
        a('s_mul_i32 s59, s57, 1280')
        a('s_mul_i32 s60, s31, 160')
        a('s_add_u32 s59, s59, s60')
        a('s_lshl_b32 s60, s58, 5')
        a('s_add_u32 s59, s59, s60')
        a('v_and_b32 v4, 15, v0')
        a('v_lshlrev_b32 v4, 1, v4')
        a('buffer_load_ushort v5, v4, s[40:43], s59 offen')
        a('s_lshl_b32 s60, s31, 1')
        a('s_add_u32 s60, s60, s57')
        a('s_mul_i32 s60, s60, 5')
        a('s_add_u32 s60, s60, s58')
        a('s_lshl_b32 s60, s60, 13')
        a(f's_add_u32 s60, s60, {WS_E4}')
        a('v_lshlrev_b32 v6, 4, v0')
        a(f's_mov_b32 s70, {o["spin"]}')
        self.label('L_r_poll')
        for i in range(8):
            if i == 4:
                a('s_add_u32 s61, s60, 4096')
            so = 's60' if i < 4 else 's61'
            a(f'buffer_load_dwordx4 v[{8+4*i}:{11+4*i}], v6, s[52:55], {so} offen offset:{1024*(i%4)} sc1')
        a('s_waitcnt vmcnt(0)')
        self.poll_check([8 + 4 * i for i in range(8)], 'L_r_poll')
        for i in range(1, 8):
            a(f'v_add_f32 v8, v8, v{8+4*i}')
            a(f'v_add_f32 v9, v9, v{9+4*i}')
        self.swap_reduce('v_add_f32', 8, 10, 16)
        self.swap_reduce('v_add_f32', 9, 10, 16)
        self.swap_reduce('v_add_f32', 8, 10, 32)
        self.swap_reduce('v_add_f32', 9, 10, 32)
        a('v_cvt_pk_bf16_f32 v8, v8, v9')
        a('v_lshlrev_b32 v5, 16, v5')
        a('v_lshlrev_b32 v9, 16, v8')
        a('v_add_f32 v9, v5, v9')
        a('v_cvt_pk_bf16_f32 v9, v9, v9')
        a('v_lshlrev_b32 v9, 16, v9')
        a('v_and_b32 v8, 0xffff0000, v8')
        a('v_add_f32 v9, v9, v8')
        a('v_cvt_pk_bf16_f32 v9, v9, v9')
        a('s_mov_b64 exec, 0xffff')
        a('buffer_store_short v9, v4, s[44:47], s59 offen')
        a('s_cmp_lg_u32 s35, 0'); a('s_cbranch_scc1 L_end')
        a('s_cmp_lg_u32 s31, 0'); a('s_cbranch_scc1 L_end')
        a('v_mov_b32 v8, s36')
        a('v_mov_b32 v9, s37')
        a('v_mov_b32 v10, 0')
        a('s_mov_b64 exec, 1')
        a(f'buffer_store_dwordx2 v[8:9], v10, s[52:55], 0 offen offset:{WS_EPOCH} sc1')
        if o['dbgtime']:
            self.tmark(4)
            for i in range(1, 5):
                a(f's_sub_u32 s56, s{76+2*i}, s76')
                a(f'v_mov_b32 v{11+i}, s56')
            a('global_store_dwordx4 v10, v[12:15], s[24:25]')
        self.stamp(9)


if __name__ == '__main__':
    opts = {}
    for arg in sys.argv[2:]:
        k, v = arg.split('=')
        try:
            v = eval(v)
        except Exception:
            pass
        opts[k] = v
    src = Gen(**opts).build()
    open(sys.argv[1], 'w').write(src)
    print('wrote', sys.argv[1], len(src), 'bytes')
```

```python
import sys

NAME = 'parallel_sum__mha_block_cached__swiglu_ffn__decode_kernel'

D = 640; H = 32; SK = 4096; DH = 192; F = 1536
K_BYTES = 2 * H * SK * DH * 2
WQ_BYTES = D * H * DH * 2
WO_BYTES = H * DH * D * 2
WG_BYTES = D * F * 2
WD_BYTES = F * D * 2
X_BYTES = 2 * D * 2

WS_EPOCH = 0
WS_E1 = 0x10000
WS_F1 = 0xD8000
WS_E2F = 0xD0000
WS_E2 = 0xE0000
WS_E3 = 0x140000
WS_E4 = 0x1C0000
WS_USED = 0x260000
WS_DBG = 0x300000
WS_SRD_BYTES = 0x800000

L_XN = 0
L_Q = 2560
L_HV = 2944
L_ON = 3200
L_ML = 3968
L_FLAG = 4032
L_OL = 4096
L_UQ = 10240
L_UF = 40960
L_WB = 56320
L_WD = 87040
LDS_BYTES = 95232

LOG2E = 0x3FB8AA3B
SCALE = 0x3D93CD3A
INV640 = 0x3ACCCCCD
EPS_BF = 0x37280000


class Gen:
    def __init__(self, **opt):
        self.L = []
        self.opt = dict(NP=4, WL=5, gran=1, ntk='nt', ntv='nt', ntw='nt', dbg=False, spin=1 << 16, stamps=False, dbgtime=False, noaux=False, sent=True, psleep=4, ffn_late=True, skipffn=False, skipw=False, smem=True, fsleep=16)
        self.opt.update(opt)
        self.lab = 0

    def a(self, s):
        self.L.append('  ' + s)

    def label(self, s):
        self.L.append(s + ':')

    def newlab(self, p='L'):
        self.lab += 1
        return f'{p}_{self.lab}'

    def c(self, s):
        self.L.append('  ; ' + s)

    def srd(self, r, base, nbytes):
        self.a(f's_mov_b32 s{r}, s{base}')
        self.a(f's_and_b32 s{r+1}, s{base+1}, 0xffff')
        self.a(f's_mov_b32 s{r+2}, {nbytes}')
        self.a(f's_mov_b32 s{r+3}, 0x20000')

    def dpp(self, op, dst, src0, src1, ctrl):
        self.a(f'{op}_dpp v{dst}, v{src0}, v{src1} {ctrl} row_mask:0xf bank_mask:0xf')

    def swap_reduce(self, op, v, t, which):
        self.a(f'v_mov_b32 v{t}, v{v}')
        self.a('s_nop 1')
        self.a(f'v_permlane{which}_swap_b32 v{v}, v{t}')
        self.a(f'{op} v{v}, v{v}, v{t}')

    def stamp(self, idx):
        if not self.opt['stamps']:
            return
        self.a('s_memrealtime s[94:95]')
        self.a('s_waitcnt lgkmcnt(0)')
        self.a(f'v_writelane_b32 v249, s94, {idx}')

    def stamp_dump(self):
        if not self.opt['stamps']:
            return
        a = self.a
        a('s_mov_b64 exec, 0xffff')
        a('s_lshl_b32 s92, s2, 3')
        a('s_add_u32 s92, s92, s28')
        a('s_lshl_b32 s92, s92, 6')
        a(f's_add_u32 s92, s92, {WS_DBG}')
        a('v_lshlrev_b32 v251, 2, v0')
        a(f'buffer_store_dword v249, v251, s[52:55], s92 offen')

    def tmark(self, i):
        if self.opt['dbgtime']:
            self.a(f's_memrealtime s[{84+2*i}:{85+2*i}]')
            self.a('s_waitcnt lgkmcnt(0)')

    def smem_poll(self, base, ntags, sleep):
        a = self.a
        again, done = self.newlab('L_sp'), self.newlab('L_sd')
        miss = self.newlab('L_sm')
        self.label(again)
        a(f's_load_dwordx16 s[64:79], s[{base}:{base+1}], 0 glc')
        a('s_waitcnt lgkmcnt(0)')
        for t in range(ntags):
            a(f's_cmp_eq_u64 s[{64+2*t}:{65+2*t}], s[36:37]')
            a(f's_cbranch_scc0 {miss}')
        a(f's_branch {done}')
        self.label(miss)
        a('s_sub_u32 s80, s80, 1')
        a('s_cmp_eq_u32 s80, 0')
        a(f's_cbranch_scc1 {done}')
        a(f's_sleep {sleep}')
        a(f's_branch {again}')
        self.label(done)

    def poll_check(self, regs, again, cnt='s80', sleep=1):
        first = True
        for r in regs:
            self.a(f'v_cmp_ne_u64 vcc, s[36:37], v[{r+2}:{r+3}]')
            if first:
                self.a('s_mov_b64 s[82:83], vcc')
                first = False
            else:
                self.a('s_or_b64 s[82:83], s[82:83], vcc')
        done = self.newlab('L_pd')
        self.a('s_cmp_eq_u64 s[82:83], 0')
        self.a(f's_cbranch_scc1 {done}')
        self.a(f's_sub_u32 {cnt}, {cnt}, 1')
        self.a(f's_cmp_eq_u32 {cnt}, 0')
        self.a(f's_cbranch_scc1 {done}')
        self.a(f's_sleep {sleep}')
        self.a(f's_branch {again}')
        self.label(done)

    def build(self):
        o = self.opt
        NP = o['NP']
        a = self.a
        head = [f'; fused LN + q-proj + split-KV attention + out-proj + SwiGLU FFN (decode), one launch',
                f'; @launch grid=(256,1,1) block=(512,1,1) lds={LDS_BYTES}',
                '.amdgcn_target "amdgcn-amd-amdhsa--gfx950"', '.text', f'.globl {NAME}', '.p2align 8',
                f'.type {NAME},@function', f'{NAME}:']
        a('s_cmp_ge_u32 s2, 256')
        a('s_cbranch_scc1 L_exit')
        if o['stamps']:
            a('v_mov_b32 v249, 0')
        a('s_load_dwordx16 s[4:19], s[0:1], 0')
        a('s_load_dwordx8 s[20:27], s[0:1], 64')
        a('v_lshrrev_b32 v1, 6, v0')
        a('v_and_b32 v0, 63, v0')
        a('s_and_b32 s29, s2, 7')
        a('v_readfirstlane_b32 s28, v1')
        a('s_lshr_b32 s34, s2, 3')
        a('s_lshr_b32 s30, s34, 3')
        a('s_and_b32 s31, s34, 7')
        a('s_lshl_b32 s35, s29, 2')
        a('s_add_u32 s35, s35, s30')
        a('s_lshr_b32 s32, s31, 2')
        a('s_and_b32 s33, s31, 3')
        a('s_waitcnt lgkmcnt(0)')
        a(f's_load_dwordx2 s[36:37], s[26:27], {WS_EPOCH}')
        self.srd(52, 26, WS_SRD_BYTES)
        self.stamp(0)
        self.tmark(0)
        a('s_cmp_ge_u32 s28, 4')
        a('s_cbranch_scc1 L_aux')
        self.stream()
        self.label('L_aux')
        self.aux()
        self.label('L_tail')
        self.tail()
        self.label('L_end')
        self.stamp_dump()
        self.label('L_exit')
        a('s_endpgm')
        nv = 256
        foot = ['.section .rodata,"a"', '.p2align 6', f'.amdhsa_kernel {NAME}',
                f'  .amdhsa_next_free_vgpr {nv}', '  .amdhsa_next_free_sgpr 96', f'  .amdhsa_accum_offset {nv}',
                '  .amdhsa_group_segment_fixed_size 0', '  .amdhsa_kernarg_size 96',
                '  .amdhsa_user_sgpr_count 2', '  .amdhsa_user_sgpr_kernarg_segment_ptr 1',
                '  .amdhsa_system_sgpr_workgroup_id_x 1', '  .amdhsa_float_denorm_mode_32 3',
                '.end_amdhsa_kernel']
        return '\n'.join(head + self.L + foot) + '\n'

    def stream(self):
        o = self.opt; a = self.a
        NP = o['NP']
        VOFF = 1
        M = 2
        Q = 8
        ACC = 20
        S = 32
        T = 48
        RB = 72
        assert RB + 24 * NP <= 250
        self.c('==== stream waves ====')
        self.srd(40, 6, K_BYTES)
        self.srd(44, 8, K_BYTES)
        a('s_lshl_b32 s56, s32, 5')
        a('s_add_u32 s56, s56, s35')
        a('s_lshl_b32 s56, s56, 12')
        a('s_lshl_b32 s57, s33, 10')
        a('s_add_u32 s56, s56, s57')
        a('s_lshl_b32 s57, s28, 8')
        a('s_add_u32 s56, s56, s57')
        a('s_mul_i32 s58, s56, 384')
        a(f'v_lshrrev_b32 v{T}, 3, v0')
        a(f'v_mul_u32_u24 v{T}, 384, v{T}')
        a(f'v_and_b32 v{T+1}, 7, v0')
        a(f'v_lshlrev_b32 v{T+2}, 4, v{T+1}')
        a(f'v_add_u32 v{VOFF}, v{T}, v{T+2}')
        a(f'v_and_b32 v{T+2}, 1, v0')
        a(f'v_mov_b32 v{T+3}, 0xffff')
        a(f'v_mov_b32 v{T+4}, 0xffff0000')
        a(f'v_cmp_eq_u32 vcc, 1, v{T+2}')
        a(f'v_lshrrev_b32 v{T+1}, 1, v{T+1}')
        a('s_nop 0')
        a(f'v_cndmask_b32 v{T+3}, v{T+3}, v{T+4}, vcc')
        for r in range(4):
            a(f'v_cmp_eq_u32 vcc, {r}, v{T+1}')
            a('s_nop 1')
            a(f'v_cndmask_b32 v{M+r}, 0, v{T+3}, vcc')
        for i in range(12):
            a(f'v_mov_b32 v{ACC+i}, 0')
        a('s_mov_b32 s59, s58')
        a('s_barrier')

        seq = [('K', p) for p in range(16)] + [('V', p) for p in range(16)]

        def issue(idx):
            if idx >= len(seq):
                return []
            kind, p = seq[idx]
            srd = 40 if kind == 'K' else 44
            nt = o['ntk'] if kind == 'K' else o['ntv']
            R = RB + 24 * (idx % NP)
            out = []
            if kind == 'V' and p == 0:
                out.append('s_mov_b32 s59, s58')
            for g in range(2):
                if o['WL'] and o['gran'] == 3 and not (idx * 6 + 3 * g + 3 <= o['WL']):
                    out.append(f's_waitcnt vmcnt({o["WL"] - 3})')
                for i in range(3):
                    if o['WL'] and o['gran'] == 1 and not (idx * 6 + 3 * g + i + 1 <= o['WL']):
                        out.append(f's_waitcnt vmcnt({o["WL"] - 1})')
                    r = R + 12 * g + 4 * i
                    out.append(f'buffer_load_dwordx4 v[{r}:{r+3}], v{VOFF}, s[{srd}:{srd+3}], s59 offen offset:{3072*g+128*i} {nt}')
            out.append('s_add_u32 s59, s59, 6144')
            return out

        for idx in range(NP):
            for s in issue(idx):
                a(s)
        self.stamp(1)
        a('s_barrier')
        self.stamp(2)
        a(f'v_and_b32 v{T}, 7, v0')
        a(f'v_lshlrev_b32 v{T}, 4, v{T}')
        for i in range(3):
            a(f'ds_read_b128 v[{Q+4*i}:{Q+4*i+3}], v{T} offset:{L_Q + 128*i}')
        a(f'v_mov_b32 v{T+8}, 0xff800000')
        MX = T + 8
        a(f's_mov_b32 s60, {SCALE}')
        a(f's_mov_b32 s61, 0xffff0000')
        a(f's_mov_b32 s62, {LOG2E}')
        a('s_waitcnt lgkmcnt(0)')

        def outstanding_after(idx):
            last = min(idx + NP - 1, len(seq) - 1)
            return (last - idx) * 6

        for p in range(16):
            idx = p
            R = RB + 24 * (idx % NP)
            self.c(f'K pair {p}')
            a(f's_waitcnt vmcnt({outstanding_after(idx)})')
            A, B = T, T + 1
            a(f'v_mov_b32 v{A}, 0')
            a(f'v_mov_b32 v{B}, 0')
            for g, acc in ((0, A), (1, B)):
                for i in range(3):
                    for r in range(4):
                        a(f'v_dot2c_f32_bf16 v{acc}, v{R+12*g+4*i+r}, v{Q+4*i+r}')
            nxt = issue(idx + NP)
            fill = list(nxt)

            def f(n=1):
                for _ in range(n):
                    a(fill.pop(0) if fill else 's_nop 0')
            q1 = 'quad_perm:[1,0,3,2]'; q2 = 'quad_perm:[2,3,0,1]'; hm = 'row_half_mirror'
            self.dpp('v_add_f32', A, A, A, q1)
            f(2)
            self.dpp('v_add_f32', B, B, B, q1)
            self.dpp('v_add_f32', A, A, A, q2)
            f(1)
            self.dpp('v_add_f32', B, B, B, q2)
            self.dpp('v_add_f32', A, A, A, hm)
            f(1)
            self.dpp('v_add_f32', B, B, B, hm)
            while fill:
                f(1)
            a(f'v_cvt_pk_bf16_f32 v{T+2}, v{A}, v{B}')
            a(f'v_lshlrev_b32 v{T+3}, 16, v{T+2}')
            a(f'v_and_b32 v{T+4}, s61, v{T+2}')
            a(f'v_mul_f32 v{T+3}, s60, v{T+3}')
            a(f'v_mul_f32 v{T+4}, s60, v{T+4}')
            a(f'v_max3_f32 v{MX}, v{MX}, v{T+3}, v{T+4}')
            a(f'v_cvt_pk_bf16_f32 v{S+p}, v{T+3}, v{T+4}')
        self.c('wave max')
        a('s_nop 1')
        self.dpp('v_max_f32', MX, MX, MX, 'row_ror:8')
        self.swap_reduce('v_max_f32', MX, T, 16)
        self.swap_reduce('v_max_f32', MX, T, 32)
        a(f'v_cvt_pk_bf16_f32 v{T}, v{MX}, v{MX}')
        a(f'v_lshlrev_b32 v{MX}, 16, v{T}')
        NM = T + 9
        a(f'v_mul_f32 v{NM}, s62, v{MX}')
        a(f'v_sub_f32 v{NM}, 0, v{NM}')
        LA = T + 10
        a(f'v_mov_b32 v{LA}, 0')
        if o['dbg']:
            a('s_lshl_b32 s63, s2, 2'); a('s_add_u32 s63, s63, s28'); a('s_lshl_b32 s63, s63, 12')
            a(f's_add_u32 s63, s63, {WS_DBG + 0x100000}')
            a(f'v_lshlrev_b32 v{T}, 2, v0')
            for p in range(16):
                a(f'buffer_store_dword v{S+p}, v{T}, s[52:55], s63 offen offset:{256*p}')
            a('s_waitcnt vmcnt(0)')
        PA = T + 12
        for p in range(16):
            idx = 16 + p
            R = RB + 24 * (idx % NP)
            self.c(f'V pair {p}')
            e0, e1 = T, T + 1
            a(f'v_lshlrev_b32 v{e0}, 16, v{S+p}')
            a(f'v_and_b32 v{e1}, s61, v{S+p}')
            a(f'v_fma_f32 v{e0}, v{e0}, s62, v{NM}')
            a(f'v_fma_f32 v{e1}, v{e1}, s62, v{NM}')
            a(f'v_exp_f32 v{e0}, v{e0}')
            a(f'v_exp_f32 v{e1}, v{e1}')
            a('s_nop 0')
            a(f'v_cvt_pk_bf16_f32 v{T+2}, v{e0}, v{e0}')
            a(f'v_cvt_pk_bf16_f32 v{T+3}, v{e1}, v{e1}')
            for r in range(4):
                a(f'v_and_b32 v{PA+r}, v{T+2}, v{M+r}')
            for r in range(4):
                a(f'v_and_b32 v{PA+4+r}, v{T+3}, v{M+r}')
            a(f'v_add_f32 v{LA}, v{LA}, v{e0}')
            a(f'v_add_f32 v{LA}, v{LA}, v{e1}')
            if o['dbg'] and False:
                pass
            a(f's_waitcnt vmcnt({outstanding_after(idx)})')
            for g in range(2):
                for i in range(3):
                    r = R + 12 * g + 4 * i
                    a(f'v_mfma_f32_16x16x32_bf16 v[{ACC+4*i}:{ACC+4*i+3}], v[{PA+4*g}:{PA+4*g+3}], v[{r}:{r+3}], v[{ACC+4*i}:{ACC+4*i+3}]')
            for s in issue(idx + NP):
                a(s)
        self.c('wave epilogue')
        self.stamp(3)
        a('s_nop 1')
        self.dpp('v_add_f32', LA, LA, LA, 'row_ror:8')
        self.swap_reduce('v_add_f32', LA, T, 16)
        self.swap_reduce('v_add_f32', LA, T, 32)
        a(f'v_lshrrev_b32 v{T}, 5, v0')
        a(f's_lshl_b32 s63, s28, 1')
        a(f'v_add_u32 v{T}, s63, v{T}')
        a(f'v_mul_u32_u24 v{T}, 768, v{T}')
        a(f'v_and_b32 v{T+1}, 7, v0')
        a(f'v_lshlrev_b32 v{T+1}, 5, v{T+1}')
        a(f'v_and_b32 v{T+2}, 16, v0')
        a(f'v_add3_u32 v{T}, v{T}, v{T+1}, v{T+2}')
        a(f's_lshl_b32 s63, s28, 2')
        a(f'v_mov_b32 v{T+3}, s63')
        a('s_mov_b32 exec_lo, 0x00ff00ff')
        a('s_mov_b32 exec_hi, 0xff00ff00')
        for i in range(3):
            a(f'ds_write_b128 v{T}, v[{ACC+4*i}:{ACC+4*i+3}] offset:{L_OL + 256*i}')
        a('s_mov_b64 exec, 1')
        a(f'ds_write_b32 v{T+3}, v{MX} offset:{L_ML}')
        a(f'ds_write_b32 v{T+3}, v{LA} offset:{L_ML+16}')
        a('s_mov_b64 exec, -1')
        a('s_waitcnt lgkmcnt(0)')
        a('s_branch L_tail')

    def gemv_unit(self, W, XB, ntile, nstep, lastvalid, addr, rowstride, tilebytes, acc):
        a = self.a
        for t in range(nstep):
            for tile in range(ntile):
                av = addr if t < nstep - 1 else addr + 1
                base = t * 32 * rowstride + tile * tilebytes
                r = W + 4 * (tile % 4)
                a(f'ds_read_b64_tr_b16 v[{r}:{r+1}], v{av} offset:{base}')
                a(f'ds_read_b64_tr_b16 v[{r+2}:{r+3}], v{av} offset:{base + 4*rowstride}')
                if tile % 4 == 3 or tile == ntile - 1:
                    a('s_waitcnt lgkmcnt(0)')
                    for tt in range(tile - tile % 4, tile + 1):
                        rr = W + 4 * (tt % 4)
                        a(f'v_mfma_f32_16x16x32_bf16 v[{acc+4*tt}:{acc+4*tt+3}], v[{rr}:{rr+3}], v[{XB+4*t}:{XB+4*t+3}], v[{acc+4*tt}:{acc+4*tt+3}]')

    def aux(self):
        o = self.opt; a = self.a
        ntw = o['ntw']
        self.c('==== aux waves ====')
        if o['noaux']:
            a('s_barrier'); a('s_barrier'); a('s_barrier'); a('s_barrier'); a('s_branch L_end')
        a('s_sub_u32 s38, s28, 4')
        self.srd(40, 4, X_BYTES)
        a('v_lshrrev_b32 v1, 5, v0')
        a('v_and_b32 v2, 31, v0')
        a('v_mul_u32_u24 v3, 1280, v1')
        a('v_mul_u32_u24 v4, 40, v2')
        a('v_add_u32 v3, v3, v4')
        a('buffer_load_dwordx4 v[8:11], v3, s[40:43], 0 offen')
        a('buffer_load_dwordx4 v[12:15], v3, s[40:43], 0 offen offset:16')
        a('buffer_load_dwordx2 v[16:17], v3, s[40:43], 0 offen offset:32')
        a('s_cmp_eq_u32 s38, 3')
        a('s_cbranch_scc1 L_aux_ffn_ld')
        self.srd(44, 10, WQ_BYTES)
        a('v_lshrrev_b32 v4, 3, v0')
        a('v_mul_u32_u24 v4, 12288, v4')
        a('v_and_b32 v5, 7, v0')
        a('v_lshlrev_b32 v5, 4, v5')
        a('v_add_u32 v4, v4, v5')
        a('s_mul_i32 s56, s31, 983040')
        a('s_mul_i32 s57, s35, 384')
        a('s_add_u32 s56, s56, s57')
        a('s_lshl_b32 s57, s38, 7')
        a('s_add_u32 s56, s56, s57')
        a('s_mul_i32 s57, s38, 10240')
        a(f's_add_u32 s57, s57, {L_UQ}')
        for i in range(10):
            a('s_mov_b32 m0, s57')
            a('s_add_u32 s57, s57, 1024')
            a(f'buffer_load_dwordx4 v4, s[44:47], s56 offen {ntw} lds')
            a('s_add_u32 s56, s56, 98304')
        a('s_barrier')
        a('s_waitcnt vmcnt(10)')
        a('s_branch L_aux_ln')
        self.label('L_aux_ffn_ld')
        a('s_cmp_ge_u32 s34, 16')
        a('s_cselect_b32 s56, s18, s16')
        a('s_cselect_b32 s57, s19, s17')
        self.srd(44, 56, WG_BYTES)
        def ffn_dma():
            for i in range(3):
                a(f'v_add_u32 v43, {64*i}, v0')
                a('v_mul_u32_u24 v44, 2731, v43')
                a('v_lshrrev_b32 v44, 16, v44')
                a('v_mul_u32_u24 v45, 24, v44')
                a('v_sub_u32 v43, v43, v45')
                a('v_mul_u32_u24 v44, 3072, v44')
                a('v_lshlrev_b32 v43, 4, v43')
                a(f'v_add_u32 v{40+i}, v43, v44')
            a('s_and_b32 s56, s34, 15')
            a('s_mul_i32 s56, s56, 122880')
            a('s_mul_i32 s57, s29, 384')
            a('s_add_u32 s56, s56, s57')
            a(f's_mov_b32 s57, {L_UF}')
            for i in range(15):
                a('s_mov_b32 m0, s57')
                a('s_add_u32 s57, s57, 1024')
                a(f'buffer_load_dwordx4 v{40+i%3}, s[44:47], s56 offen {ntw} lds')
                if i % 3 == 2:
                    a('s_add_u32 s56, s56, 24576')
        if not o['ffn_late']:
            ffn_dma()
            a('s_barrier')
            a('s_waitcnt vmcnt(15)')
        else:
            a('s_barrier')
            a('s_waitcnt vmcnt(0)')
        self.label('L_aux_ln')
        self.stamp(1)
        X = 20
        for k in range(10):
            a(f'v_lshlrev_b32 v{X+2*k}, 16, v{8+k}')
            a(f'v_and_b32 v{X+2*k+1}, 0xffff0000, v{8+k}')
        a(f'v_add_f32 v44, v{X}, v{X+1}')
        a(f'v_add_f32 v45, v{X+2}, v{X+3}')
        for k in range(2, 10):
            a(f'v_add_f32 v{44+k%2}, v{44+k%2}, v{X+2*k}')
            a(f'v_add_f32 v{44+k%2}, v{44+k%2}, v{X+2*k+1}')
        a('v_add_f32 v44, v44, v45')

        def red32(v):
            for ctrl in ('quad_perm:[1,0,3,2]', 'quad_perm:[2,3,0,1]', 'row_half_mirror', 'row_mirror'):
                a('s_nop 1')
                self.dpp('v_add_f32', v, v, v, ctrl)
            self.swap_reduce('v_add_f32', v, 47, 16)
        red32(44)
        a(f's_mov_b32 s56, {INV640}')
        a('v_mul_f32 v44, s56, v44')
        a('v_mov_b32 v45, 0')
        a('v_mov_b32 v46, 0')
        for k in range(20):
            a(f'v_sub_f32 v48, v{X+k}, v44')
            a(f'v_fmac_f32 v{45+k%2}, v48, v48')
        a('v_add_f32 v45, v45, v46')
        red32(45)
        a('v_mul_f32 v45, s56, v45')
        a('v_cvt_pk_bf16_f32 v46, v44, v45')
        a('v_lshlrev_b32 v44, 16, v46')
        a('v_and_b32 v45, 0xffff0000, v46')
        a(f'v_add_f32 v45, {EPS_BF}, v45')
        a('v_cvt_pk_bf16_f32 v45, v45, v45')
        a('v_and_b32 v45, 0xffff0000, v45')
        a('v_sqrt_f32 v45, v45')
        a('s_nop 0')
        a('v_cvt_pk_bf16_f32 v45, v45, v45')
        a('v_and_b32 v45, 0xffff0000, v45')
        a('v_rcp_f32 v45, v45')
        for k in range(10):
            a(f'v_sub_f32 v48, v{X+2*k}, v44')
            a(f'v_sub_f32 v49, v{X+2*k+1}, v44')
            a('v_cvt_pk_bf16_f32 v48, v48, v49')
            a('v_and_b32 v49, 0xffff0000, v48')
            a('v_lshlrev_b32 v48, 16, v48')
            a('v_mul_f32 v48, v48, v45')
            a('v_mul_f32 v49, v49, v45')
            a(f'v_cvt_pk_bf16_f32 v{8+k}, v48, v49')
        for k in range(5):
            a(f'ds_write_b64 v3, v[{8+2*k}:{9+2*k}] offset:{L_XN + 8*k}')
        a('v_and_b32 v4, 15, v0')
        a('v_lshrrev_b32 v5, 4, v0')
        a('v_and_b32 v6, 1, v0')
        a('v_mul_u32_u24 v6, 1280, v6')
        a('v_lshlrev_b32 v7, 4, v5')
        a('v_add_u32 v6, v6, v7')
        a('v_lshlrev_b32 v50, 3, v5')
        a('v_lshrrev_b32 v51, 2, v4')
        a('v_add_u32 v50, v50, v51')
        a('v_and_b32 v51, 3, v4')
        a('v_lshlrev_b32 v51, 3, v51')
        a('s_waitcnt lgkmcnt(0)')
        a('s_cmp_eq_u32 s38, 3')
        a('s_cbranch_scc1 L_aux_ffn')

        XB = 8
        a('s_mul_i32 s56, s31, 160')
        a('v_add_u32 v6, s56, v6')
        for t in range(3):
            a(f'ds_read_b128 v[{XB+4*t}:{XB+4*t+3}], v6 offset:{L_XN + 64*t}')
        a('s_mul_i32 s56, s38, 10240')
        a(f's_add_u32 s56, s56, {L_UQ}')
        a('v_lshlrev_b32 v52, 7, v50')
        a('v_add3_u32 v52, v52, v51, s56')
        a('v_cmp_le_u32 vcc, 2, v5')
        a('v_subrev_u32 v53, 2048, v52')
        a('s_nop 0')
        a('v_cndmask_b32 v53, v52, v53, vcc')
        ACC = 24
        for k in range(16):
            a(f'v_mov_b32 v{ACC+k}, 0')
        a('s_waitcnt lgkmcnt(0)')
        for r in range(4):
            a(f'v_cndmask_b32 v{XB+8+r}, v{XB+8+r}, 0, vcc')
        a('s_waitcnt vmcnt(0)')
        self.stamp(2)
        self.gemv_unit(W=56, XB=XB, ntile=4, nstep=3, lastvalid=2, addr=52, rowstride=128, tilebytes=32, acc=ACC)
        a('v_and_b32 v6, 1, v4')
        a('v_mul_u32_u24 v6, 12288, v6')
        a('v_lshrrev_b32 v7, 1, v4')
        a('v_lshl_add_u32 v7, v5, 1, v7')
        a('v_lshlrev_b32 v7, 4, v7')
        a('v_add_u32 v6, v6, v7')
        a('s_mul_i32 s56, s35, 24576')
        a('s_lshl_b32 s57, s38, 12')
        a('s_add_u32 s56, s56, s57')
        a('s_lshl_b32 s57, s31, 9')
        a('s_add_u32 s56, s56, s57')
        a(f's_add_u32 s56, s56, {WS_E1}')
        a('v_and_b32 v7, 2, v4')
        a('v_cmp_eq_u32 vcc, 2, v7')
        a('s_waitcnt lgkmcnt(0)')
        a('s_add_u32 s36, s36, 1')
        a('v_mov_b32 v10, s36')
        a('v_mov_b32 v11, s37')
        a('s_nop 7')
        a('s_mov_b64 s[84:85], exec')
        a('s_mov_b32 exec_lo, 0x000f000f')
        a('s_mov_b32 exec_hi, 0x000f000f')
        for tile in range(4):
            a(f'v_cndmask_b32 v8, v{ACC+4*tile}, v{ACC+4*tile+2}, vcc')
            a(f'v_cndmask_b32 v9, v{ACC+4*tile+1}, v{ACC+4*tile+3}, vcc')
            a(f'buffer_store_dwordx4 v[8:11], v6, s[52:55], s56 offen offset:{128*tile} sc1')
            a('s_nop 1')
        if o['smem']:
            a('s_mul_i32 s56, s35, 768')
            a('s_lshl_b32 s57, s38, 7')
            a('s_add_u32 s56, s56, s57')
            a('s_lshl_b32 s57, s31, 3')
            a('s_add_u32 s56, s56, s57')
            a(f's_add_u32 s56, s56, {WS_F1}')
            a('s_mov_b64 exec, 3')
            a('v_mul_u32_u24 v7, 384, v0')
            a('buffer_store_dwordx2 v[10:11], v7, s[52:55], s56 offen sc1')
        a('s_mov_b64 exec, s[84:85]')
        self.stamp(3)
        a('s_mul_i32 s56, s35, 24576')
        a('s_mul_i32 s57, s32, 12288')
        a('s_add_u32 s56, s56, s57')
        a('s_lshl_b32 s57, s38, 12')
        a('s_add_u32 s56, s56, s57')
        a(f's_add_u32 s56, s56, {WS_E1}')
        a(f's_mov_b32 s80, {o["spin"]}')
        if o['smem']:
            a('s_mul_i32 s57, s35, 768')
            a('s_mul_i32 s58, s32, 384')
            a('s_add_u32 s57, s57, s58')
            a('s_lshl_b32 s58, s38, 7')
            a('s_add_u32 s57, s57, s58')
            a(f's_add_u32 s57, s57, {WS_F1}')
            a('s_add_u32 s58, s26, s57')
            a('s_addc_u32 s59, s27, 0')
            self.smem_poll(58, 8, o['psleep'])
        elif o['sent']:
            a('v_lshlrev_b32 v6, 9, v0')
            a('v_add_u32 v6, 496, v6')
            a('s_mov_b64 exec, 0xff')
            self.label('L_q_sent')
            a('buffer_load_dwordx4 v[24:27], v6, s[52:55], s56 offen sc1')
            a('s_waitcnt vmcnt(0)')
            self.poll_check([24], 'L_q_sent', sleep=o['psleep'])
            a('s_mov_b64 exec, -1')
        a('v_lshlrev_b32 v6, 4, v0')
        self.label('L_q_poll')
        for i in range(4):
            a(f'buffer_load_dwordx4 v[{24+4*i}:{27+4*i}], v6, s[52:55], s56 offen offset:{1024*i} sc1')
        a('s_waitcnt vmcnt(0)')
        self.poll_check([24, 28, 32, 36], 'L_q_poll')
        a('v_add_f32 v24, v24, v28')
        a('v_add_f32 v25, v25, v29')
        a('v_add_f32 v32, v32, v36')
        a('v_add_f32 v33, v33, v37')
        a('v_add_f32 v24, v24, v32')
        a('v_add_f32 v25, v25, v33')
        self.swap_reduce('v_add_f32', 24, 26, 32)
        self.swap_reduce('v_add_f32', 25, 26, 32)
        a('v_cvt_pk_bf16_f32 v24, v24, v25')
        a('v_and_b32 v6, 31, v0')
        a('v_lshlrev_b32 v6, 2, v6')
        a('s_lshl_b32 s57, s38, 7')
        a('v_add_u32 v6, s57, v6')
        a(f'ds_write_b32 v6, v24 offset:{L_Q}')
        if o['dbg']:
            a('s_lshl_b32 s56, s2, 9'); a(f's_add_u32 s56, s56, {WS_DBG}')
            a('buffer_store_dword v24, v6, s[52:55], s56 offen')
        a('s_waitcnt lgkmcnt(0)')
        self.stamp(4)
        a('s_barrier')
        self.tmark(1)
        if not o['skipw']:
            self.wblock_dma()
        a('s_waitcnt vmcnt(0)')
        a('s_branch L_tail')

        self.label('L_aux_ffn')
        a('s_and_b32 s56, s34, 15')
        a('s_mul_i32 s56, s56, 80')
        a('v_add_u32 v6, s56, v6')
        for t in range(2):
            a(f'ds_read_b128 v[{XB+4*t}:{XB+4*t+3}], v6 offset:{L_XN + 64*t}')
        a('v_mul_u32_u24 v52, 384, v50')
        a(f'v_add_u32 v52, {L_UF}, v52')
        a('v_add_u32 v52, v52, v51')
        a('v_lshrrev_b32 v53, 2, v4')
        a('v_mul_u32_u24 v53, 384, v53')
        a(f'v_add_u32 v53, {L_UF}, v53')
        a('v_add_u32 v53, v53, v51')
        a('v_cmp_le_u32 vcc, 1, v5')
        FACC = 64
        for k in range(48):
            a(f'v_mov_b32 v{FACC+k}, 0')
        a('s_waitcnt lgkmcnt(0)')
        for r in range(4):
            a(f'v_cndmask_b32 v{XB+4+r}, v{XB+4+r}, 0, vcc')
        if o['ffn_late']:
            a('s_barrier')
            if o['skipffn']:
                a('s_add_u32 s36, s36, 1')
                a('s_branch L_tail')
            ffn_dma()
        a('s_waitcnt vmcnt(0)')
        self.gemv_unit(W=24, XB=XB, ntile=12, nstep=2, lastvalid=1, addr=52, rowstride=384, tilebytes=32, acc=FACC)
        a('v_and_b32 v6, 1, v4')
        a('v_mul_u32_u24 v6, 192, v6')
        a('v_lshlrev_b32 v7, 4, v5')
        a('v_add_u32 v6, v6, v7')
        a('s_mul_i32 s56, s29, 49152')
        a('s_mul_i32 s57, s34, 384')
        a('s_add_u32 s56, s56, s57')
        a(f's_add_u32 s56, s56, {WS_E2}')
        a('s_add_u32 s36, s36, 1')
        a('s_nop 7')
        a('s_mov_b32 exec_lo, 0x00030003')
        a('s_mov_b32 exec_hi, 0x00030003')
        for tile in range(12):
            r = tile // 3
            if tile % 3 == 0 and tile:
                a('s_add_u32 s56, s56, 12288')
            a(f'buffer_store_dwordx4 v[{FACC+4*tile}:{FACC+4*tile+3}], v6, s[52:55], s56 offen offset:{64*(tile%3)} sc1')
        a('s_mov_b64 exec, -1')
        if not o['ffn_late']:
            a('s_barrier')
        a('s_waitcnt vmcnt(0)')
        a('v_mov_b32 v8, s36')
        a('v_mov_b32 v9, s37')
        a('s_lshl_b32 s56, s29, 8')
        a('s_lshl_b32 s57, s34, 3')
        a('s_add_u32 s57, s57, s56')
        a(f's_add_u32 s57, s57, {WS_E2F}')
        a(f's_add_u32 s56, s56, {WS_E2F}')
        a('v_mov_b32 v10, 0')
        a('s_mov_b64 exec, 1')
        a('buffer_store_dwordx2 v[8:9], v10, s[52:55], s57 offen sc1')
        a('s_mov_b64 exec, -1')
        a(f's_mov_b32 s80, {o["spin"]}')
        if o['smem']:
            a('s_add_u32 s58, s26, s56')
            a('s_addc_u32 s59, s27, 0')
            for c4 in range(4):
                self.smem_poll(58, 8, o['fsleep'])
                if c4 < 3:
                    a('s_add_u32 s58, s58, 64')
                    a('s_addc_u32 s59, s59, 0')
        else:
            a('v_and_b32 v10, 31, v0')
            a('v_lshlrev_b32 v10, 3, v10')
            self.label('L_f_poll')
            a('buffer_load_dwordx2 v[14:15], v10, s[52:55], s56 offen sc1')
            a('s_waitcnt vmcnt(0)')
            self.poll_check([12], 'L_f_poll')
        a('v_and_b32 v10, 31, v0')
        a('v_min_u32 v11, 23, v10')
        a('v_lshlrev_b32 v11, 4, v11')
        a('v_lshrrev_b32 v12, 5, v0')
        a('v_mul_u32_u24 v12, 6144, v12')
        a('v_add_u32 v11, v11, v12')
        a('s_mul_i32 s56, s29, 49152')
        a('s_mul_i32 s57, s30, 12288')
        a('s_add_u32 s56, s56, s57')
        a(f's_add_u32 s56, s56, {WS_E2}')
        for i in range(16):
            a(f'buffer_load_dwordx4 v[{64+4*i}:{67+4*i}], v11, s[52:55], s56 offen offset:{384*(i%8)} sc1')
            if i == 7:
                a('s_add_u32 s56, s56, 3072')
        a('s_waitcnt vmcnt(0)')
        for i in range(1, 16):
            for r in range(4):
                a(f'v_add_f32 v{64+r}, v{64+r}, v{64+4*i+r}')
        a('v_cvt_pk_bf16_f32 v64, v64, v65')
        a('v_cvt_pk_bf16_f32 v65, v66, v67')
        a('v_mov_b32 v68, v64')
        a('v_mov_b32 v69, v65')
        a('s_nop 1')
        a('v_permlane32_swap_b32 v64, v68')
        a('v_permlane32_swap_b32 v65, v69')
        for p in range(2):
            g, u = 64 + p, 68 + p
            a(f'v_lshlrev_b32 v72, 16, v{g}')
            a(f'v_and_b32 v73, 0xffff0000, v{g}')
            for t in (72, 73):
                a(f'v_mul_f32 v74, {0xBFB8AA3B}, v{t}')
                a('v_exp_f32 v74, v74')
                a('s_nop 0')
                a('v_add_f32 v74, 1.0, v74')
                a('v_rcp_f32 v74, v74')
                a('s_nop 0')
                a(f'v_mul_f32 v{t}, v{t}, v74')
            a('v_cvt_pk_bf16_f32 v72, v72, v73')
            a('v_and_b32 v73, 0xffff0000, v72')
            a('v_lshlrev_b32 v72, 16, v72')
            a(f'v_and_b32 v75, 0xffff0000, v{u}')
            a(f'v_lshlrev_b32 v74, 16, v{u}')
            a('v_mul_f32 v72, v72, v74')
            a('v_mul_f32 v73, v73, v75')
            a(f'v_cvt_pk_bf16_f32 v{76+p}, v72, v73')
        a('v_cmp_le_u32 vcc, 12, v10')
        a('v_subrev_u32 v11, 12, v10')
        a('s_nop 0')
        a('v_cndmask_b32 v11, v10, v11, vcc')
        a('v_lshlrev_b32 v11, 3, v11')
        a('v_add_u32 v12, 128, v11')
        a('v_cndmask_b32 v11, v11, v12, vcc')
        a('v_subrev_u32 v12, 24, v10')
        a('v_lshrrev_b32 v13, 2, v12')
        a('v_lshlrev_b32 v13, 7, v13')
        a('v_and_b32 v12, 3, v12')
        a('v_lshl_add_u32 v12, v12, 3, v13')
        a('v_add_u32 v12, 96, v12')
        a('v_cmp_le_u32 vcc, 24, v10')
        a('s_nop 1')
        a('v_cndmask_b32 v11, v11, v12, vcc')
        a('v_cndmask_b32 v76, v76, 0, vcc')
        a('v_cndmask_b32 v77, v77, 0, vcc')
        a('s_mov_b32 exec_hi, 0')
        a(f'ds_write_b64 v11, v[76:77] offset:{L_HV}')
        a('s_mov_b64 exec, -1')
        a('s_waitcnt lgkmcnt(0)')
        self.stamp(4)
        a('s_branch L_tail')

    def wblock_dma(self):
        o = self.opt; a = self.a
        ntw = o['ntw']
        for i in range(5):
            a(f'v_add_u32 v5, {64*i}, v0')
            a('v_mul_u32_u24 v6, 6554, v5')
            a('v_lshrrev_b32 v6, 16, v6')
            a('v_mul_u32_u24 v7, 10, v6')
            a('v_sub_u32 v5, v5, v7')
            a('v_mul_u32_u24 v6, 1280, v6')
            a('v_lshlrev_b32 v5, 4, v5')
            a(f'v_add_u32 v{40+i}, v5, v6')
        self.srd(40, 12, WO_BYTES)
        self.srd(44, 20, WD_BYTES)
        a('s_mul_i32 s56, s35, 245760')
        a('s_mul_i32 s57, s31, 160')
        a('s_add_u32 s56, s56, s57')
        a('s_mul_i32 s57, s38, 81920')
        a('s_add_u32 s56, s56, s57')
        a('s_mul_i32 s57, s38, 10240')
        a(f's_add_u32 s57, s57, {L_WB}')
        for i in range(10):
            a('s_mov_b32 m0, s57')
            a('s_add_u32 s57, s57, 1024')
            a(f'buffer_load_dwordx4 v{40+i%5}, s[40:43], s56 offen {ntw} lds')
            if i == 4:
                a('s_add_u32 s56, s56, 40960')
        a('s_mul_i32 s56, s35, 61440')
        a('s_mul_i32 s57, s31, 160')
        a('s_add_u32 s56, s56, s57')
        lab0, lab1, labd = self.newlab('L_wd'), self.newlab('L_wd'), self.newlab('L_wd')
        a('s_cmp_eq_u32 s38, 0'); a(f's_cbranch_scc1 {lab0}')
        a('s_cmp_eq_u32 s38, 1'); a(f's_cbranch_scc1 {lab1}')

        def dma(i):
            a(f's_mov_b32 m0, {L_WD + 1024*i}')
            a(f's_add_u32 s57, s56, {40960*(i//5)}')
            a(f'buffer_load_dwordx4 v{40+i%5}, s[44:47], s57 offen {ntw} lds')
        dma(6); dma(7); a(f's_branch {labd}')
        self.label(lab0); dma(0); dma(1); dma(2); a(f's_branch {labd}')
        self.label(lab1); dma(3); dma(4); dma(5)
        self.label(labd)

    def tail(self):
        o = self.opt; a = self.a
        self.c('==== tail (all waves) ====')
        if o['noaux']:
            a('s_barrier'); a('s_barrier'); a('s_branch L_end')
        a('s_barrier')
        self.tmark(2)
        self.stamp(5)
        lab = self.newlab('L_tg')
        a('s_cmp_ge_u32 s28, 4'); a(f's_cbranch_scc1 {lab}')
        a('s_add_u32 s36, s36, 1')
        self.label(lab)
        a('s_cmp_ge_u32 s28, 2')
        a('s_cbranch_scc1 L_gather')
        a('s_lshl_b32 s56, s28, 6')
        a('v_add_u32 v1, s56, v0')
        a('v_min_u32 v2, 95, v1')
        a('v_lshlrev_b32 v2, 3, v2')
        for cidx in range(8):
            a(f'ds_read_b64 v[{8+2*cidx}:{9+2*cidx}], v2 offset:{L_OL + 768*cidx}')
        a('v_mov_b32 v3, 0')
        a(f'ds_read_b128 v[24:27], v3 offset:{L_ML}')
        a(f'ds_read_b128 v[28:31], v3 offset:{L_ML+16}')
        a(f's_mov_b32 s62, {LOG2E}')
        a('s_waitcnt lgkmcnt(0)')
        a('v_max3_f32 v32, v24, v25, v26')
        a('v_max_f32 v32, v32, v27')
        for w in range(4):
            a(f'v_sub_f32 v{24+w}, v{24+w}, v32')
            a(f'v_mul_f32 v{24+w}, s62, v{24+w}')
            a(f'v_exp_f32 v{24+w}, v{24+w}')
        a('s_nop 0')
        a('v_mul_f32 v33, v24, v28')
        for w in range(1, 4):
            a(f'v_fmac_f32 v33, v{24+w}, v{28+w}')
        for w in range(4):
            a(f'v_add_f32 v{8+4*w}, v{8+4*w}, v{10+4*w}')
            a(f'v_add_f32 v{9+4*w}, v{9+4*w}, v{11+4*w}')
        a('v_mul_f32 v36, v24, v8')
        a('v_mul_f32 v37, v24, v9')
        for w in range(1, 4):
            a(f'v_fmac_f32 v36, v{24+w}, v{8+4*w}')
            a(f'v_fmac_f32 v37, v{24+w}, v{9+4*w}')
        a('v_cmp_eq_u32 vcc, 96, v1')
        a('v_mov_b32 v38, s36')
        a('v_mov_b32 v39, s37')
        a('v_cndmask_b32 v36, v36, v32, vcc')
        a('v_cndmask_b32 v37, v37, v33, vcc')
        a('v_lshlrev_b32 v2, 4, v1')
        a('s_lshl_b32 s56, s35, 3')
        a('s_add_u32 s56, s56, s31')
        a('s_lshl_b32 s56, s56, 11')
        a(f's_add_u32 s56, s56, {WS_E3}')
        a('v_cmp_ge_u32 vcc, 96, v1')
        a('s_and_saveexec_b64 s[84:85], vcc')
        a('buffer_store_dwordx4 v[36:39], v2, s[52:55], s56 offen sc1')
        a('s_mov_b64 exec, s[84:85]')
        self.stamp(6)
        a('s_branch L_bar4')
        self.label('L_gather')
        a('s_sub_u32 s56, s28, 2')
        a('s_cmp_ge_u32 s56, 3')
        a('s_cselect_b32 s57, 1, 0')
        a('s_mul_i32 s58, s57, 3')
        a('s_sub_u32 s58, s56, s58')
        a('v_lshrrev_b32 v1, 5, v0')
        a('v_lshlrev_b32 v1, 11, v1')
        a('v_and_b32 v2, 31, v0')
        a('s_lshl_b32 s59, s58, 5')
        a('v_add_u32 v3, s59, v2')
        a('v_lshl_add_u32 v3, v3, 4, v1')
        a('v_add_u32 v4, 1536, v1')
        a('s_lshl_b32 s59, s35, 3')
        a('s_lshl_b32 s60, s57, 2')
        a('s_add_u32 s59, s59, s60')
        a('s_lshl_b32 s59, s59, 11')
        a(f's_add_u32 s59, s59, {WS_E3}')
        a('s_add_u32 s60, s59, 4096')
        a(f's_mov_b32 s80, {o["spin"]}')
        self.label('L_o_poll')
        a('buffer_load_dwordx4 v[8:11], v3, s[52:55], s59 offen sc1')
        a('buffer_load_dwordx4 v[12:15], v3, s[52:55], s60 offen sc1')
        a('buffer_load_dwordx4 v[16:19], v4, s[52:55], s59 offen sc1')
        a('buffer_load_dwordx4 v[20:23], v4, s[52:55], s60 offen sc1')
        a('s_waitcnt vmcnt(0)')
        self.poll_check([8, 12, 16, 20], 'L_o_poll')
        self.stamp(6)
        a(f's_mov_b32 s62, {LOG2E}')
        a('v_max_f32 v24, v16, v20')
        self.swap_reduce('v_max_f32', 24, 25, 32)
        a('v_sub_f32 v16, v16, v24')
        a('v_sub_f32 v20, v20, v24')
        a('v_mul_f32 v16, s62, v16')
        a('v_mul_f32 v20, s62, v20')
        a('v_exp_f32 v16, v16')
        a('v_exp_f32 v20, v20')
        a('s_nop 0')
        a('v_mul_f32 v26, v16, v17')
        a('v_fmac_f32 v26, v20, v21')
        a('v_mul_f32 v27, v16, v8')
        a('v_mul_f32 v28, v16, v9')
        a('v_fmac_f32 v27, v20, v12')
        a('v_fmac_f32 v28, v20, v13')
        self.swap_reduce('v_add_f32', 26, 25, 32)
        self.swap_reduce('v_add_f32', 27, 25, 32)
        self.swap_reduce('v_add_f32', 28, 25, 32)
        a('v_rcp_f32 v26, v26')
        a('s_nop 0')
        a('v_mul_f32 v27, v27, v26')
        a('v_mul_f32 v28, v28, v26')
        a('v_cvt_pk_bf16_f32 v27, v27, v28')
        a('s_mul_i32 s59, s57, 384')
        a('s_lshl_b32 s60, s58, 7')
        a('s_add_u32 s59, s59, s60')
        a('v_lshl_add_u32 v2, v2, 2, s59')
        a('s_mov_b32 exec_hi, 0')
        a(f'ds_write_b32 v2, v27 offset:{L_ON}')
        a('s_mov_b64 exec, -1')
        if o['dbg']:
            a('s_lshl_b32 s60, s2, 10'); a(f's_add_u32 s60, s60, {WS_DBG + 0x40000}')
            a('buffer_store_dword v27, v2, s[52:55], s60 offen')
        a('s_waitcnt lgkmcnt(0)')
        self.label('L_bar4')
        a('s_barrier')
        self.tmark(3)
        self.stamp(7)
        a('s_cmp_ge_u32 s28, 5')
        a('s_cbranch_scc1 L_reduce')
        a('v_and_b32 v4, 15, v0')
        a('v_lshrrev_b32 v5, 4, v0')
        a('v_and_b32 v6, 1, v0')
        a('v_lshlrev_b32 v7, 4, v5')
        a('v_mul_u32_u24 v8, 384, v6')
        a('v_add_u32 v8, v8, v7')
        a('v_lshlrev_b32 v9, 7, v6')
        a('v_add_u32 v9, v9, v7')
        for t in range(6):
            a(f'ds_read_b128 v[{16+4*t}:{19+4*t}], v8 offset:{L_ON + 64*t}')
        for t in range(2):
            a(f'ds_read_b128 v[{40+4*t}:{43+4*t}], v9 offset:{L_HV + 64*t}')
        a('v_lshlrev_b32 v10, 3, v5')
        a('v_lshrrev_b32 v11, 2, v4')
        a('v_add_u32 v10, v10, v11')
        a('v_mul_u32_u24 v10, 160, v10')
        a('v_and_b32 v11, 3, v4')
        a('v_lshlrev_b32 v11, 3, v11')
        a('s_lshl_b32 s56, s28, 5')
        a('v_add3_u32 v10, v10, v11, s56')
        a(f'v_add_u32 v10, {L_WB}, v10')
        a('v_cmp_le_u32 vcc, 2, v5')
        a('v_subrev_u32 v11, 2560, v10')
        a('s_nop 0')
        a('v_cndmask_b32 v11, v10, v11, vcc')
        for t in range(6):
            a(f'ds_read_b64_tr_b16 v[{48+4*t}:{49+4*t}], v10 offset:{5120*t}')
            a(f'ds_read_b64_tr_b16 v[{50+4*t}:{51+4*t}], v10 offset:{5120*t + 640}')
        a(f'ds_read_b64_tr_b16 v[72:73], v10 offset:{L_WD - L_WB}')
        a(f'ds_read_b64_tr_b16 v[74:75], v10 offset:{L_WD - L_WB + 640}')
        a(f'ds_read_b64_tr_b16 v[76:77], v11 offset:{L_WD - L_WB + 5120}')
        a(f'ds_read_b64_tr_b16 v[78:79], v11 offset:{L_WD - L_WB + 5120 + 640}')
        for k in range(8):
            a(f'v_mov_b32 v{80+k}, 0')
        a('s_waitcnt lgkmcnt(0)')
        for t in range(6):
            a(f'v_mfma_f32_16x16x32_bf16 v[80:83], v[{16+4*t}:{19+4*t}], v[{48+4*t}:{51+4*t}], v[80:83]')
        for t in range(2):
            a(f'v_mfma_f32_16x16x32_bf16 v[84:87], v[{40+4*t}:{43+4*t}], v[{72+4*t}:{75+4*t}], v[84:87]')
        a('v_and_b32 v6, 1, v5')
        a('v_mul_u32_u24 v6, 40960, v6')
        a('v_lshl_add_u32 v6, v4, 4, v6')
        a('s_mul_i32 s56, s31, 10')
        a('s_add_u32 s56, s56, s28')
        a('s_lshl_b32 s56, s56, 13')
        a('s_lshl_b32 s57, s35, 8')
        a('s_add_u32 s56, s56, s57')
        a(f's_add_u32 s56, s56, {WS_E4}')
        a('v_and_b32 v7, 16, v0')
        a('v_cmp_eq_u32 vcc, 16, v7')
        a('v_mov_b32 v90, s36')
        a('v_mov_b32 v91, s37')
        a('s_nop 7')
        a('v_cndmask_b32 v88, v80, v81, vcc')
        a('v_cndmask_b32 v89, v84, v85, vcc')
        a('s_mov_b32 exec_hi, 0')
        a('buffer_store_dwordx4 v[88:91], v6, s[52:55], s56 offen sc1')
        self.stamp(8)
        a('s_branch L_end')
        self.label('L_reduce')
        a('s_cmp_lg_u32 s28, 5')
        a('s_cbranch_scc1 L_end')
        a('s_cmp_ge_u32 s35, 10')
        a('s_cbranch_scc1 L_end')
        a('s_cmp_ge_u32 s35, 5')
        a('s_cselect_b32 s57, 1, 0')
        a('s_mul_i32 s58, s57, 5')
        a('s_sub_u32 s58, s35, s58')
        self.srd(40, 4, X_BYTES)
        self.srd(44, 22, X_BYTES)
        a('s_mul_i32 s59, s57, 1280')
        a('s_mul_i32 s60, s31, 160')
        a('s_add_u32 s59, s59, s60')
        a('s_lshl_b32 s60, s58, 5')
        a('s_add_u32 s59, s59, s60')
        a('v_and_b32 v4, 15, v0')
        a('v_lshlrev_b32 v4, 1, v4')
        a('buffer_load_ushort v5, v4, s[40:43], s59 offen')
        a('s_lshl_b32 s60, s31, 1')
        a('s_add_u32 s60, s60, s57')
        a('s_mul_i32 s60, s60, 5')
        a('s_add_u32 s60, s60, s58')
        a('s_lshl_b32 s60, s60, 13')
        a(f's_add_u32 s60, s60, {WS_E4}')
        a('v_lshlrev_b32 v6, 4, v0')
        a(f's_mov_b32 s80, {o["spin"]}')
        self.label('L_r_poll')
        for i in range(8):
            if i == 4:
                a('s_add_u32 s61, s60, 4096')
            so = 's60' if i < 4 else 's61'
            a(f'buffer_load_dwordx4 v[{8+4*i}:{11+4*i}], v6, s[52:55], {so} offen offset:{1024*(i%4)} sc1')
        a('s_waitcnt vmcnt(0)')
        self.poll_check([8 + 4 * i for i in range(8)], 'L_r_poll')
        for i in range(1, 8):
            a(f'v_add_f32 v8, v8, v{8+4*i}')
            a(f'v_add_f32 v9, v9, v{9+4*i}')
        self.swap_reduce('v_add_f32', 8, 10, 16)
        self.swap_reduce('v_add_f32', 9, 10, 16)
        self.swap_reduce('v_add_f32', 8, 10, 32)
        self.swap_reduce('v_add_f32', 9, 10, 32)
        a('v_cvt_pk_bf16_f32 v8, v8, v9')
        a('v_lshlrev_b32 v5, 16, v5')
        a('v_lshlrev_b32 v9, 16, v8')
        a('v_add_f32 v9, v5, v9')
        a('v_cvt_pk_bf16_f32 v9, v9, v9')
        a('v_lshlrev_b32 v9, 16, v9')
        a('v_and_b32 v8, 0xffff0000, v8')
        a('v_add_f32 v9, v9, v8')
        a('v_cvt_pk_bf16_f32 v9, v9, v9')
        a('s_mov_b64 exec, 0xffff')
        a('buffer_store_short v9, v4, s[44:47], s59 offen')
        a('s_cmp_lg_u32 s35, 0'); a('s_cbranch_scc1 L_end')
        a('s_cmp_lg_u32 s31, 0'); a('s_cbranch_scc1 L_end')
        a('v_mov_b32 v8, s36')
        a('v_mov_b32 v9, s37')
        a('v_mov_b32 v10, 0')
        a('s_mov_b64 exec, 1')
        a(f'buffer_store_dwordx2 v[8:9], v10, s[52:55], 0 offen offset:{WS_EPOCH} sc1')
        if o['dbgtime']:
            self.tmark(4)
            for i in range(1, 5):
                a(f's_sub_u32 s56, s{84+2*i}, s84')
                a(f'v_mov_b32 v{11+i}, s56')
            a('global_store_dwordx4 v10, v[12:15], s[24:25]')
        self.stamp(9)


if __name__ == '__main__':
    opts = {}
    for arg in sys.argv[2:]:
        k, v = arg.split('=')
        try:
            v = eval(v)
        except Exception:
            pass
        opts[k] = v
    src = Gen(**opts).build()
    open(sys.argv[1], 'w').write(src)
    print('wrote', sys.argv[1], len(src), 'bytes')
```

```python
import sys

NAME = 'parallel_sum__mha_block_cached__swiglu_ffn__decode_kernel'

D = 640; H = 32; SK = 4096; DH = 192; F = 1536
K_BYTES = 2 * H * SK * DH * 2
WQ_BYTES = D * H * DH * 2
WO_BYTES = H * DH * D * 2
WG_BYTES = D * F * 2
WD_BYTES = F * D * 2
X_BYTES = 2 * D * 2

WS_EPOCH = 0
WS_E1 = 0x10000
WS_F1 = 0xD8000
WS_E2F = 0xD0000
WS_E2 = 0xE0000
WS_E3 = 0x140000
WS_E4 = 0x1C0000
WS_USED = 0x260000
WS_PR = 0x270000
WS_DBG = 0x300000
WS_SRD_BYTES = 0x800000

L_XN = 0
L_Q = 2560
L_HV = 2944
L_ON = 3200
L_ML = 3968
L_FLAG = 4032
L_OL = 4096
L_UQ = 10240
L_UF = 40960
L_WB = 56320
L_WD = 87040
LDS_BYTES = 95232

LOG2E = 0x3FB8AA3B
SCALE = 0x3D93CD3A
INV640 = 0x3ACCCCCD
EPS_BF = 0x37280000


class Gen:
    def __init__(self, **opt):
        self.L = []
        self.opt = dict(NP=4, WL=5, gran=1, ntk='nt', ntv='nt', ntw='nt', dbg=False, spin=1 << 16, stamps=False, dbgtime=False, noaux=False, sent=True, psleep=4, ffn_late=True, skipffn=False, skipw=False, smem=True, fsleep=16, tsleep=0, wend=8, wendn=4, whalf=False, nlate=0, wtrig=4, wearly=0, ntwb='', prog=False, ctrl=None, cgain=1, catom='noret', fwait=10, cpart=[1,2,4,7], cmax=3, cmin=3, cstep=1, rot=None)
        self.opt.update(opt)
        self.lab = 0
        self.ool = []

    def a(self, s):
        self.L.append('  ' + s)

    def label(self, s):
        self.L.append(s + ':')

    def newlab(self, p='L'):
        self.lab += 1
        return f'{p}_{self.lab}'

    def c(self, s):
        self.L.append('  ; ' + s)

    def srd(self, r, base, nbytes):
        self.a(f's_mov_b32 s{r}, s{base}')
        self.a(f's_and_b32 s{r+1}, s{base+1}, 0xffff')
        self.a(f's_mov_b32 s{r+2}, {nbytes}')
        self.a(f's_mov_b32 s{r+3}, 0x20000')

    def dpp(self, op, dst, src0, src1, ctrl):
        self.a(f'{op}_dpp v{dst}, v{src0}, v{src1} {ctrl} row_mask:0xf bank_mask:0xf')

    def swap_reduce(self, op, v, t, which):
        self.a(f'v_mov_b32 v{t}, v{v}')
        self.a('s_nop 1')
        self.a(f'v_permlane{which}_swap_b32 v{v}, v{t}')
        self.a(f'{op} v{v}, v{v}, v{t}')

    def stamp(self, idx):
        if not self.opt['stamps']:
            return
        self.a('s_memrealtime s[94:95]')
        self.a('s_waitcnt lgkmcnt(0)')
        self.a(f'v_writelane_b32 v249, s94, {idx}')

    def stamp_dump(self):
        if not self.opt['stamps']:
            return
        a = self.a
        a('s_mov_b64 exec, 0xffff')
        a('s_lshl_b32 s92, s2, 3')
        a('s_add_u32 s92, s92, s28')
        a('s_lshl_b32 s92, s92, 6')
        a(f's_add_u32 s92, s92, {WS_DBG}')
        a('v_lshlrev_b32 v251, 2, v0')
        a(f'buffer_store_dword v249, v251, s[52:55], s92 offen')

    def tmark(self, i):
        if self.opt['dbgtime']:
            self.a(f's_memrealtime s[{84+2*i}:{85+2*i}]')
            self.a('s_waitcnt lgkmcnt(0)')

    def smem_poll(self, base, ntags, sleep):
        a = self.a
        again, done = self.newlab('L_sp'), self.newlab('L_sd')
        miss = self.newlab('L_sm')
        self.label(again)
        a(f's_load_dwordx16 s[64:79], s[{base}:{base+1}], 0 glc')
        a('s_waitcnt lgkmcnt(0)')
        for t in range(ntags):
            a(f's_cmp_eq_u64 s[{64+2*t}:{65+2*t}], s[36:37]')
            a(f's_cbranch_scc0 {miss}')
        a(f's_branch {done}')
        self.label(miss)
        a('s_sub_u32 s80, s80, 1')
        a('s_cmp_eq_u32 s80, 0')
        a(f's_cbranch_scc1 {done}')
        a(f's_sleep {sleep}')
        a(f's_branch {again}')
        self.label(done)

    def poll_check(self, regs, again, cnt='s80', sleep=1):
        first = True
        for r in regs:
            self.a(f'v_cmp_ne_u64 vcc, s[36:37], v[{r+2}:{r+3}]')
            if first:
                self.a('s_mov_b64 s[82:83], vcc')
                first = False
            else:
                self.a('s_or_b64 s[82:83], s[82:83], vcc')
        done = self.newlab('L_pd')
        self.a('s_cmp_eq_u64 s[82:83], 0')
        self.a(f's_cbranch_scc1 {done}')
        self.a(f's_sub_u32 {cnt}, {cnt}, 1')
        self.a(f's_cmp_eq_u32 {cnt}, 0')
        self.a(f's_cbranch_scc1 {done}')
        if sleep:
            self.a(f's_sleep {sleep}')
        self.a(f's_branch {again}')
        self.label(done)

    def build(self):
        o = self.opt
        NP = o['NP']
        a = self.a
        head = [f'; fused LN + q-proj + split-KV attention + out-proj + SwiGLU FFN (decode), one launch',
                f'; @launch grid=(256,1,1) block=(512,1,1) lds={LDS_BYTES}',
                '.amdgcn_target "amdgcn-amd-amdhsa--gfx950"', '.text', f'.globl {NAME}', '.p2align 8',
                f'.type {NAME},@function', f'{NAME}:']
        a('s_cmp_ge_u32 s2, 256')
        a('s_cbranch_scc1 L_exit')
        if o['stamps']:
            a('v_mov_b32 v249, 0')
        a('s_load_dwordx16 s[4:19], s[0:1], 0')
        a('s_load_dwordx8 s[20:27], s[0:1], 64')
        a('v_lshrrev_b32 v1, 6, v0')
        a('v_and_b32 v0, 63, v0')
        a('s_and_b32 s29, s2, 7')
        a('v_readfirstlane_b32 s28, v1')
        a('s_lshr_b32 s34, s2, 3')
        a('s_lshr_b32 s30, s34, 3')
        a('s_and_b32 s31, s34, 7')
        a('s_lshl_b32 s35, s29, 2')
        a('s_add_u32 s35, s35, s30')
        a('s_lshr_b32 s32, s31, 2')
        a('s_and_b32 s33, s31, 3')
        a('s_waitcnt lgkmcnt(0)')
        a(f's_load_dwordx2 s[36:37], s[26:27], {WS_EPOCH}')
        self.srd(52, 26, WS_SRD_BYTES)
        self.stamp(0)
        self.tmark(0)
        a('s_cmp_ge_u32 s28, 4')
        a('s_cbranch_scc1 L_aux')
        self.stream()
        self.L += self.ool
        self.label('L_aux')
        self.aux()
        self.label('L_tail')
        self.tail()
        self.label('L_end')
        self.stamp_dump()
        self.label('L_exit')
        a('s_endpgm')
        nv = 256
        foot = ['.section .rodata,"a"', '.p2align 6', f'.amdhsa_kernel {NAME}',
                f'  .amdhsa_next_free_vgpr {nv}', '  .amdhsa_next_free_sgpr 96', f'  .amdhsa_accum_offset {nv}',
                '  .amdhsa_group_segment_fixed_size 0', '  .amdhsa_kernarg_size 96',
                '  .amdhsa_user_sgpr_count 2', '  .amdhsa_user_sgpr_kernarg_segment_ptr 1',
                '  .amdhsa_system_sgpr_workgroup_id_x 1', '  .amdhsa_float_denorm_mode_32 3',
                '.end_amdhsa_kernel']
        return '\n'.join(head + self.L + foot) + '\n'

    def stream(self):
        o = self.opt; a = self.a
        NP = o['NP']
        VOFF = 1
        M = 2
        Q = 8
        ACC = 20
        S = 32
        T = 48
        RB = 72
        assert RB + 24 * NP <= 250
        self.c('==== stream waves ====')
        self.srd(40, 6, K_BYTES)
        self.srd(44, 8, K_BYTES)
        a('s_lshl_b32 s56, s32, 5')
        a('s_add_u32 s56, s56, s35')
        a('s_lshl_b32 s56, s56, 12')
        a('s_lshl_b32 s57, s33, 10')
        a('s_add_u32 s56, s56, s57')
        a('s_lshl_b32 s57, s28, 8')
        a('s_add_u32 s56, s56, s57')
        a('s_mul_i32 s58, s56, 384')
        a(f'v_lshrrev_b32 v{T}, 3, v0')
        a(f'v_mul_u32_u24 v{T}, 384, v{T}')
        a(f'v_and_b32 v{T+1}, 7, v0')
        a(f'v_lshlrev_b32 v{T+2}, 4, v{T+1}')
        a(f'v_add_u32 v{VOFF}, v{T}, v{T+2}')
        a(f'v_and_b32 v{T+2}, 1, v0')
        a(f'v_mov_b32 v{T+3}, 0xffff')
        a(f'v_mov_b32 v{T+4}, 0xffff0000')
        a(f'v_cmp_eq_u32 vcc, 1, v{T+2}')
        a(f'v_lshrrev_b32 v{T+1}, 1, v{T+1}')
        a('s_nop 0')
        a(f'v_cndmask_b32 v{T+3}, v{T+3}, v{T+4}, vcc')
        for r in range(4):
            a(f'v_cmp_eq_u32 vcc, {r}, v{T+1}')
            a('s_nop 1')
            a(f'v_cndmask_b32 v{M+r}, 0, v{T+3}, vcc')
        for i in range(12):
            a(f'v_mov_b32 v{ACC+i}, 0')
        if o['rot']:
            ra, rb = o['rot']
            a(f's_mul_i32 s57, s2, {ra}')
            a(f's_mul_i32 s59, s28, {rb}')
            a('s_add_u32 s57, s57, s59')
            a('s_and_b32 s57, s57, 15')
            a('s_mul_i32 s57, s57, 6144')
            a('s_add_u32 s86, s58, 98304')
            a('s_add_u32 s58, s58, s57')
        a('s_mov_b32 s59, s58')
        a('s_barrier')

        seq = [('K', p) for p in range(16)] + [('V', p) for p in range(16)]

        def issue(idx):
            if idx >= len(seq):
                return []
            kind, p = seq[idx]
            srd = 40 if kind == 'K' else 44
            nt = o['ntk'] if kind == 'K' else o['ntv']
            R = RB + 24 * (idx % NP)
            out = []
            if kind == 'V' and p == 0:
                out.append('s_mov_b32 s59, s58')
            for g in range(2):
                if o['WL'] and o['gran'] == 3 and not (idx * 6 + 3 * g + 3 <= o['WL']):
                    out.append(f's_waitcnt vmcnt({o["WL"] - 3})')
                for i in range(3):
                    wl = o['WL']
                    if o['wend'] and idx >= 32 - o['wendn']:
                        wl = o['wend']
                    if o['whalf'] and (3 * g + i) % 2 == 1:
                        wl += 1
                    adaptive = o['ctrl'] and idx - NP > o['ctrl'][1] and not (o['wend'] and idx >= 32 - o['wendn'])
                    r = R + 12 * g + 4 * i
                    ld = f'buffer_load_dwordx4 v[{r}:{r+3}], v{VOFF}, s[{srd}:{srd+3}], s59 offen offset:{3072*g+128*i} {nt}'
                    if adaptive:
                        n = 3 * g + i
                        lf, ls, lb = self.newlab('L_cf'), self.newlab('L_cs'), self.newlab('L_cb')
                        out.append(f's_bitcmp1_b32 s81, {n}')
                        out.append(f's_cbranch_scc1 {lf}')
                        out.append(f's_bitcmp1_b32 s81, {8 + n}')
                        out.append(f's_cbranch_scc1 {ls}')
                        out.append(f's_waitcnt vmcnt({wl - 1})')
                        out.append(ld)
                        out.append(('L', lb))
                        self.ool += [f'{lf}:', f'  s_waitcnt vmcnt({wl - 1 + o["cstep"]})', '  ' + ld, f'  s_branch {lb}',
                                     f'{ls}:', f'  s_waitcnt vmcnt({wl - 2})', '  ' + ld, f'  s_branch {lb}']
                        continue
                    if o['WL'] and o['gran'] == 1 and not (idx * 6 + 3 * g + i + 1 <= wl):
                        out.append(f's_waitcnt vmcnt({wl - 1})')
                    out.append(ld)
            out.append('s_add_u32 s59, s59, 6144')
            if o['rot']:
                out.append('s_cmp_ge_u32 s59, s86')
                out.append('s_cselect_b32 s57, 98304, 0')
                out.append('s_sub_u32 s59, s59, s57')
            return out

        def emit(lst):
            for ins in lst:
                if isinstance(ins, tuple):
                    self.label(ins[1])
                else:
                    a(ins)

        def mode_read(idx):
            if o['ctrl'] and idx > o['ctrl'][1] and idx + NP < 32:
                a(f'ds_read_b32 v242, v240 offset:{L_FLAG+12}')

        def mode_get(idx):
            if o['ctrl'] and idx > o['ctrl'][1] and idx + NP < 32:
                a('s_waitcnt lgkmcnt(0)')
                a('v_readfirstlane_b32 s81, v242')

        def checkpoint(idx):
            if o['fwait'] and idx == o['fwait']:
                a('s_mov_b64 exec, 1')
                a(f'ds_add_u32 v240, v241 offset:{L_FLAG+16}')
                a('s_mov_b64 exec, -1')
            if o['ctrl'] and idx in o['ctrl']:
                a('s_mov_b64 exec, 1')
                a(f'ds_add_u32 v240, v241 offset:{L_FLAG+8}')
                a('s_mov_b64 exec, -1')

        pre = []
        for idx in range(NP):
            pre += issue(idx)
        done_prep = False
        for ins in pre:
            if ins.startswith('s_waitcnt') and not done_prep:
                a('s_waitcnt lgkmcnt(0)')
                a('s_add_u32 s36, s36, 1')
                self.tail_prep(aux=False)
                done_prep = True
            a(ins)
        assert done_prep
        self.stamp(1)
        a('s_barrier')
        self.stamp(2)
        a(f'v_and_b32 v{T}, 7, v0')
        a(f'v_lshlrev_b32 v{T}, 4, v{T}')
        for i in range(3):
            a(f'ds_read_b128 v[{Q+4*i}:{Q+4*i+3}], v{T} offset:{L_Q + 128*i}')
        a(f'v_mov_b32 v{T+8}, 0xff800000')
        MX = T + 8
        a(f's_mov_b32 s60, {SCALE}')
        a(f's_mov_b32 s61, 0xffff0000')
        a(f's_mov_b32 s62, {LOG2E}')
        a('s_waitcnt lgkmcnt(0)')

        def outstanding_after(idx):
            last = min(idx + NP - 1, len(seq) - 1)
            return (last - idx) * 6

        for p in range(16):
            idx = p
            R = RB + 24 * (idx % NP)
            self.c(f'K pair {p}')
            mode_read(idx)
            a(f's_waitcnt vmcnt({outstanding_after(idx)})')
            A, B = T, T + 1
            a(f'v_mov_b32 v{A}, 0')
            a(f'v_mov_b32 v{B}, 0')
            for g, acc in ((0, A), (1, B)):
                for i in range(3):
                    for r in range(4):
                        a(f'v_dot2c_f32_bf16 v{acc}, v{R+12*g+4*i+r}, v{Q+4*i+r}')
            nxt = issue(idx + NP)
            late_issue = any(isinstance(x, tuple) for x in nxt)
            fill = [] if late_issue else list(nxt)

            def f(n=1):
                for _ in range(n):
                    a(fill.pop(0) if fill else 's_nop 0')
            q1 = 'quad_perm:[1,0,3,2]'; q2 = 'quad_perm:[2,3,0,1]'; hm = 'row_half_mirror'
            self.dpp('v_add_f32', A, A, A, q1)
            f(2)
            self.dpp('v_add_f32', B, B, B, q1)
            self.dpp('v_add_f32', A, A, A, q2)
            f(1)
            self.dpp('v_add_f32', B, B, B, q2)
            self.dpp('v_add_f32', A, A, A, hm)
            f(1)
            self.dpp('v_add_f32', B, B, B, hm)
            while fill:
                f(1)
            if late_issue:
                mode_get(idx)
                emit(nxt)
            checkpoint(idx)
            a(f'v_cvt_pk_bf16_f32 v{T+2}, v{A}, v{B}')
            a(f'v_lshlrev_b32 v{T+3}, 16, v{T+2}')
            a(f'v_and_b32 v{T+4}, s61, v{T+2}')
            a(f'v_mul_f32 v{T+3}, s60, v{T+3}')
            a(f'v_mul_f32 v{T+4}, s60, v{T+4}')
            a(f'v_max3_f32 v{MX}, v{MX}, v{T+3}, v{T+4}')
            a(f'v_cvt_pk_bf16_f32 v{S+p}, v{T+3}, v{T+4}')
            if o['prog'] and p == 7:
                self.stamp(12)
            if o['prog'] and p == 15:
                self.stamp(13)
        self.c('wave max')
        a('s_nop 1')
        self.dpp('v_max_f32', MX, MX, MX, 'row_ror:8')
        self.swap_reduce('v_max_f32', MX, T, 16)
        self.swap_reduce('v_max_f32', MX, T, 32)
        a(f'v_cvt_pk_bf16_f32 v{T}, v{MX}, v{MX}')
        a(f'v_lshlrev_b32 v{MX}, 16, v{T}')
        NM = T + 9
        a(f'v_mul_f32 v{NM}, s62, v{MX}')
        a(f'v_sub_f32 v{NM}, 0, v{NM}')
        LA = T + 10
        a(f'v_mov_b32 v{LA}, 0')
        if o['dbg']:
            a('s_lshl_b32 s63, s2, 2'); a('s_add_u32 s63, s63, s28'); a('s_lshl_b32 s63, s63, 12')
            a(f's_add_u32 s63, s63, {WS_DBG + 0x100000}')
            a(f'v_lshlrev_b32 v{T}, 2, v0')
            for p in range(16):
                a(f'buffer_store_dword v{S+p}, v{T}, s[52:55], s63 offen offset:{256*p}')
            a('s_waitcnt vmcnt(0)')
        PA = T + 12
        for p in range(16):
            idx = 16 + p
            R = RB + 24 * (idx % NP)
            self.c(f'V pair {p}')
            mode_read(idx)
            e0, e1 = T, T + 1
            a(f'v_lshlrev_b32 v{e0}, 16, v{S+p}')
            a(f'v_and_b32 v{e1}, s61, v{S+p}')
            a(f'v_fma_f32 v{e0}, v{e0}, s62, v{NM}')
            a(f'v_fma_f32 v{e1}, v{e1}, s62, v{NM}')
            a(f'v_exp_f32 v{e0}, v{e0}')
            a(f'v_exp_f32 v{e1}, v{e1}')
            a('s_nop 0')
            a(f'v_cvt_pk_bf16_f32 v{T+2}, v{e0}, v{e0}')
            a(f'v_cvt_pk_bf16_f32 v{T+3}, v{e1}, v{e1}')
            for r in range(4):
                a(f'v_and_b32 v{PA+r}, v{T+2}, v{M+r}')
            for r in range(4):
                a(f'v_and_b32 v{PA+4+r}, v{T+3}, v{M+r}')
            a(f'v_add_f32 v{LA}, v{LA}, v{e0}')
            a(f'v_add_f32 v{LA}, v{LA}, v{e1}')
            if o['dbg'] and False:
                pass
            a(f's_waitcnt vmcnt({outstanding_after(idx)})')
            for g in range(2):
                for i in range(3):
                    r = R + 12 * g + 4 * i
                    a(f'v_mfma_f32_16x16x32_bf16 v[{ACC+4*i}:{ACC+4*i+3}], v[{PA+4*g}:{PA+4*g+3}], v[{r}:{r+3}], v[{ACC+4*i}:{ACC+4*i+3}]')
            mode_get(idx)
            emit(issue(idx + NP))
            checkpoint(idx)
            if o['prog'] and p == 7:
                self.stamp(14)
            if o['prog'] and p == 11:
                self.stamp(15)
            if o['nlate'] and idx + NP == 31 - o['wearly']:
                a('s_mov_b64 exec, 1')
                a(f'ds_add_u32 v240, v241 offset:{L_FLAG}')
                a('s_mov_b64 exec, -1')
        self.c('wave epilogue')
        self.stamp(3)
        a('s_nop 1')
        self.dpp('v_add_f32', LA, LA, LA, 'row_ror:8')
        self.swap_reduce('v_add_f32', LA, T, 16)
        self.swap_reduce('v_add_f32', LA, T, 32)
        a(f'v_lshrrev_b32 v{T}, 5, v0')
        a(f's_lshl_b32 s63, s28, 1')
        a(f'v_add_u32 v{T}, s63, v{T}')
        a(f'v_mul_u32_u24 v{T}, 768, v{T}')
        a(f'v_and_b32 v{T+1}, 7, v0')
        a(f'v_lshlrev_b32 v{T+1}, 5, v{T+1}')
        a(f'v_and_b32 v{T+2}, 16, v0')
        a(f'v_add3_u32 v{T}, v{T}, v{T+1}, v{T+2}')
        a(f's_lshl_b32 s63, s28, 2')
        a(f'v_mov_b32 v{T+3}, s63')
        a('s_mov_b32 exec_lo, 0x00ff00ff')
        a('s_mov_b32 exec_hi, 0xff00ff00')
        for i in range(3):
            a(f'ds_write_b128 v{T}, v[{ACC+4*i}:{ACC+4*i+3}] offset:{L_OL + 256*i}')
        a('s_mov_b64 exec, 1')
        a(f'ds_write_b32 v{T+3}, v{MX} offset:{L_ML}')
        a(f'ds_write_b32 v{T+3}, v{LA} offset:{L_ML+16}')
        a('s_waitcnt lgkmcnt(0)')
        if o['nlate']:
            a(f'ds_add_u32 v240, v241 offset:{L_FLAG+4}')
        a('s_mov_b64 exec, -1')
        a('s_branch L_tail')

    def gemv_unit(self, W, XB, ntile, nstep, lastvalid, addr, rowstride, tilebytes, acc):
        a = self.a
        for t in range(nstep):
            for tile in range(ntile):
                av = addr if t < nstep - 1 else addr + 1
                base = t * 32 * rowstride + tile * tilebytes
                r = W + 4 * (tile % 4)
                a(f'ds_read_b64_tr_b16 v[{r}:{r+1}], v{av} offset:{base}')
                a(f'ds_read_b64_tr_b16 v[{r+2}:{r+3}], v{av} offset:{base + 4*rowstride}')
                if tile % 4 == 3 or tile == ntile - 1:
                    a('s_waitcnt lgkmcnt(0)')
                    for tt in range(tile - tile % 4, tile + 1):
                        rr = W + 4 * (tt % 4)
                        a(f'v_mfma_f32_16x16x32_bf16 v[{acc+4*tt}:{acc+4*tt+3}], v[{rr}:{rr+3}], v[{XB+4*t}:{XB+4*t+3}], v[{acc+4*tt}:{acc+4*tt+3}]')

    def aux(self):
        o = self.opt; a = self.a
        ntw = o['ntw']
        self.c('==== aux waves ====')
        if o['noaux']:
            a('s_barrier'); a('s_barrier'); a('s_barrier'); a('s_barrier'); a('s_branch L_end')
        a('s_sub_u32 s38, s28, 4')
        self.srd(40, 4, X_BYTES)
        a('v_lshrrev_b32 v1, 5, v0')
        a('v_and_b32 v2, 31, v0')
        a('v_mul_u32_u24 v3, 1280, v1')
        a('v_mul_u32_u24 v4, 40, v2')
        a('v_add_u32 v3, v3, v4')
        a('buffer_load_dwordx4 v[8:11], v3, s[40:43], 0 offen')
        a('buffer_load_dwordx4 v[12:15], v3, s[40:43], 0 offen offset:16')
        a('buffer_load_dwordx2 v[16:17], v3, s[40:43], 0 offen offset:32')
        a('s_cmp_eq_u32 s38, 3')
        a('s_cbranch_scc1 L_aux_ffn_ld')
        self.srd(44, 10, WQ_BYTES)
        a('v_lshrrev_b32 v4, 3, v0')
        a('v_mul_u32_u24 v4, 12288, v4')
        a('v_and_b32 v5, 7, v0')
        a('v_lshlrev_b32 v5, 4, v5')
        a('v_add_u32 v4, v4, v5')
        a('s_mul_i32 s56, s31, 983040')
        a('s_mul_i32 s57, s35, 384')
        a('s_add_u32 s56, s56, s57')
        a('s_lshl_b32 s57, s38, 7')
        a('s_add_u32 s56, s56, s57')
        a('s_mul_i32 s57, s38, 10240')
        a(f's_add_u32 s57, s57, {L_UQ}')
        for i in range(10):
            a('s_mov_b32 m0, s57')
            a('s_add_u32 s57, s57, 1024')
            a(f'buffer_load_dwordx4 v4, s[44:47], s56 offen {ntw} lds')
            a('s_add_u32 s56, s56, 98304')
        a('s_barrier')
        a('s_waitcnt vmcnt(10)')
        a('s_branch L_aux_ln')
        self.label('L_aux_ffn_ld')
        a('s_cmp_ge_u32 s34, 16')
        a('s_cselect_b32 s56, s18, s16')
        a('s_cselect_b32 s57, s19, s17')
        self.srd(44, 56, WG_BYTES)
        def ffn_dma():
            for i in range(3):
                a(f'v_add_u32 v43, {64*i}, v0')
                a('v_mul_u32_u24 v44, 2731, v43')
                a('v_lshrrev_b32 v44, 16, v44')
                a('v_mul_u32_u24 v45, 24, v44')
                a('v_sub_u32 v43, v43, v45')
                a('v_mul_u32_u24 v44, 3072, v44')
                a('v_lshlrev_b32 v43, 4, v43')
                a(f'v_add_u32 v{40+i}, v43, v44')
            a('s_and_b32 s56, s34, 15')
            a('s_mul_i32 s56, s56, 122880')
            a('s_mul_i32 s57, s29, 384')
            a('s_add_u32 s56, s56, s57')
            a(f's_mov_b32 s57, {L_UF}')
            for i in range(15):
                a('s_mov_b32 m0, s57')
                a('s_add_u32 s57, s57, 1024')
                a(f'buffer_load_dwordx4 v{40+i%3}, s[44:47], s56 offen {ntw} lds')
                if i % 3 == 2:
                    a('s_add_u32 s56, s56, 24576')
        if not o['ffn_late']:
            ffn_dma()
            a('s_barrier')
            a('s_waitcnt vmcnt(15)')
        else:
            a('s_barrier')
            a('s_waitcnt vmcnt(0)')
        self.label('L_aux_ln')
        self.stamp(1)
        X = 20
        for k in range(10):
            a(f'v_lshlrev_b32 v{X+2*k}, 16, v{8+k}')
            a(f'v_and_b32 v{X+2*k+1}, 0xffff0000, v{8+k}')
        a(f'v_add_f32 v44, v{X}, v{X+1}')
        a(f'v_add_f32 v45, v{X+2}, v{X+3}')
        for k in range(2, 10):
            a(f'v_add_f32 v{44+k%2}, v{44+k%2}, v{X+2*k}')
            a(f'v_add_f32 v{44+k%2}, v{44+k%2}, v{X+2*k+1}')
        a('v_add_f32 v44, v44, v45')

        def red32(v):
            for ctrl in ('quad_perm:[1,0,3,2]', 'quad_perm:[2,3,0,1]', 'row_half_mirror', 'row_mirror'):
                a('s_nop 1')
                self.dpp('v_add_f32', v, v, v, ctrl)
            self.swap_reduce('v_add_f32', v, 47, 16)
        red32(44)
        a(f's_mov_b32 s56, {INV640}')
        a('v_mul_f32 v44, s56, v44')
        a('v_mov_b32 v45, 0')
        a('v_mov_b32 v46, 0')
        for k in range(20):
            a(f'v_sub_f32 v48, v{X+k}, v44')
            a(f'v_fmac_f32 v{45+k%2}, v48, v48')
        a('v_add_f32 v45, v45, v46')
        red32(45)
        a('v_mul_f32 v45, s56, v45')
        a('v_cvt_pk_bf16_f32 v46, v44, v45')
        a('v_lshlrev_b32 v44, 16, v46')
        a('v_and_b32 v45, 0xffff0000, v46')
        a(f'v_add_f32 v45, {EPS_BF}, v45')
        a('v_cvt_pk_bf16_f32 v45, v45, v45')
        a('v_and_b32 v45, 0xffff0000, v45')
        a('v_sqrt_f32 v45, v45')
        a('s_nop 0')
        a('v_cvt_pk_bf16_f32 v45, v45, v45')
        a('v_and_b32 v45, 0xffff0000, v45')
        a('v_rcp_f32 v45, v45')
        for k in range(10):
            a(f'v_sub_f32 v48, v{X+2*k}, v44')
            a(f'v_sub_f32 v49, v{X+2*k+1}, v44')
            a('v_cvt_pk_bf16_f32 v48, v48, v49')
            a('v_and_b32 v49, 0xffff0000, v48')
            a('v_lshlrev_b32 v48, 16, v48')
            a('v_mul_f32 v48, v48, v45')
            a('v_mul_f32 v49, v49, v45')
            a(f'v_cvt_pk_bf16_f32 v{8+k}, v48, v49')
        for k in range(5):
            a(f'ds_write_b64 v3, v[{8+2*k}:{9+2*k}] offset:{L_XN + 8*k}')
        a('v_and_b32 v4, 15, v0')
        a('v_lshrrev_b32 v5, 4, v0')
        a('v_and_b32 v6, 1, v0')
        a('v_mul_u32_u24 v6, 1280, v6')
        a('v_lshlrev_b32 v7, 4, v5')
        a('v_add_u32 v6, v6, v7')
        a('v_lshlrev_b32 v50, 3, v5')
        a('v_lshrrev_b32 v51, 2, v4')
        a('v_add_u32 v50, v50, v51')
        a('v_and_b32 v51, 3, v4')
        a('v_lshlrev_b32 v51, 3, v51')
        a('s_waitcnt lgkmcnt(0)')
        a('s_cmp_eq_u32 s38, 3')
        a('s_cbranch_scc1 L_aux_ffn')

        XB = 8
        a('s_mul_i32 s56, s31, 160')
        a('v_add_u32 v6, s56, v6')
        for t in range(3):
            a(f'ds_read_b128 v[{XB+4*t}:{XB+4*t+3}], v6 offset:{L_XN + 64*t}')
        a('s_mul_i32 s56, s38, 10240')
        a(f's_add_u32 s56, s56, {L_UQ}')
        a('v_lshlrev_b32 v52, 7, v50')
        a('v_add3_u32 v52, v52, v51, s56')
        a('v_cmp_le_u32 vcc, 2, v5')
        a('v_subrev_u32 v53, 2048, v52')
        a('s_nop 0')
        a('v_cndmask_b32 v53, v52, v53, vcc')
        ACC = 24
        for k in range(16):
            a(f'v_mov_b32 v{ACC+k}, 0')
        a('s_waitcnt lgkmcnt(0)')
        for r in range(4):
            a(f'v_cndmask_b32 v{XB+8+r}, v{XB+8+r}, 0, vcc')
        a('s_waitcnt vmcnt(0)')
        self.stamp(2)
        self.gemv_unit(W=56, XB=XB, ntile=4, nstep=3, lastvalid=2, addr=52, rowstride=128, tilebytes=32, acc=ACC)
        a('v_and_b32 v6, 1, v4')
        a('v_mul_u32_u24 v6, 12288, v6')
        a('v_lshrrev_b32 v7, 1, v4')
        a('v_lshl_add_u32 v7, v5, 1, v7')
        a('v_lshlrev_b32 v7, 4, v7')
        a('v_add_u32 v6, v6, v7')
        a('s_mul_i32 s56, s35, 24576')
        a('s_lshl_b32 s57, s38, 12')
        a('s_add_u32 s56, s56, s57')
        a('s_lshl_b32 s57, s31, 9')
        a('s_add_u32 s56, s56, s57')
        a(f's_add_u32 s56, s56, {WS_E1}')
        a('v_and_b32 v7, 2, v4')
        a('v_cmp_eq_u32 vcc, 2, v7')
        a('s_waitcnt lgkmcnt(0)')
        a('s_add_u32 s36, s36, 1')
        a('v_mov_b32 v10, s36')
        a('v_mov_b32 v11, s37')
        a('s_nop 7')
        a('s_mov_b64 s[84:85], exec')
        a('s_mov_b32 exec_lo, 0x000f000f')
        a('s_mov_b32 exec_hi, 0x000f000f')
        for tile in range(4):
            a(f'v_cndmask_b32 v8, v{ACC+4*tile}, v{ACC+4*tile+2}, vcc')
            a(f'v_cndmask_b32 v9, v{ACC+4*tile+1}, v{ACC+4*tile+3}, vcc')
            a(f'buffer_store_dwordx4 v[8:11], v6, s[52:55], s56 offen offset:{128*tile} sc1')
            a('s_nop 1')
        if o['smem']:
            a('s_mul_i32 s56, s35, 768')
            a('s_lshl_b32 s57, s38, 7')
            a('s_add_u32 s56, s56, s57')
            a('s_lshl_b32 s57, s31, 3')
            a('s_add_u32 s56, s56, s57')
            a(f's_add_u32 s56, s56, {WS_F1}')
            a('s_mov_b64 exec, 3')
            a('v_mul_u32_u24 v7, 384, v0')
            a('buffer_store_dwordx2 v[10:11], v7, s[52:55], s56 offen sc1')
        a('s_mov_b64 exec, s[84:85]')
        self.stamp(3)
        a('s_mul_i32 s56, s35, 24576')
        a('s_mul_i32 s57, s32, 12288')
        a('s_add_u32 s56, s56, s57')
        a('s_lshl_b32 s57, s38, 12')
        a('s_add_u32 s56, s56, s57')
        a(f's_add_u32 s56, s56, {WS_E1}')
        a(f's_mov_b32 s80, {o["spin"]}')
        if o['smem']:
            a('s_mul_i32 s57, s35, 768')
            a('s_mul_i32 s58, s32, 384')
            a('s_add_u32 s57, s57, s58')
            a('s_lshl_b32 s58, s38, 7')
            a('s_add_u32 s57, s57, s58')
            a(f's_add_u32 s57, s57, {WS_F1}')
            a('s_add_u32 s58, s26, s57')
            a('s_addc_u32 s59, s27, 0')
            self.smem_poll(58, 8, o['psleep'])
        elif o['sent']:
            a('v_lshlrev_b32 v6, 9, v0')
            a('v_add_u32 v6, 496, v6')
            a('s_mov_b64 exec, 0xff')
            self.label('L_q_sent')
            a('buffer_load_dwordx4 v[24:27], v6, s[52:55], s56 offen sc1')
            a('s_waitcnt vmcnt(0)')
            self.poll_check([24], 'L_q_sent', sleep=o['psleep'])
            a('s_mov_b64 exec, -1')
        a('v_lshlrev_b32 v6, 4, v0')
        self.label('L_q_poll')
        for i in range(4):
            a(f'buffer_load_dwordx4 v[{24+4*i}:{27+4*i}], v6, s[52:55], s56 offen offset:{1024*i} sc1')
        a('s_waitcnt vmcnt(0)')
        self.poll_check([24, 28, 32, 36], 'L_q_poll')
        a('v_add_f32 v24, v24, v28')
        a('v_add_f32 v25, v25, v29')
        a('v_add_f32 v32, v32, v36')
        a('v_add_f32 v33, v33, v37')
        a('v_add_f32 v24, v24, v32')
        a('v_add_f32 v25, v25, v33')
        self.swap_reduce('v_add_f32', 24, 26, 32)
        self.swap_reduce('v_add_f32', 25, 26, 32)
        a('v_cvt_pk_bf16_f32 v24, v24, v25')
        a('v_and_b32 v6, 31, v0')
        a('v_lshlrev_b32 v6, 2, v6')
        a('s_lshl_b32 s57, s38, 7')
        a('v_add_u32 v6, s57, v6')
        a(f'ds_write_b32 v6, v24 offset:{L_Q}')
        if o['dbg']:
            a('s_lshl_b32 s56, s2, 9'); a(f's_add_u32 s56, s56, {WS_DBG}')
            a('buffer_store_dword v24, v6, s[52:55], s56 offen')
        if o['nlate'] or o['fwait']:
            a('v_mov_b32 v7, 0')
            a(f'ds_write_b32 v7, v7 offset:{L_FLAG+16}')
            a(f'ds_write_b32 v7, v7 offset:{L_FLAG}')
            a(f'ds_write_b32 v7, v7 offset:{L_FLAG+4}')
            a(f'ds_write_b32 v7, v7 offset:{L_FLAG+8}')
            a(f'ds_write_b32 v7, v7 offset:{L_FLAG+12}')
        a('s_waitcnt lgkmcnt(0)')
        self.stamp(4)
        a('s_barrier')
        self.tmark(1)
        self.wb_setup()
        self.wb_early()
        self.tail_prep(aux=True)
        if o['ctrl']:
            self.controller()
        if o['nlate']:
            a('s_branch L_wlate')
        a('s_waitcnt vmcnt(0)')
        a('s_branch L_tail')

        self.label('L_aux_ffn')
        a('s_and_b32 s56, s34, 15')
        a('s_mul_i32 s56, s56, 80')
        a('v_add_u32 v6, s56, v6')
        for t in range(2):
            a(f'ds_read_b128 v[{XB+4*t}:{XB+4*t+3}], v6 offset:{L_XN + 64*t}')
        a('v_mul_u32_u24 v52, 384, v50')
        a(f'v_add_u32 v52, {L_UF}, v52')
        a('v_add_u32 v52, v52, v51')
        a('v_lshrrev_b32 v53, 2, v4')
        a('v_mul_u32_u24 v53, 384, v53')
        a(f'v_add_u32 v53, {L_UF}, v53')
        a('v_add_u32 v53, v53, v51')
        a('v_cmp_le_u32 vcc, 1, v5')
        FACC = 64
        for k in range(48):
            a(f'v_mov_b32 v{FACC+k}, 0')
        a('s_waitcnt lgkmcnt(0)')
        for r in range(4):
            a(f'v_cndmask_b32 v{XB+4+r}, v{XB+4+r}, 0, vcc')
        if o['ffn_late']:
            a('s_barrier')
            if o['skipffn']:
                a('s_add_u32 s36, s36, 1')
                self.tail_prep(aux=True)
                a('s_branch L_tail')
            ffn_dma()
        a('s_waitcnt vmcnt(0)')
        self.gemv_unit(W=24, XB=XB, ntile=12, nstep=2, lastvalid=1, addr=52, rowstride=384, tilebytes=32, acc=FACC)
        a('v_and_b32 v6, 1, v4')
        a('v_mul_u32_u24 v6, 192, v6')
        a('v_lshlrev_b32 v7, 4, v5')
        a('v_add_u32 v6, v6, v7')
        a('s_mul_i32 s56, s29, 49152')
        a('s_mul_i32 s57, s34, 384')
        a('s_add_u32 s56, s56, s57')
        a(f's_add_u32 s56, s56, {WS_E2}')
        a('s_add_u32 s36, s36, 1')
        a('s_nop 7')
        a('s_mov_b32 exec_lo, 0x00030003')
        a('s_mov_b32 exec_hi, 0x00030003')
        for tile in range(12):
            r = tile // 3
            if tile % 3 == 0 and tile:
                a('s_add_u32 s56, s56, 12288')
            a(f'buffer_store_dwordx4 v[{FACC+4*tile}:{FACC+4*tile+3}], v6, s[52:55], s56 offen offset:{64*(tile%3)} sc1')
        a('s_mov_b64 exec, -1')
        if not o['ffn_late']:
            a('s_barrier')
        a('s_waitcnt vmcnt(0)')
        a('v_mov_b32 v8, s36')
        a('v_mov_b32 v9, s37')
        a('s_lshl_b32 s56, s29, 8')
        a('s_lshl_b32 s57, s34, 3')
        a('s_add_u32 s57, s57, s56')
        a(f's_add_u32 s57, s57, {WS_E2F}')
        a(f's_add_u32 s56, s56, {WS_E2F}')
        a('v_mov_b32 v10, 0')
        a('s_mov_b64 exec, 1')
        a('buffer_store_dwordx2 v[8:9], v10, s[52:55], s57 offen sc1')
        a('s_mov_b64 exec, -1')
        a(f's_mov_b32 s80, {o["spin"]}')
        if o['fwait']:
            lab, go = self.newlab('L_fw'), self.newlab('L_fg')
            a('v_mov_b32 v12, 0')
            self.label(lab)
            a(f'ds_read_b32 v13, v12 offset:{L_FLAG+16}')
            a('s_waitcnt lgkmcnt(0)')
            a('v_readfirstlane_b32 s57, v13')
            a('s_cmp_ge_u32 s57, 1')
            a(f's_cbranch_scc1 {go}')
            a('s_sleep 8')
            a(f's_branch {lab}')
            self.label(go)
        if o['smem']:
            a('s_add_u32 s58, s26, s56')
            a('s_addc_u32 s59, s27, 0')
            for c4 in range(4):
                self.smem_poll(58, 8, o['fsleep'])
                if c4 < 3:
                    a('s_add_u32 s58, s58, 64')
                    a('s_addc_u32 s59, s59, 0')
        else:
            a('v_and_b32 v10, 31, v0')
            a('v_lshlrev_b32 v10, 3, v10')
            self.label('L_f_poll')
            a('buffer_load_dwordx2 v[14:15], v10, s[52:55], s56 offen sc1')
            a('s_waitcnt vmcnt(0)')
            self.poll_check([12], 'L_f_poll')
        a('v_and_b32 v10, 31, v0')
        a('v_min_u32 v11, 23, v10')
        a('v_lshlrev_b32 v11, 4, v11')
        a('v_lshrrev_b32 v12, 5, v0')
        a('v_mul_u32_u24 v12, 6144, v12')
        a('v_add_u32 v11, v11, v12')
        a('s_mul_i32 s56, s29, 49152')
        a('s_mul_i32 s57, s30, 12288')
        a('s_add_u32 s56, s56, s57')
        a(f's_add_u32 s56, s56, {WS_E2}')
        for i in range(16):
            a(f'buffer_load_dwordx4 v[{64+4*i}:{67+4*i}], v11, s[52:55], s56 offen offset:{384*(i%8)} sc1')
            if i == 7:
                a('s_add_u32 s56, s56, 3072')
        a('s_waitcnt vmcnt(0)')
        for i in range(1, 16):
            for r in range(4):
                a(f'v_add_f32 v{64+r}, v{64+r}, v{64+4*i+r}')
        a('v_cvt_pk_bf16_f32 v64, v64, v65')
        a('v_cvt_pk_bf16_f32 v65, v66, v67')
        a('v_mov_b32 v68, v64')
        a('v_mov_b32 v69, v65')
        a('s_nop 1')
        a('v_permlane32_swap_b32 v64, v68')
        a('v_permlane32_swap_b32 v65, v69')
        for p in range(2):
            g, u = 64 + p, 68 + p
            a(f'v_lshlrev_b32 v72, 16, v{g}')
            a(f'v_and_b32 v73, 0xffff0000, v{g}')
            for t in (72, 73):
                a(f'v_mul_f32 v74, {0xBFB8AA3B}, v{t}')
                a('v_exp_f32 v74, v74')
                a('s_nop 0')
                a('v_add_f32 v74, 1.0, v74')
                a('v_rcp_f32 v74, v74')
                a('s_nop 0')
                a(f'v_mul_f32 v{t}, v{t}, v74')
            a('v_cvt_pk_bf16_f32 v72, v72, v73')
            a('v_and_b32 v73, 0xffff0000, v72')
            a('v_lshlrev_b32 v72, 16, v72')
            a(f'v_and_b32 v75, 0xffff0000, v{u}')
            a(f'v_lshlrev_b32 v74, 16, v{u}')
            a('v_mul_f32 v72, v72, v74')
            a('v_mul_f32 v73, v73, v75')
            a(f'v_cvt_pk_bf16_f32 v{76+p}, v72, v73')
        a('v_cmp_le_u32 vcc, 12, v10')
        a('v_subrev_u32 v11, 12, v10')
        a('s_nop 0')
        a('v_cndmask_b32 v11, v10, v11, vcc')
        a('v_lshlrev_b32 v11, 3, v11')
        a('v_add_u32 v12, 128, v11')
        a('v_cndmask_b32 v11, v11, v12, vcc')
        a('v_subrev_u32 v12, 24, v10')
        a('v_lshrrev_b32 v13, 2, v12')
        a('v_lshlrev_b32 v13, 7, v13')
        a('v_and_b32 v12, 3, v12')
        a('v_lshl_add_u32 v12, v12, 3, v13')
        a('v_add_u32 v12, 96, v12')
        a('v_cmp_le_u32 vcc, 24, v10')
        a('s_nop 1')
        a('v_cndmask_b32 v11, v11, v12, vcc')
        a('v_cndmask_b32 v76, v76, 0, vcc')
        a('v_cndmask_b32 v77, v77, 0, vcc')
        a('s_mov_b32 exec_hi, 0')
        a(f'ds_write_b64 v11, v[76:77] offset:{L_HV}')
        a('s_mov_b64 exec, -1')
        a('s_waitcnt lgkmcnt(0)')
        self.stamp(4)
        self.tail_prep(aux=True)
        if o['nlate']:
            self.wb_setup()
            self.label('L_wlate')
            self.wb_late()
            a('s_waitcnt vmcnt(0)')
            a('s_branch L_bar3b')
        a('s_branch L_tail')

    def controller(self):
        o = self.opt; a = self.a
        skip = self.newlab('L_ct')
        a('s_cmp_lg_u32 s38, 2')
        a(f's_cbranch_scc1 {skip}')
        pat = {0: 0, 1: 0b000001, 2: 0b001001, 3: 0b010101, 4: 0b011011, 5: 0b011111, 6: 0b111111}
        parts = o['cpart']
        for j, px in enumerate(parts):
            a(f's_xor_b32 s56, s2, {px}')
            a('s_lshl_b32 s56, s56, 7')
            a(f's_add_u32 s56, s56, {WS_PR}')
            a(f's_add_u32 s{8+2*j}, s26, s56')
            a(f's_addc_u32 s{9+2*j}, s27, 0')
        a('s_lshl_b32 s63, s2, 7')
        a(f's_add_u32 s63, s63, {WS_PR}')
        for k, ck in enumerate(o['ctrl']):
            lab, go, done = self.newlab('L_cw'), self.newlab('L_cg'), self.newlab('L_cd')
            self.label(lab)
            a(f'ds_read_b32 v5, v240 offset:{L_FLAG+8}')
            a('s_waitcnt lgkmcnt(0)')
            a('v_readfirstlane_b32 s56, v5')
            a(f's_cmp_ge_u32 s56, {4*k + 2}')
            a(f's_cbranch_scc1 {go}')
            a('s_sleep 4')
            a(f's_branch {lab}')
            self.label(go)
            a('s_memrealtime s[60:61]')
            if k:
                for j in range(len(parts)):
                    a(f's_load_dwordx2 s[{16+2*j}:{17+2*j}], s[{8+2*j}:{9+2*j}], {8*(k-1)} glc')
            a('s_waitcnt lgkmcnt(0)')
            a('s_mov_b64 exec, 1')
            a('v_mov_b32 v6, s60')
            a('v_mov_b32 v7, s36')
            a(f'buffer_store_dwordx2 v[6:7], v240, s[52:55], s63 offen offset:{8*k} sc1')
            if k:
                a('s_mov_b32 s56, 0')
                a('s_sub_u32 s57, s93, s60')
                for j in range(len(parts)):
                    a(f's_sub_u32 s58, s93, s{16+2*j}')
                    a(f's_cmp_eq_u32 s{17+2*j}, s36')
                    a('s_cselect_b32 s58, s58, s57')
                    a('s_add_u32 s56, s56, s58')
                trem = (32 - ck) * 85
                kk = int(round(6 * o['WL'] * o['cgain'] / trem / len(parts) * 65536))
                a(f's_mul_i32 s56, s56, {kk}')
                a('s_add_u32 s56, s56, 32768')
                a('s_ashr_i32 s56, s56, 16')
                for lv in range(-o['cmin'], o['cmax'] + 1):
                    bits = pat[lv] if lv >= 0 else pat[-lv] << 8
                    a(f's_mov_b32 s57, {bits}')
                    if lv < o['cmax']:
                        a(f's_cmp_le_i32 s56, {lv}')
                        a(f's_cbranch_scc1 {done}')
                self.label(done)
                a('v_mov_b32 v5, s57')
                a(f'ds_write_b32 v240, v5 offset:{L_FLAG+12}')
            a('s_mov_b32 s93, s60')
            a('s_mov_b64 exec, -1')
        self.label(skip)

    def wb_setup(self):
        a = self.a
        for i in range(5):
            a(f'v_add_u32 v5, {64*i}, v0')
            a('v_mul_u32_u24 v6, 6554, v5')
            a('v_lshrrev_b32 v6, 16, v6')
            a('v_mul_u32_u24 v7, 10, v6')
            a('v_sub_u32 v5, v5, v7')
            a('v_mul_u32_u24 v6, 1280, v6')
            a('v_lshlrev_b32 v5, 4, v5')
            a(f'v_add_u32 v{40+i}, v5, v6')
        self.srd(48, 12, WO_BYTES)
        self.srd(88, 20, WD_BYTES)

    def wb_period(self, preg):
        o = self.opt; a = self.a
        a('s_mul_i32 s56, s35, 245760')
        a('s_mul_i32 s57, s31, 160')
        a('s_add_u32 s56, s56, s57')
        a(f's_mul_i32 s57, {preg}, 40960')
        a('s_add_u32 s56, s56, s57')
        a(f's_mul_i32 s57, {preg}, 5120')
        a(f's_add_u32 s57, s57, {L_WB}')
        for i in range(5):
            a('s_mov_b32 m0, s57')
            a('s_add_u32 s57, s57, 1024')
            a(f'buffer_load_dwordx4 v{40+i}, s[48:51], s56 offen {o["ntwb"]} lds')

    def wb_early(self):
        o = self.opt; a = self.a
        nearly = 6 - o['nlate']
        for t in range((nearly + 2) // 3):
            lab = self.newlab('L_we')
            a(f's_add_u32 s58, s38, {3*t}')
            a(f's_cmp_lt_u32 s58, {nearly}')
            a(f's_cbranch_scc0 {lab}')
            self.wb_period('s58')
            self.label(lab)
        a('s_mul_i32 s56, s35, 61440')
        a('s_mul_i32 s57, s31, 160')
        a('s_add_u32 s56, s56, s57')
        lab0, lab1, labd = self.newlab('L_wd'), self.newlab('L_wd'), self.newlab('L_wd')
        a('s_cmp_eq_u32 s38, 0'); a(f's_cbranch_scc1 {lab0}')
        a('s_cmp_eq_u32 s38, 1'); a(f's_cbranch_scc1 {lab1}')

        def dma(i):
            a(f's_mov_b32 m0, {L_WD + 1024*i}')
            a(f's_add_u32 s57, s56, {40960*(i//5)}')
            a(f'buffer_load_dwordx4 v{40+i%5}, s[88:91], s57 offen {o["ntwb"]} lds')
        dma(6); dma(7); a(f's_branch {labd}')
        self.label(lab0); dma(0); dma(1); dma(2); a(f's_branch {labd}')
        self.label(lab1); dma(3); dma(4); dma(5)
        self.label(labd)

    def wb_late(self):
        o = self.opt; a = self.a
        nlate = o['nlate']
        lab, labd0 = self.newlab('L_ww'), self.newlab('L_wv')
        self.label(lab)
        a(f'ds_read_b32 v5, v240 offset:{L_FLAG}')
        a('s_waitcnt lgkmcnt(0)')
        a('v_readfirstlane_b32 s56, v5')
        a(f's_cmp_ge_u32 s56, {o["wtrig"]}')
        a(f's_cbranch_scc1 {labd0}')
        a('s_sleep 2')
        a(f's_branch {lab}')
        self.label(labd0)
        self.stamp(11)
        for t in range((nlate + 3) // 4):
            lab = self.newlab('L_wl')
            a(f's_add_u32 s58, s38, {4*t}')
            a(f's_cmp_lt_u32 s58, {nlate}')
            a(f's_cbranch_scc0 {lab}')
            a(f's_add_u32 s58, s58, {6 - nlate}')
            self.wb_period('s58')
            self.label(lab)

    def tail_prep(self, aux):
        o = self.opt; a = self.a
        self.c('---- tail constants ----')
        a('v_mov_b32 v238, s36')
        a('v_mov_b32 v239, s37')
        a('v_mov_b32 v240, 0')
        a('v_mov_b32 v241, 1')
        a('s_lshl_b32 s64, s28, 6')
        a('v_add_u32 v225, s64, v0')
        a('v_mov_b32 v224, 96')
        a('v_cmp_eq_u32 vcc, v224, v225')
        a('s_mov_b64 s[74:75], vcc')
        a('v_cmp_ge_u32 vcc, v224, v225')
        a('s_mov_b64 s[72:73], vcc')
        a('v_min_u32 v224, 95, v225')
        a('v_lshlrev_b32 v224, 3, v224')
        a('v_lshlrev_b32 v225, 4, v225')
        a('s_lshl_b32 s64, s35, 3')
        a('s_add_u32 s64, s64, s31')
        a('s_lshl_b32 s64, s64, 11')
        a(f's_add_u32 s64, s64, {WS_E3}')
        a('s_sub_u32 s65, s28, 2')
        a('s_cmp_ge_i32 s65, 3')
        a('s_cselect_b32 s66, 1, 0')
        a('s_mul_i32 s67, s66, 3')
        a('s_sub_u32 s67, s65, s67')
        a('v_lshrrev_b32 v227, 5, v0')
        a('v_lshlrev_b32 v227, 11, v227')
        a('v_and_b32 v228, 31, v0')
        a('s_lshl_b32 s68, s67, 5')
        a('v_add_u32 v226, s68, v228')
        a('v_lshl_add_u32 v226, v226, 4, v227')
        a('v_add_u32 v227, 1536, v227')
        a('s_mul_i32 s68, s66, 384')
        a('s_lshl_b32 s69, s67, 7')
        a('s_add_u32 s68, s68, s69')
        a(f's_add_u32 s68, s68, {L_ON}')
        a('v_lshl_add_u32 v228, v228, 2, s68')
        a('s_lshl_b32 s65, s35, 3')
        a('s_lshl_b32 s66, s66, 2')
        a('s_add_u32 s65, s65, s66')
        a('s_lshl_b32 s65, s65, 11')
        a(f's_add_u32 s65, s65, {WS_E3}')
        a('s_add_u32 s66, s65, 4096')
        a('v_and_b32 v234, 15, v0')
        a('v_lshrrev_b32 v235, 4, v0')
        a('v_and_b32 v236, 1, v0')
        a('v_lshlrev_b32 v237, 4, v235')
        a('v_mul_u32_u24 v229, 384, v236')
        a('v_add_u32 v229, v229, v237')
        a(f'v_add_u32 v229, {L_ON}, v229')
        a('v_lshlrev_b32 v230, 7, v236')
        a('v_add_u32 v230, v230, v237')
        a(f'v_add_u32 v230, {L_HV}, v230')
        a('v_lshlrev_b32 v231, 3, v235')
        a('v_lshrrev_b32 v232, 2, v234')
        a('v_add_u32 v231, v231, v232')
        a('v_mul_u32_u24 v231, 160, v231')
        a('v_and_b32 v232, 3, v234')
        a('v_lshlrev_b32 v232, 3, v232')
        a('s_lshl_b32 s67, s28, 5')
        a('v_add3_u32 v231, v231, v232, s67')
        a(f'v_add_u32 v231, {L_WB}, v231')
        a('v_cmp_le_u32 vcc, 2, v235')
        a('v_subrev_u32 v232, 2560, v231')
        a('s_nop 0')
        a('v_cndmask_b32 v232, v231, v232, vcc')
        a('v_and_b32 v233, 1, v235')
        a('v_mul_u32_u24 v233, 40960, v233')
        a('v_lshl_add_u32 v233, v234, 4, v233')
        a('v_and_b32 v237, 16, v0')
        a('v_cmp_eq_u32 vcc, 16, v237')
        a('s_mov_b64 s[76:77], vcc')
        a('s_mul_i32 s67, s31, 10')
        a('s_add_u32 s67, s67, s28')
        a('s_lshl_b32 s67, s67, 13')
        a('s_lshl_b32 s68, s35, 8')
        a('s_add_u32 s67, s67, s68')
        a(f's_add_u32 s67, s67, {WS_E4}')
        if aux:
            a('s_cmp_ge_u32 s35, 5')
            a('s_cselect_b32 s69, 1, 0')
            a('s_mul_i32 s70, s69, 5')
            a('s_sub_u32 s70, s35, s70')
            a('s_lshl_b32 s68, s31, 1')
            a('s_add_u32 s68, s68, s69')
            a('s_mul_i32 s68, s68, 5')
            a('s_add_u32 s68, s68, s70')
            a('s_lshl_b32 s68, s68, 13')
            a(f's_add_u32 s68, s68, {WS_E4}')
            a('s_mul_i32 s69, s69, 1280')
            a('s_mul_i32 s71, s31, 160')
            a('s_add_u32 s69, s69, s71')
            a('s_lshl_b32 s70, s70, 5')
            a('s_add_u32 s70, s69, s70')
            a('s_add_u32 s69, s68, 4096')
            self.srd(40, 4, X_BYTES)
            self.srd(44, 22, X_BYTES)
            a('v_lshlrev_b32 v235, 1, v234')
            a('v_lshlrev_b32 v234, 4, v0')
            a('buffer_load_ushort v236, v235, s[40:43], s70 offen')
            a('s_waitcnt vmcnt(0)')
            a('v_lshlrev_b32 v236, 16, v236')
        a(f's_mov_b32 s80, {o["spin"]}')
        a(f's_mov_b32 s62, {LOG2E}')

    def gemv_pre(self):
        a = self.a
        for t in range(2):
            a(f'ds_read_b128 v[{40+4*t}:{43+4*t}], v230 offset:{64*t}')
        a(f'ds_read_b64_tr_b16 v[72:73], v231 offset:{L_WD - L_WB}')
        a(f'ds_read_b64_tr_b16 v[74:75], v231 offset:{L_WD - L_WB + 640}')
        a(f'ds_read_b64_tr_b16 v[76:77], v232 offset:{L_WD - L_WB + 5120}')
        a(f'ds_read_b64_tr_b16 v[78:79], v232 offset:{L_WD - L_WB + 5120 + 640}')
        for t in range(6):
            a(f'ds_read_b64_tr_b16 v[{48+4*t}:{49+4*t}], v231 offset:{5120*t}')
            a(f'ds_read_b64_tr_b16 v[{50+4*t}:{51+4*t}], v231 offset:{5120*t + 640}')
        for k in (4, 5, 6, 7, 0, 1, 2, 3):
            a(f'v_mov_b32 v{80+k}, 0')
        a('s_waitcnt lgkmcnt(12)')
        for t in range(2):
            a(f'v_mfma_f32_16x16x32_bf16 v[84:87], v[{40+4*t}:{43+4*t}], v[{72+4*t}:{75+4*t}], v[84:87]')
        a('s_waitcnt lgkmcnt(0)')

    def tail(self):
        o = self.opt; a = self.a
        self.c('==== tail (all waves) ====')
        if o['noaux']:
            a('s_barrier'); a('s_barrier'); a('s_branch L_end')
        if not o['nlate']:
            a('s_barrier')
            self.stamp(5)
            a('s_cmp_ge_u32 s28, 2')
            a('s_cbranch_scc1 L_gather')
        else:
            a('s_cmp_ge_u32 s28, 2')
            a('s_cbranch_scc1 L_bar3b')
            self.label('L_pw')
            a(f'ds_read_b32 v8, v240 offset:{L_FLAG+4}')
            a('s_waitcnt lgkmcnt(0)')
            a('v_readfirstlane_b32 s56, v8')
            a('s_cmp_ge_u32 s56, 4')
            a('s_cbranch_scc0 L_pw')
            self.stamp(5)
        a(f'ds_read_b128 v[24:27], v240 offset:{L_ML}')
        a(f'ds_read_b128 v[28:31], v240 offset:{L_ML+16}')
        for cidx in range(8):
            a(f'ds_read_b64 v[{8+2*cidx}:{9+2*cidx}], v224 offset:{L_OL + 768*cidx}')
        a('s_waitcnt lgkmcnt(8)')
        a('v_max3_f32 v32, v24, v25, v26')
        a('v_max_f32 v32, v32, v27')
        for w in range(4):
            a(f'v_sub_f32 v{24+w}, v{24+w}, v32')
        for w in range(4):
            a(f'v_mul_f32 v{24+w}, s62, v{24+w}')
        for w in range(4):
            a(f'v_exp_f32 v{24+w}, v{24+w}')
        a('s_waitcnt lgkmcnt(0)')
        for w in range(4):
            a(f'v_add_f32 v{8+4*w}, v{8+4*w}, v{10+4*w}')
            a(f'v_add_f32 v{9+4*w}, v{9+4*w}, v{11+4*w}')
        a('v_mul_f32 v33, v24, v28')
        a('v_mul_f32 v236, v24, v8')
        a('v_mul_f32 v237, v24, v9')
        for w in range(1, 4):
            a(f'v_fmac_f32 v33, v{24+w}, v{28+w}')
            a(f'v_fmac_f32 v236, v{24+w}, v{8+4*w}')
            a(f'v_fmac_f32 v237, v{24+w}, v{9+4*w}')
        a('v_cndmask_b32 v236, v236, v32, s[74:75]')
        a('v_cndmask_b32 v237, v237, v33, s[74:75]')
        a('s_mov_b64 exec, s[72:73]')
        a('buffer_store_dwordx4 v[236:239], v225, s[52:55], s64 offen sc1')
        a('s_mov_b64 exec, -1')
        self.stamp(6)
        if o['nlate']:
            a('s_barrier')
            self.stamp(10)
        self.gemv_pre()
        a('s_branch L_bar4')
        self.label('L_gather')

        def o_loads():
            a('buffer_load_dwordx4 v[8:11], v226, s[52:55], s65 offen sc1')
            a('buffer_load_dwordx4 v[12:15], v226, s[52:55], s66 offen sc1')
            a('buffer_load_dwordx4 v[16:19], v227, s[52:55], s65 offen sc1')
            a('buffer_load_dwordx4 v[20:23], v227, s[52:55], s66 offen sc1')
        if o['nlate']:
            self.label('L_bar3b')
            a('s_barrier')
        o_loads()
        a('s_cmp_ge_u32 s28, 5')
        a('s_cbranch_scc1 L_o_wait')
        self.gemv_pre()
        a('s_branch L_o_wait')
        self.label('L_o_poll')
        o_loads()
        self.label('L_o_wait')
        a('s_waitcnt vmcnt(0)')
        self.poll_check([8, 12, 16, 20], 'L_o_poll', sleep=o['tsleep'])
        self.stamp(6)
        a('v_max_f32 v24, v16, v20')
        self.swap_reduce('v_max_f32', 24, 25, 32)
        a('v_sub_f32 v16, v16, v24')
        a('v_sub_f32 v20, v20, v24')
        a('v_mul_f32 v16, s62, v16')
        a('v_mul_f32 v20, s62, v20')
        a('v_exp_f32 v16, v16')
        a('v_exp_f32 v20, v20')
        a('s_nop 0')
        a('v_mul_f32 v26, v16, v17')
        a('v_mul_f32 v27, v16, v8')
        a('v_mul_f32 v28, v16, v9')
        a('v_fmac_f32 v26, v20, v21')
        a('v_fmac_f32 v27, v20, v12')
        a('v_fmac_f32 v28, v20, v13')
        a('v_mov_b32 v29, v26')
        a('v_mov_b32 v30, v27')
        a('v_mov_b32 v31, v28')
        a('s_nop 0')
        a('v_permlane32_swap_b32 v26, v29')
        a('v_permlane32_swap_b32 v27, v30')
        a('v_permlane32_swap_b32 v28, v31')
        a('v_add_f32 v26, v26, v29')
        a('v_add_f32 v27, v27, v30')
        a('v_add_f32 v28, v28, v31')
        a('v_rcp_f32 v26, v26')
        a('s_nop 0')
        a('v_mul_f32 v27, v27, v26')
        a('v_mul_f32 v28, v28, v26')
        a('v_cvt_pk_bf16_f32 v27, v27, v28')
        a('ds_write_b32 v228, v27')
        if o['dbg']:
            a('s_lshl_b32 s60, s2, 10'); a(f's_add_u32 s60, s60, {WS_DBG + 0x40000 - L_ON}')
            a('buffer_store_dword v27, v228, s[52:55], s60 offen')
        a('s_waitcnt lgkmcnt(0)')
        self.label('L_bar4')
        a('s_barrier')
        self.stamp(7)
        a('s_cmp_ge_u32 s28, 5')
        a('s_cbranch_scc1 L_reduce')
        for t in range(6):
            a(f'ds_read_b128 v[{16+4*t}:{19+4*t}], v229 offset:{64*t}')
        for t in range(6):
            a(f's_waitcnt lgkmcnt({5-t})')
            a(f'v_mfma_f32_16x16x32_bf16 v[80:83], v[{16+4*t}:{19+4*t}], v[{48+4*t}:{51+4*t}], v[80:83]')
        a('v_cndmask_b32 v237, v84, v85, s[76:77]')
        a('s_mov_b32 exec_hi, 0')
        a('s_nop 5')
        a('v_cndmask_b32 v236, v80, v81, s[76:77]')
        a('buffer_store_dwordx4 v[236:239], v233, s[52:55], s67 offen sc1')
        self.stamp(8)
        a('s_branch L_end')
        self.label('L_reduce')
        a('s_cmp_lg_u32 s28, 5')
        a('s_cbranch_scc1 L_end')
        a('s_cmp_ge_u32 s35, 10')
        a('s_cbranch_scc1 L_end')
        self.label('L_r_poll')
        for i in range(8):
            so = 's68' if i < 4 else 's69'
            a(f'buffer_load_dwordx4 v[{8+4*i}:{11+4*i}], v234, s[52:55], {so} offen offset:{1024*(i%4)} sc1')
        a('s_waitcnt vmcnt(0)')
        self.poll_check([8 + 4 * i for i in range(8)], 'L_r_poll', sleep=o['tsleep'])
        for i in range(1, 8):
            a(f'v_add_f32 v8, v8, v{8+4*i}')
            a(f'v_add_f32 v9, v9, v{9+4*i}')
        for which in (16, 32):
            a('v_mov_b32 v10, v8')
            a('v_mov_b32 v11, v9')
            a('s_nop 0')
            a(f'v_permlane{which}_swap_b32 v8, v10')
            a(f'v_permlane{which}_swap_b32 v9, v11')
            a('v_add_f32 v8, v8, v10')
            a('v_add_f32 v9, v9, v11')
        a('v_cvt_pk_bf16_f32 v8, v8, v9')
        a('v_lshlrev_b32 v9, 16, v8')
        a('v_add_f32 v9, v236, v9')
        a('v_cvt_pk_bf16_f32 v9, v9, v9')
        a('v_lshlrev_b32 v9, 16, v9')
        a('v_and_b32 v8, 0xffff0000, v8')
        a('v_add_f32 v9, v9, v8')
        a('v_cvt_pk_bf16_f32 v9, v9, v9')
        a('s_mov_b64 exec, 0xffff')
        a('buffer_store_short v9, v235, s[44:47], s70 offen')
        a('s_cmp_lg_u32 s35, 0'); a('s_cbranch_scc1 L_end')
        a('s_cmp_lg_u32 s31, 0'); a('s_cbranch_scc1 L_end')
        a('s_mov_b64 exec, 1')
        a(f'buffer_store_dwordx2 v[238:239], v240, s[52:55], 0 offen offset:{WS_EPOCH} sc1')
        self.stamp(9)


if __name__ == '__main__':
    opts = {}
    for arg in sys.argv[2:]:
        k, v = arg.split('=')
        try:
            v = eval(v)
        except Exception:
            pass
        opts[k] = v
    src = Gen(**opts).build()
    open(sys.argv[1], 'w').write(src)
    print('wrote', sys.argv[1], len(src), 'bytes')
```

```python
import sys

NAME = 'parallel_sum__mha_block_cached__swiglu_ffn__decode_kernel'

D = 640; H = 32; SK = 4096; DH = 192; F = 1536
K_BYTES = 2 * H * SK * DH * 2
WQ_BYTES = D * H * DH * 2
WO_BYTES = H * DH * D * 2
WG_BYTES = D * F * 2
WD_BYTES = F * D * 2
X_BYTES = 2 * D * 2

WS_EPOCH = 0
WS_E1 = 0x10000
WS_F1 = 0xD8000
WS_E2F = 0xD0000
WS_E2 = 0xE0000
WS_E3 = 0x140000
WS_E4 = 0x1C0000
WS_USED = 0x260000
WS_PR = 0x270000
WS_DBG = 0x300000
WS_SRD_BYTES = 0x800000

L_XN = 0
L_Q = 2560
L_HV = 2944
L_ON = 3200
L_ML = 3968
L_FLAG = 4032
L_OL = 4096
L_UQ = 10240
L_UF = 40960
L_WB = 56320
L_WD = 87040
LDS_BYTES = 95232

LOG2E = 0x3FB8AA3B
SCALE = 0x3D93CD3A
INV640 = 0x3ACCCCCD
EPS_BF = 0x37280000


class Gen:
    def __init__(self, **opt):
        self.L = []
        self.opt = dict(NP=4, WL=5, gran=1, ntk='nt', ntv='nt', ntw='nt', dbg=False, spin=1 << 16, stamps=False, dbgtime=False, noaux=False, sent=True, psleep=4, ffn_late=True, skipffn=False, skipw=False, smem=True, fsleep=16, tsleep=0, wend=8, wendn=4, whalf=False, nlate=0, wtrig=4, wearly=0, ntwb='', prog=False, ctrl=None, cgain=1, catom='noret', fwait=10, cpart=[1,2,4,7], cmax=3, cmin=3, cstep=1, rot=None, inter=0, local=True, rsleep=0, e4ld='sc1', e4st='sc1', e3ld='sc1', r160=True)
        self.opt.update(opt)
        self.lab = 0
        self.ool = []

    def a(self, s):
        self.L.append('  ' + s)

    def label(self, s):
        self.L.append(s + ':')

    def newlab(self, p='L'):
        self.lab += 1
        return f'{p}_{self.lab}'

    def c(self, s):
        self.L.append('  ; ' + s)

    def srd(self, r, base, nbytes):
        self.a(f's_mov_b32 s{r}, s{base}')
        self.a(f's_and_b32 s{r+1}, s{base+1}, 0xffff')
        self.a(f's_mov_b32 s{r+2}, {nbytes}')
        self.a(f's_mov_b32 s{r+3}, 0x20000')

    def dpp(self, op, dst, src0, src1, ctrl):
        self.a(f'{op}_dpp v{dst}, v{src0}, v{src1} {ctrl} row_mask:0xf bank_mask:0xf')

    def swap_reduce(self, op, v, t, which):
        self.a(f'v_mov_b32 v{t}, v{v}')
        self.a('s_nop 1')
        self.a(f'v_permlane{which}_swap_b32 v{v}, v{t}')
        self.a(f'{op} v{v}, v{v}, v{t}')

    def stamp(self, idx):
        if not self.opt['stamps']:
            return
        self.a('s_memrealtime s[94:95]')
        self.a('s_waitcnt lgkmcnt(0)')
        self.a(f'v_writelane_b32 v249, s94, {idx}')

    def stamp_dump(self):
        if not self.opt['stamps']:
            return
        a = self.a
        a('s_mov_b64 exec, 0xffff')
        a('s_lshl_b32 s92, s2, 3')
        a('s_add_u32 s92, s92, s28')
        a('s_lshl_b32 s92, s92, 6')
        a(f's_add_u32 s92, s92, {WS_DBG}')
        a('v_lshlrev_b32 v251, 2, v0')
        a(f'buffer_store_dword v249, v251, s[52:55], s92 offen')

    def tmark(self, i):
        if self.opt['dbgtime']:
            self.a(f's_memrealtime s[{84+2*i}:{85+2*i}]')
            self.a('s_waitcnt lgkmcnt(0)')

    def smem_poll(self, base, ntags, sleep, lo_only=False):
        a = self.a
        again, done = self.newlab('L_sp'), self.newlab('L_sd')
        miss = self.newlab('L_sm')
        self.label(again)
        a(f's_load_dwordx16 s[64:79], s[{base}:{base+1}], 0 glc')
        a('s_waitcnt lgkmcnt(0)')
        for t in range(ntags):
            if lo_only:
                a(f's_cmp_eq_u32 s{64+2*t}, s36')
            else:
                a(f's_cmp_eq_u64 s[{64+2*t}:{65+2*t}], s[36:37]')
            a(f's_cbranch_scc0 {miss}')
        a(f's_branch {done}')
        self.label(miss)
        a('s_sub_u32 s80, s80, 1')
        a('s_cmp_eq_u32 s80, 0')
        a(f's_cbranch_scc1 {done}')
        a(f's_sleep {sleep}')
        a(f's_branch {again}')
        self.label(done)

    def poll_check(self, regs, again, cnt='s80', sleep=1):
        first = True
        for r in regs:
            self.a(f'v_cmp_ne_u64 vcc, s[36:37], v[{r+2}:{r+3}]')
            if first:
                self.a('s_mov_b64 s[82:83], vcc')
                first = False
            else:
                self.a('s_or_b64 s[82:83], s[82:83], vcc')
        done = self.newlab('L_pd')
        self.a('s_cmp_eq_u64 s[82:83], 0')
        self.a(f's_cbranch_scc1 {done}')
        self.a(f's_sub_u32 {cnt}, {cnt}, 1')
        self.a(f's_cmp_eq_u32 {cnt}, 0')
        self.a(f's_cbranch_scc1 {done}')
        if sleep:
            self.a(f's_sleep {sleep}')
        self.a(f's_branch {again}')
        self.label(done)

    def build(self):
        o = self.opt
        NP = o['NP']
        a = self.a
        head = [f'; fused LN + q-proj + split-KV attention + out-proj + SwiGLU FFN (decode), one launch',
                f'; @launch grid=(256,1,1) block=(512,1,1) lds={LDS_BYTES}',
                '.amdgcn_target "amdgcn-amd-amdhsa--gfx950"', '.text', f'.globl {NAME}', '.p2align 8',
                f'.type {NAME},@function', f'{NAME}:']
        a('s_cmp_ge_u32 s2, 256')
        a('s_cbranch_scc1 L_exit')
        if o['stamps']:
            a('v_mov_b32 v249, 0')
        a('s_load_dwordx16 s[4:19], s[0:1], 0')
        a('s_load_dwordx8 s[20:27], s[0:1], 64')
        a('v_lshrrev_b32 v1, 6, v0')
        a('v_and_b32 v0, 63, v0')
        a('s_and_b32 s29, s2, 7')
        a('v_readfirstlane_b32 s28, v1')
        a('s_lshr_b32 s34, s2, 3')
        a('s_lshr_b32 s30, s34, 3')
        a('s_and_b32 s31, s34, 7')
        a('s_lshl_b32 s35, s29, 2')
        a('s_add_u32 s35, s35, s30')
        a('s_lshr_b32 s32, s31, 2')
        a('s_and_b32 s33, s31, 3')
        a('s_waitcnt lgkmcnt(0)')
        a(f's_load_dwordx2 s[36:37], s[26:27], {WS_EPOCH}')
        self.srd(52, 26, WS_SRD_BYTES)
        self.stamp(0)
        self.tmark(0)
        a('s_cmp_ge_u32 s28, 4')
        a('s_cbranch_scc1 L_aux')
        self.stream()
        self.L += self.ool
        self.label('L_aux')
        self.aux()
        self.label('L_tail')
        self.tail()
        self.label('L_end')
        self.stamp_dump()
        self.label('L_exit')
        a('s_endpgm')
        nv = 256
        foot = ['.section .rodata,"a"', '.p2align 6', f'.amdhsa_kernel {NAME}',
                f'  .amdhsa_next_free_vgpr {nv}', '  .amdhsa_next_free_sgpr 96', f'  .amdhsa_accum_offset {nv}',
                '  .amdhsa_group_segment_fixed_size 0', '  .amdhsa_kernarg_size 96',
                '  .amdhsa_user_sgpr_count 2', '  .amdhsa_user_sgpr_kernarg_segment_ptr 1',
                '  .amdhsa_system_sgpr_workgroup_id_x 1', '  .amdhsa_float_denorm_mode_32 3',
                '.end_amdhsa_kernel']
        return '\n'.join(head + self.L + foot) + '\n'

    def stream(self):
        o = self.opt; a = self.a
        NP = o['NP']
        VOFF = 1
        M = 2
        Q = 8
        ACC = 20
        S = 32
        T = 48
        RB = 72
        assert RB + 24 * NP <= 250
        self.c('==== stream waves ====')
        self.srd(40, 6, K_BYTES)
        self.srd(44, 8, K_BYTES)
        a('s_lshl_b32 s56, s32, 5')
        a('s_add_u32 s56, s56, s35')
        a('s_lshl_b32 s56, s56, 12')
        a('s_lshl_b32 s57, s33, 10')
        a('s_add_u32 s56, s56, s57')
        if o['inter'] == 0:
            a('s_lshl_b32 s57, s28, 8')
        elif o['inter'] == 1:
            a('s_lshl_b32 s57, s28, 4')
        else:
            a('s_lshl_b32 s57, s28, 5')
        a('s_add_u32 s56, s56, s57')
        a('s_mul_i32 s58, s56, 384')
        a(f'v_lshrrev_b32 v{T}, 3, v0')
        a(f'v_mul_u32_u24 v{T}, 384, v{T}')
        a(f'v_and_b32 v{T+1}, 7, v0')
        a(f'v_lshlrev_b32 v{T+2}, 4, v{T+1}')
        a(f'v_add_u32 v{VOFF}, v{T}, v{T+2}')
        a(f'v_and_b32 v{T+2}, 1, v0')
        a(f'v_mov_b32 v{T+3}, 0xffff')
        a(f'v_mov_b32 v{T+4}, 0xffff0000')
        a(f'v_cmp_eq_u32 vcc, 1, v{T+2}')
        a(f'v_lshrrev_b32 v{T+1}, 1, v{T+1}')
        a('s_nop 0')
        a(f'v_cndmask_b32 v{T+3}, v{T+3}, v{T+4}, vcc')
        for r in range(4):
            a(f'v_cmp_eq_u32 vcc, {r}, v{T+1}')
            a('s_nop 1')
            a(f'v_cndmask_b32 v{M+r}, 0, v{T+3}, vcc')
        for i in range(12):
            a(f'v_mov_b32 v{ACC+i}, 0')
        if o['rot']:
            ra, rb = o['rot']
            a(f's_mul_i32 s57, s2, {ra}')
            a(f's_mul_i32 s59, s28, {rb}')
            a('s_add_u32 s57, s57, s59')
            a('s_and_b32 s57, s57, 15')
            a('s_mul_i32 s57, s57, 6144')
            a('s_add_u32 s86, s58, 98304')
            a('s_add_u32 s58, s58, s57')
        a('s_mov_b32 s59, s58')
        a('s_barrier')

        seq = [('K', p) for p in range(16)] + [('V', p) for p in range(16)]

        def issue(idx):
            if idx >= len(seq):
                return []
            kind, p = seq[idx]
            srd = 40 if kind == 'K' else 44
            nt = o['ntk'] if kind == 'K' else o['ntv']
            R = RB + 24 * (idx % NP)
            out = []
            if kind == 'V' and p == 0:
                out.append('s_mov_b32 s59, s58')
            for g in range(2):
                if o['WL'] and o['gran'] == 3 and not (idx * 6 + 3 * g + 3 <= o['WL']):
                    out.append(f's_waitcnt vmcnt({o["WL"] - 3})')
                for i in range(3):
                    wl = o['WL']
                    if o['wend'] and idx >= 32 - o['wendn']:
                        wl = o['wend']
                    if o['whalf'] and (3 * g + i) % 2 == 1:
                        wl += 1
                    adaptive = o['ctrl'] and idx - NP > o['ctrl'][1] and not (o['wend'] and idx >= 32 - o['wendn'])
                    r = R + 12 * g + 4 * i
                    ld = f'buffer_load_dwordx4 v[{r}:{r+3}], v{VOFF}, s[{srd}:{srd+3}], s59 offen offset:{3072*g+128*i} {nt}'
                    if adaptive:
                        n = 3 * g + i
                        lf, ls, lb = self.newlab('L_cf'), self.newlab('L_cs'), self.newlab('L_cb')
                        out.append(f's_bitcmp1_b32 s81, {n}')
                        out.append(f's_cbranch_scc1 {lf}')
                        out.append(f's_bitcmp1_b32 s81, {8 + n}')
                        out.append(f's_cbranch_scc1 {ls}')
                        out.append(f's_waitcnt vmcnt({wl - 1})')
                        out.append(ld)
                        out.append(('L', lb))
                        self.ool += [f'{lf}:', f'  s_waitcnt vmcnt({wl - 1 + o["cstep"]})', '  ' + ld, f'  s_branch {lb}',
                                     f'{ls}:', f'  s_waitcnt vmcnt({wl - 2})', '  ' + ld, f'  s_branch {lb}']
                        continue
                    if o['WL'] and o['gran'] == 1 and not (idx * 6 + 3 * g + i + 1 <= wl):
                        out.append(f's_waitcnt vmcnt({wl - 1})')
                    out.append(ld)
            if o['inter'] == 0:
                out.append('s_add_u32 s59, s59, 6144')
            elif o['inter'] == 1:
                out.append('s_add_u32 s59, s59, 24576')
            else:
                out.append(f's_add_u32 s59, s59, {6144 if p % 2 == 0 else 6144 + 3 * 12288}')
            if o['rot']:
                out.append('s_cmp_ge_u32 s59, s86')
                out.append('s_cselect_b32 s57, 98304, 0')
                out.append('s_sub_u32 s59, s59, s57')
            return out

        def emit(lst):
            for ins in lst:
                if isinstance(ins, tuple):
                    self.label(ins[1])
                else:
                    a(ins)

        def mode_read(idx):
            if o['ctrl'] and idx > o['ctrl'][1] and idx + NP < 32:
                a(f'ds_read_b32 v242, v240 offset:{L_FLAG+12}')

        def mode_get(idx):
            if o['ctrl'] and idx > o['ctrl'][1] and idx + NP < 32:
                a('s_waitcnt lgkmcnt(0)')
                a('v_readfirstlane_b32 s81, v242')

        def checkpoint(idx):
            if o['fwait'] and idx == o['fwait']:
                a('s_mov_b64 exec, 1')
                a(f'ds_add_u32 v240, v241 offset:{L_FLAG+16}')
                a('s_mov_b64 exec, -1')
            if o['ctrl'] and idx in o['ctrl']:
                a('s_mov_b64 exec, 1')
                a(f'ds_add_u32 v240, v241 offset:{L_FLAG+8}')
                a('s_mov_b64 exec, -1')

        pre = []
        for idx in range(NP):
            pre += issue(idx)
        done_prep = False
        for ins in pre:
            if ins.startswith('s_waitcnt') and not done_prep:
                a('s_waitcnt lgkmcnt(0)')
                a('s_add_u32 s36, s36, 1')
                self.tail_prep(aux=False)
                done_prep = True
            a(ins)
        assert done_prep
        self.stamp(1)
        a('s_barrier')
        self.stamp(2)
        a(f'v_and_b32 v{T}, 7, v0')
        a(f'v_lshlrev_b32 v{T}, 4, v{T}')
        for i in range(3):
            a(f'ds_read_b128 v[{Q+4*i}:{Q+4*i+3}], v{T} offset:{L_Q + 128*i}')
        if o['local']:
            a(f'ds_read_b32 v{T+9}, v240 offset:{L_FLAG+20}')
        a(f'v_mov_b32 v{T+8}, 0xff800000')
        MX = T + 8
        a(f's_mov_b32 s60, {SCALE}')
        a(f's_mov_b32 s61, 0xffff0000')
        a(f's_mov_b32 s62, {LOG2E}')
        a('s_waitcnt lgkmcnt(0)')
        if o['local']:
            a(f'v_readfirstlane_b32 s87, v{T+9}')

        def outstanding_after(idx):
            last = min(idx + NP - 1, len(seq) - 1)
            return (last - idx) * 6

        for p in range(16):
            idx = p
            R = RB + 24 * (idx % NP)
            self.c(f'K pair {p}')
            mode_read(idx)
            a(f's_waitcnt vmcnt({outstanding_after(idx)})')
            A, B = T, T + 1
            a(f'v_mov_b32 v{A}, 0')
            a(f'v_mov_b32 v{B}, 0')
            for g, acc in ((0, A), (1, B)):
                for i in range(3):
                    for r in range(4):
                        a(f'v_dot2c_f32_bf16 v{acc}, v{R+12*g+4*i+r}, v{Q+4*i+r}')
            nxt = issue(idx + NP)
            late_issue = any(isinstance(x, tuple) for x in nxt)
            fill = [] if late_issue else list(nxt)

            def f(n=1):
                for _ in range(n):
                    a(fill.pop(0) if fill else 's_nop 0')
            q1 = 'quad_perm:[1,0,3,2]'; q2 = 'quad_perm:[2,3,0,1]'; hm = 'row_half_mirror'
            self.dpp('v_add_f32', A, A, A, q1)
            f(2)
            self.dpp('v_add_f32', B, B, B, q1)
            self.dpp('v_add_f32', A, A, A, q2)
            f(1)
            self.dpp('v_add_f32', B, B, B, q2)
            self.dpp('v_add_f32', A, A, A, hm)
            f(1)
            self.dpp('v_add_f32', B, B, B, hm)
            while fill:
                f(1)
            if late_issue:
                mode_get(idx)
                emit(nxt)
            checkpoint(idx)
            a(f'v_cvt_pk_bf16_f32 v{T+2}, v{A}, v{B}')
            a(f'v_lshlrev_b32 v{T+3}, 16, v{T+2}')
            a(f'v_and_b32 v{T+4}, s61, v{T+2}')
            a(f'v_mul_f32 v{T+3}, s60, v{T+3}')
            a(f'v_mul_f32 v{T+4}, s60, v{T+4}')
            a(f'v_max3_f32 v{MX}, v{MX}, v{T+3}, v{T+4}')
            a(f'v_cvt_pk_bf16_f32 v{S+p}, v{T+3}, v{T+4}')
            if o['prog'] and p == 7:
                self.stamp(12)
            if o['prog'] and p == 15:
                self.stamp(13)
        self.c('wave max')
        a('s_nop 1')
        self.dpp('v_max_f32', MX, MX, MX, 'row_ror:8')
        self.swap_reduce('v_max_f32', MX, T, 16)
        self.swap_reduce('v_max_f32', MX, T, 32)
        a(f'v_cvt_pk_bf16_f32 v{T}, v{MX}, v{MX}')
        a(f'v_lshlrev_b32 v{MX}, 16, v{T}')
        NM = T + 9
        a(f'v_mul_f32 v{NM}, s62, v{MX}')
        a(f'v_sub_f32 v{NM}, 0, v{NM}')
        LA = T + 10
        a(f'v_mov_b32 v{LA}, 0')
        if o['dbg']:
            a('s_lshl_b32 s63, s2, 2'); a('s_add_u32 s63, s63, s28'); a('s_lshl_b32 s63, s63, 12')
            a(f's_add_u32 s63, s63, {WS_DBG + 0x100000}')
            a(f'v_lshlrev_b32 v{T}, 2, v0')
            for p in range(16):
                a(f'buffer_store_dword v{S+p}, v{T}, s[52:55], s63 offen offset:{256*p}')
            a('s_waitcnt vmcnt(0)')
        PA = T + 12
        for p in range(16):
            idx = 16 + p
            R = RB + 24 * (idx % NP)
            self.c(f'V pair {p}')
            mode_read(idx)
            e0, e1 = T, T + 1
            a(f'v_lshlrev_b32 v{e0}, 16, v{S+p}')
            a(f'v_and_b32 v{e1}, s61, v{S+p}')
            a(f'v_fma_f32 v{e0}, v{e0}, s62, v{NM}')
            a(f'v_fma_f32 v{e1}, v{e1}, s62, v{NM}')
            a(f'v_exp_f32 v{e0}, v{e0}')
            a(f'v_exp_f32 v{e1}, v{e1}')
            a('s_nop 0')
            a(f'v_cvt_pk_bf16_f32 v{T+2}, v{e0}, v{e0}')
            a(f'v_cvt_pk_bf16_f32 v{T+3}, v{e1}, v{e1}')
            for r in range(4):
                a(f'v_and_b32 v{PA+r}, v{T+2}, v{M+r}')
            for r in range(4):
                a(f'v_and_b32 v{PA+4+r}, v{T+3}, v{M+r}')
            a(f'v_add_f32 v{LA}, v{LA}, v{e0}')
            a(f'v_add_f32 v{LA}, v{LA}, v{e1}')
            if o['dbg'] and False:
                pass
            a(f's_waitcnt vmcnt({outstanding_after(idx)})')
            for g in range(2):
                for i in range(3):
                    r = R + 12 * g + 4 * i
                    a(f'v_mfma_f32_16x16x32_bf16 v[{ACC+4*i}:{ACC+4*i+3}], v[{PA+4*g}:{PA+4*g+3}], v[{r}:{r+3}], v[{ACC+4*i}:{ACC+4*i+3}]')
            mode_get(idx)
            emit(issue(idx + NP))
            checkpoint(idx)
            if o['prog'] and p == 7:
                self.stamp(14)
            if o['prog'] and p == 11:
                self.stamp(15)
            if o['nlate'] and idx + NP == 31 - o['wearly']:
                a('s_mov_b64 exec, 1')
                a(f'ds_add_u32 v240, v241 offset:{L_FLAG}')
                a('s_mov_b64 exec, -1')
        self.c('wave epilogue')
        self.stamp(3)
        a('s_nop 1')
        self.dpp('v_add_f32', LA, LA, LA, 'row_ror:8')
        self.swap_reduce('v_add_f32', LA, T, 16)
        self.swap_reduce('v_add_f32', LA, T, 32)
        a(f'v_lshrrev_b32 v{T}, 5, v0')
        a(f's_lshl_b32 s63, s28, 1')
        a(f'v_add_u32 v{T}, s63, v{T}')
        a(f'v_mul_u32_u24 v{T}, 768, v{T}')
        a(f'v_and_b32 v{T+1}, 7, v0')
        a(f'v_lshlrev_b32 v{T+1}, 5, v{T+1}')
        a(f'v_and_b32 v{T+2}, 16, v0')
        a(f'v_add3_u32 v{T}, v{T}, v{T+1}, v{T+2}')
        a(f's_lshl_b32 s63, s28, 2')
        a(f'v_mov_b32 v{T+3}, s63')
        a('s_mov_b32 exec_lo, 0x00ff00ff')
        a('s_mov_b32 exec_hi, 0xff00ff00')
        for i in range(3):
            a(f'ds_write_b128 v{T}, v[{ACC+4*i}:{ACC+4*i+3}] offset:{L_OL + 256*i}')
        a('s_mov_b64 exec, 1')
        a(f'ds_write_b32 v{T+3}, v{MX} offset:{L_ML}')
        a(f'ds_write_b32 v{T+3}, v{LA} offset:{L_ML+16}')
        a('s_waitcnt lgkmcnt(0)')
        if o['nlate']:
            a(f'ds_add_u32 v240, v241 offset:{L_FLAG+4}')
        a('s_mov_b64 exec, -1')
        a('s_branch L_tail')

    def gemv_unit(self, W, XB, ntile, nstep, lastvalid, addr, rowstride, tilebytes, acc):
        a = self.a
        for t in range(nstep):
            for tile in range(ntile):
                av = addr if t < nstep - 1 else addr + 1
                base = t * 32 * rowstride + tile * tilebytes
                r = W + 4 * (tile % 4)
                a(f'ds_read_b64_tr_b16 v[{r}:{r+1}], v{av} offset:{base}')
                a(f'ds_read_b64_tr_b16 v[{r+2}:{r+3}], v{av} offset:{base + 4*rowstride}')
                if tile % 4 == 3 or tile == ntile - 1:
                    a('s_waitcnt lgkmcnt(0)')
                    for tt in range(tile - tile % 4, tile + 1):
                        rr = W + 4 * (tt % 4)
                        a(f'v_mfma_f32_16x16x32_bf16 v[{acc+4*tt}:{acc+4*tt+3}], v[{rr}:{rr+3}], v[{XB+4*t}:{XB+4*t+3}], v[{acc+4*tt}:{acc+4*tt+3}]')

    def aux(self):
        o = self.opt; a = self.a
        ntw = o['ntw']
        self.c('==== aux waves ====')
        if o['noaux']:
            a('s_barrier'); a('s_barrier'); a('s_barrier'); a('s_barrier'); a('s_branch L_end')
        a('s_sub_u32 s38, s28, 4')
        self.srd(40, 4, X_BYTES)
        a('v_lshrrev_b32 v1, 5, v0')
        a('v_and_b32 v2, 31, v0')
        a('v_mul_u32_u24 v3, 1280, v1')
        a('v_mul_u32_u24 v4, 40, v2')
        a('v_add_u32 v3, v3, v4')
        a('buffer_load_dwordx4 v[8:11], v3, s[40:43], 0 offen')
        a('buffer_load_dwordx4 v[12:15], v3, s[40:43], 0 offen offset:16')
        a('buffer_load_dwordx2 v[16:17], v3, s[40:43], 0 offen offset:32')
        a('s_cmp_eq_u32 s38, 3')
        a('s_cbranch_scc1 L_aux_ffn_ld')
        self.srd(44, 10, WQ_BYTES)
        a('v_lshrrev_b32 v4, 3, v0')
        a('v_mul_u32_u24 v4, 12288, v4')
        a('v_and_b32 v5, 7, v0')
        a('v_lshlrev_b32 v5, 4, v5')
        a('v_add_u32 v4, v4, v5')
        a('s_mul_i32 s56, s31, 983040')
        a('s_mul_i32 s57, s35, 384')
        a('s_add_u32 s56, s56, s57')
        a('s_lshl_b32 s57, s38, 7')
        a('s_add_u32 s56, s56, s57')
        a('s_mul_i32 s57, s38, 10240')
        a(f's_add_u32 s57, s57, {L_UQ}')
        for i in range(10):
            a('s_mov_b32 m0, s57')
            a('s_add_u32 s57, s57, 1024')
            a(f'buffer_load_dwordx4 v4, s[44:47], s56 offen {ntw} lds')
            a('s_add_u32 s56, s56, 98304')
        a('s_barrier')
        a('s_waitcnt vmcnt(10)')
        a('s_branch L_aux_ln')
        self.label('L_aux_ffn_ld')
        a('s_cmp_ge_u32 s34, 16')
        a('s_cselect_b32 s56, s18, s16')
        a('s_cselect_b32 s57, s19, s17')
        self.srd(44, 56, WG_BYTES)
        def ffn_dma():
            for i in range(3):
                a(f'v_add_u32 v43, {64*i}, v0')
                a('v_mul_u32_u24 v44, 2731, v43')
                a('v_lshrrev_b32 v44, 16, v44')
                a('v_mul_u32_u24 v45, 24, v44')
                a('v_sub_u32 v43, v43, v45')
                a('v_mul_u32_u24 v44, 3072, v44')
                a('v_lshlrev_b32 v43, 4, v43')
                a(f'v_add_u32 v{40+i}, v43, v44')
            a('s_and_b32 s56, s34, 15')
            a('s_mul_i32 s56, s56, 122880')
            a('s_mul_i32 s57, s29, 384')
            a('s_add_u32 s56, s56, s57')
            a(f's_mov_b32 s57, {L_UF}')
            for i in range(15):
                a('s_mov_b32 m0, s57')
                a('s_add_u32 s57, s57, 1024')
                a(f'buffer_load_dwordx4 v{40+i%3}, s[44:47], s56 offen {ntw} lds')
                if i % 3 == 2:
                    a('s_add_u32 s56, s56, 24576')
        if not o['ffn_late']:
            ffn_dma()
            a('s_barrier')
            a('s_waitcnt vmcnt(15)')
        else:
            a('s_barrier')
            a('s_waitcnt vmcnt(0)')
        self.label('L_aux_ln')
        self.stamp(1)
        X = 20
        for k in range(10):
            a(f'v_lshlrev_b32 v{X+2*k}, 16, v{8+k}')
            a(f'v_and_b32 v{X+2*k+1}, 0xffff0000, v{8+k}')
        a(f'v_add_f32 v44, v{X}, v{X+1}')
        a(f'v_add_f32 v45, v{X+2}, v{X+3}')
        for k in range(2, 10):
            a(f'v_add_f32 v{44+k%2}, v{44+k%2}, v{X+2*k}')
            a(f'v_add_f32 v{44+k%2}, v{44+k%2}, v{X+2*k+1}')
        a('v_add_f32 v44, v44, v45')

        def red32(v):
            for ctrl in ('quad_perm:[1,0,3,2]', 'quad_perm:[2,3,0,1]', 'row_half_mirror', 'row_mirror'):
                a('s_nop 1')
                self.dpp('v_add_f32', v, v, v, ctrl)
            self.swap_reduce('v_add_f32', v, 47, 16)
        red32(44)
        a(f's_mov_b32 s56, {INV640}')
        a('v_mul_f32 v44, s56, v44')
        a('v_mov_b32 v45, 0')
        a('v_mov_b32 v46, 0')
        for k in range(20):
            a(f'v_sub_f32 v48, v{X+k}, v44')
            a(f'v_fmac_f32 v{45+k%2}, v48, v48')
        a('v_add_f32 v45, v45, v46')
        red32(45)
        a('v_mul_f32 v45, s56, v45')
        a('v_cvt_pk_bf16_f32 v46, v44, v45')
        a('v_lshlrev_b32 v44, 16, v46')
        a('v_and_b32 v45, 0xffff0000, v46')
        a(f'v_add_f32 v45, {EPS_BF}, v45')
        a('v_cvt_pk_bf16_f32 v45, v45, v45')
        a('v_and_b32 v45, 0xffff0000, v45')
        a('v_sqrt_f32 v45, v45')
        a('s_nop 0')
        a('v_cvt_pk_bf16_f32 v45, v45, v45')
        a('v_and_b32 v45, 0xffff0000, v45')
        a('v_rcp_f32 v45, v45')
        for k in range(10):
            a(f'v_sub_f32 v48, v{X+2*k}, v44')
            a(f'v_sub_f32 v49, v{X+2*k+1}, v44')
            a('v_cvt_pk_bf16_f32 v48, v48, v49')
            a('v_and_b32 v49, 0xffff0000, v48')
            a('v_lshlrev_b32 v48, 16, v48')
            a('v_mul_f32 v48, v48, v45')
            a('v_mul_f32 v49, v49, v45')
            a(f'v_cvt_pk_bf16_f32 v{8+k}, v48, v49')
        for k in range(5):
            a(f'ds_write_b64 v3, v[{8+2*k}:{9+2*k}] offset:{L_XN + 8*k}')
        a('v_and_b32 v4, 15, v0')
        a('v_lshrrev_b32 v5, 4, v0')
        a('v_and_b32 v6, 1, v0')
        a('v_mul_u32_u24 v6, 1280, v6')
        a('v_lshlrev_b32 v7, 4, v5')
        a('v_add_u32 v6, v6, v7')
        a('v_lshlrev_b32 v50, 3, v5')
        a('v_lshrrev_b32 v51, 2, v4')
        a('v_add_u32 v50, v50, v51')
        a('v_and_b32 v51, 3, v4')
        a('v_lshlrev_b32 v51, 3, v51')
        a('s_waitcnt lgkmcnt(0)')
        a('s_cmp_eq_u32 s38, 3')
        a('s_cbranch_scc1 L_aux_ffn')

        XB = 8
        a('s_mul_i32 s56, s31, 160')
        a('v_add_u32 v6, s56, v6')
        for t in range(3):
            a(f'ds_read_b128 v[{XB+4*t}:{XB+4*t+3}], v6 offset:{L_XN + 64*t}')
        a('s_mul_i32 s56, s38, 10240')
        a(f's_add_u32 s56, s56, {L_UQ}')
        a('v_lshlrev_b32 v52, 7, v50')
        a('v_add3_u32 v52, v52, v51, s56')
        a('v_cmp_le_u32 vcc, 2, v5')
        a('v_subrev_u32 v53, 2048, v52')
        a('s_nop 0')
        a('v_cndmask_b32 v53, v52, v53, vcc')
        ACC = 24
        for k in range(16):
            a(f'v_mov_b32 v{ACC+k}, 0')
        a('s_waitcnt lgkmcnt(0)')
        for r in range(4):
            a(f'v_cndmask_b32 v{XB+8+r}, v{XB+8+r}, 0, vcc')
        a('s_waitcnt vmcnt(0)')
        self.stamp(2)
        self.gemv_unit(W=56, XB=XB, ntile=4, nstep=3, lastvalid=2, addr=52, rowstride=128, tilebytes=32, acc=ACC)
        a('v_and_b32 v6, 1, v4')
        a('v_mul_u32_u24 v6, 12288, v6')
        a('v_lshrrev_b32 v7, 1, v4')
        a('v_lshl_add_u32 v7, v5, 1, v7')
        a('v_lshlrev_b32 v7, 4, v7')
        a('v_add_u32 v6, v6, v7')
        a('s_mul_i32 s56, s35, 24576')
        a('s_lshl_b32 s57, s38, 12')
        a('s_add_u32 s56, s56, s57')
        a('s_lshl_b32 s57, s31, 9')
        a('s_add_u32 s56, s56, s57')
        a(f's_add_u32 s56, s56, {WS_E1}')
        a('v_and_b32 v7, 2, v4')
        a('v_cmp_eq_u32 vcc, 2, v7')
        a('s_waitcnt lgkmcnt(0)')
        a('s_add_u32 s36, s36, 1')
        a('v_mov_b32 v10, s36')
        a('v_mov_b32 v11, s37')
        a('s_nop 7')
        a('s_mov_b64 s[84:85], exec')
        a('s_mov_b32 exec_lo, 0x000f000f')
        a('s_mov_b32 exec_hi, 0x000f000f')
        for tile in range(4):
            a(f'v_cndmask_b32 v8, v{ACC+4*tile}, v{ACC+4*tile+2}, vcc')
            a(f'v_cndmask_b32 v9, v{ACC+4*tile+1}, v{ACC+4*tile+3}, vcc')
            a(f'buffer_store_dwordx4 v[8:11], v6, s[52:55], s56 offen offset:{128*tile} sc1')
            a('s_nop 1')
        if o['smem']:
            a('s_mul_i32 s56, s35, 768')
            a('s_lshl_b32 s57, s38, 7')
            a('s_add_u32 s56, s56, s57')
            a('s_lshl_b32 s57, s31, 3')
            a('s_add_u32 s56, s56, s57')
            a(f's_add_u32 s56, s56, {WS_F1}')
            a('s_mov_b64 exec, 3')
            a('v_mul_u32_u24 v7, 384, v0')
            if o['local']:
                a('s_getreg_b32 s39, hwreg(HW_REG_XCC_ID, 0, 4)')
                a('s_add_u32 s39, s39, 1')
                a('s_lshl_b32 s39, s39, 24')
                a('s_add_u32 s39, s39, s37')
                a('v_mov_b32 v9, s39')
                a('v_mov_b32 v8, s36')
                a('buffer_store_dwordx2 v[8:9], v7, s[52:55], s56 offen sc1')
            else:
                a('buffer_store_dwordx2 v[10:11], v7, s[52:55], s56 offen sc1')
        a('s_mov_b64 exec, s[84:85]')
        self.stamp(3)
        a('s_mul_i32 s56, s35, 24576')
        a('s_mul_i32 s57, s32, 12288')
        a('s_add_u32 s56, s56, s57')
        a('s_lshl_b32 s57, s38, 12')
        a('s_add_u32 s56, s56, s57')
        a(f's_add_u32 s56, s56, {WS_E1}')
        a(f's_mov_b32 s80, {o["spin"]}')
        if o['smem']:
            a('s_mul_i32 s57, s35, 768')
            a('s_mul_i32 s58, s32, 384')
            a('s_add_u32 s57, s57, s58')
            a('s_lshl_b32 s58, s38, 7')
            a('s_add_u32 s57, s57, s58')
            a(f's_add_u32 s57, s57, {WS_F1}')
            a('s_add_u32 s58, s26, s57')
            a('s_addc_u32 s59, s27, 0')
            self.smem_poll(58, 8, o['psleep'], lo_only=o['local'])
            if o['local']:
                a('s_mov_b32 s57, 1')
                for t in range(8):
                    a(f's_cmp_eq_u32 s{65+2*t}, s39')
                    a('s_cselect_b32 s57, s57, 0')
                a('v_mov_b32 v7, s57')
                a('v_mov_b32 v6, 0')
                a(f'ds_write_b32 v6, v7 offset:{L_FLAG+20}')
        elif o['sent']:
            a('v_lshlrev_b32 v6, 9, v0')
            a('v_add_u32 v6, 496, v6')
            a('s_mov_b64 exec, 0xff')
            self.label('L_q_sent')
            a('buffer_load_dwordx4 v[24:27], v6, s[52:55], s56 offen sc1')
            a('s_waitcnt vmcnt(0)')
            self.poll_check([24], 'L_q_sent', sleep=o['psleep'])
            a('s_mov_b64 exec, -1')
        a('v_lshlrev_b32 v6, 4, v0')
        self.label('L_q_poll')
        for i in range(4):
            a(f'buffer_load_dwordx4 v[{24+4*i}:{27+4*i}], v6, s[52:55], s56 offen offset:{1024*i} sc1')
        a('s_waitcnt vmcnt(0)')
        self.poll_check([24, 28, 32, 36], 'L_q_poll')
        a('v_add_f32 v24, v24, v28')
        a('v_add_f32 v25, v25, v29')
        a('v_add_f32 v32, v32, v36')
        a('v_add_f32 v33, v33, v37')
        a('v_add_f32 v24, v24, v32')
        a('v_add_f32 v25, v25, v33')
        self.swap_reduce('v_add_f32', 24, 26, 32)
        self.swap_reduce('v_add_f32', 25, 26, 32)
        a('v_cvt_pk_bf16_f32 v24, v24, v25')
        a('v_and_b32 v6, 31, v0')
        a('v_lshlrev_b32 v6, 2, v6')
        a('s_lshl_b32 s57, s38, 7')
        a('v_add_u32 v6, s57, v6')
        a(f'ds_write_b32 v6, v24 offset:{L_Q}')
        if o['dbg']:
            a('s_lshl_b32 s56, s2, 9'); a(f's_add_u32 s56, s56, {WS_DBG}')
            a('buffer_store_dword v24, v6, s[52:55], s56 offen')
        if o['nlate'] or o['fwait']:
            a('v_mov_b32 v7, 0')
            a(f'ds_write_b32 v7, v7 offset:{L_FLAG+16}')
            a(f'ds_write_b32 v7, v7 offset:{L_FLAG}')
            a(f'ds_write_b32 v7, v7 offset:{L_FLAG+4}')
            a(f'ds_write_b32 v7, v7 offset:{L_FLAG+8}')
            a(f'ds_write_b32 v7, v7 offset:{L_FLAG+12}')
        a('s_waitcnt lgkmcnt(0)')
        self.stamp(4)
        a('s_barrier')
        self.tmark(1)
        self.wb_setup()
        self.wb_early()
        self.tail_prep(aux=True)
        if o['ctrl']:
            self.controller()
        if o['nlate']:
            a('s_branch L_wlate')
        a('s_waitcnt vmcnt(0)')
        a('s_branch L_tail')

        self.label('L_aux_ffn')
        a('s_and_b32 s56, s34, 15')
        a('s_mul_i32 s56, s56, 80')
        a('v_add_u32 v6, s56, v6')
        for t in range(2):
            a(f'ds_read_b128 v[{XB+4*t}:{XB+4*t+3}], v6 offset:{L_XN + 64*t}')
        a('v_mul_u32_u24 v52, 384, v50')
        a(f'v_add_u32 v52, {L_UF}, v52')
        a('v_add_u32 v52, v52, v51')
        a('v_lshrrev_b32 v53, 2, v4')
        a('v_mul_u32_u24 v53, 384, v53')
        a(f'v_add_u32 v53, {L_UF}, v53')
        a('v_add_u32 v53, v53, v51')
        a('v_cmp_le_u32 vcc, 1, v5')
        FACC = 64
        for k in range(48):
            a(f'v_mov_b32 v{FACC+k}, 0')
        a('s_waitcnt lgkmcnt(0)')
        for r in range(4):
            a(f'v_cndmask_b32 v{XB+4+r}, v{XB+4+r}, 0, vcc')
        if o['ffn_late']:
            a('s_barrier')
            if o['skipffn']:
                a('s_add_u32 s36, s36, 1')
                self.tail_prep(aux=True)
                a('s_branch L_tail')
            ffn_dma()
        a('s_waitcnt vmcnt(0)')
        self.gemv_unit(W=24, XB=XB, ntile=12, nstep=2, lastvalid=1, addr=52, rowstride=384, tilebytes=32, acc=FACC)
        a('v_and_b32 v6, 1, v4')
        a('v_mul_u32_u24 v6, 192, v6')
        a('v_lshlrev_b32 v7, 4, v5')
        a('v_add_u32 v6, v6, v7')
        a('s_mul_i32 s56, s29, 49152')
        a('s_mul_i32 s57, s34, 384')
        a('s_add_u32 s56, s56, s57')
        a(f's_add_u32 s56, s56, {WS_E2}')
        a('s_add_u32 s36, s36, 1')
        a('s_nop 7')
        a('s_mov_b32 exec_lo, 0x00030003')
        a('s_mov_b32 exec_hi, 0x00030003')
        for tile in range(12):
            r = tile // 3
            if tile % 3 == 0 and tile:
                a('s_add_u32 s56, s56, 12288')
            a(f'buffer_store_dwordx4 v[{FACC+4*tile}:{FACC+4*tile+3}], v6, s[52:55], s56 offen offset:{64*(tile%3)} sc1')
        a('s_mov_b64 exec, -1')
        if not o['ffn_late']:
            a('s_barrier')
        a('s_waitcnt vmcnt(0)')
        a('v_mov_b32 v8, s36')
        a('v_mov_b32 v9, s37')
        a('s_lshl_b32 s56, s29, 8')
        a('s_lshl_b32 s57, s34, 3')
        a('s_add_u32 s57, s57, s56')
        a(f's_add_u32 s57, s57, {WS_E2F}')
        a(f's_add_u32 s56, s56, {WS_E2F}')
        a('v_mov_b32 v10, 0')
        a('s_mov_b64 exec, 1')
        a('buffer_store_dwordx2 v[8:9], v10, s[52:55], s57 offen sc1')
        a('s_mov_b64 exec, -1')
        a(f's_mov_b32 s80, {o["spin"]}')
        if o['fwait']:
            lab, go = self.newlab('L_fw'), self.newlab('L_fg')
            a('v_mov_b32 v12, 0')
            self.label(lab)
            a(f'ds_read_b32 v13, v12 offset:{L_FLAG+16}')
            a('s_waitcnt lgkmcnt(0)')
            a('v_readfirstlane_b32 s57, v13')
            a('s_cmp_ge_u32 s57, 1')
            a(f's_cbranch_scc1 {go}')
            a('s_sleep 8')
            a(f's_branch {lab}')
            self.label(go)
        if o['smem']:
            a('s_add_u32 s58, s26, s56')
            a('s_addc_u32 s59, s27, 0')
            for c4 in range(4):
                self.smem_poll(58, 8, o['fsleep'])
                if c4 < 3:
                    a('s_add_u32 s58, s58, 64')
                    a('s_addc_u32 s59, s59, 0')
        else:
            a('v_and_b32 v10, 31, v0')
            a('v_lshlrev_b32 v10, 3, v10')
            self.label('L_f_poll')
            a('buffer_load_dwordx2 v[14:15], v10, s[52:55], s56 offen sc1')
            a('s_waitcnt vmcnt(0)')
            self.poll_check([12], 'L_f_poll')
        a('v_and_b32 v10, 31, v0')
        a('v_min_u32 v11, 23, v10')
        a('v_lshlrev_b32 v11, 4, v11')
        a('v_lshrrev_b32 v12, 5, v0')
        a('v_mul_u32_u24 v12, 6144, v12')
        a('v_add_u32 v11, v11, v12')
        a('s_mul_i32 s56, s29, 49152')
        a('s_mul_i32 s57, s30, 12288')
        a('s_add_u32 s56, s56, s57')
        a(f's_add_u32 s56, s56, {WS_E2}')
        for i in range(16):
            a(f'buffer_load_dwordx4 v[{64+4*i}:{67+4*i}], v11, s[52:55], s56 offen offset:{384*(i%8)} sc1')
            if i == 7:
                a('s_add_u32 s56, s56, 3072')
        a('s_waitcnt vmcnt(0)')
        for i in range(1, 16):
            for r in range(4):
                a(f'v_add_f32 v{64+r}, v{64+r}, v{64+4*i+r}')
        a('v_cvt_pk_bf16_f32 v64, v64, v65')
        a('v_cvt_pk_bf16_f32 v65, v66, v67')
        a('v_mov_b32 v68, v64')
        a('v_mov_b32 v69, v65')
        a('s_nop 1')
        a('v_permlane32_swap_b32 v64, v68')
        a('v_permlane32_swap_b32 v65, v69')
        for p in range(2):
            g, u = 64 + p, 68 + p
            a(f'v_lshlrev_b32 v72, 16, v{g}')
            a(f'v_and_b32 v73, 0xffff0000, v{g}')
            for t in (72, 73):
                a(f'v_mul_f32 v74, {0xBFB8AA3B}, v{t}')
                a('v_exp_f32 v74, v74')
                a('s_nop 0')
                a('v_add_f32 v74, 1.0, v74')
                a('v_rcp_f32 v74, v74')
                a('s_nop 0')
                a(f'v_mul_f32 v{t}, v{t}, v74')
            a('v_cvt_pk_bf16_f32 v72, v72, v73')
            a('v_and_b32 v73, 0xffff0000, v72')
            a('v_lshlrev_b32 v72, 16, v72')
            a(f'v_and_b32 v75, 0xffff0000, v{u}')
            a(f'v_lshlrev_b32 v74, 16, v{u}')
            a('v_mul_f32 v72, v72, v74')
            a('v_mul_f32 v73, v73, v75')
            a(f'v_cvt_pk_bf16_f32 v{76+p}, v72, v73')
        a('v_cmp_le_u32 vcc, 12, v10')
        a('v_subrev_u32 v11, 12, v10')
        a('s_nop 0')
        a('v_cndmask_b32 v11, v10, v11, vcc')
        a('v_lshlrev_b32 v11, 3, v11')
        a('v_add_u32 v12, 128, v11')
        a('v_cndmask_b32 v11, v11, v12, vcc')
        a('v_subrev_u32 v12, 24, v10')
        a('v_lshrrev_b32 v13, 2, v12')
        a('v_lshlrev_b32 v13, 7, v13')
        a('v_and_b32 v12, 3, v12')
        a('v_lshl_add_u32 v12, v12, 3, v13')
        a('v_add_u32 v12, 96, v12')
        a('v_cmp_le_u32 vcc, 24, v10')
        a('s_nop 1')
        a('v_cndmask_b32 v11, v11, v12, vcc')
        a('v_cndmask_b32 v76, v76, 0, vcc')
        a('v_cndmask_b32 v77, v77, 0, vcc')
        a('s_mov_b32 exec_hi, 0')
        a(f'ds_write_b64 v11, v[76:77] offset:{L_HV}')
        a('s_mov_b64 exec, -1')
        a('s_waitcnt lgkmcnt(0)')
        self.stamp(4)
        self.tail_prep(aux=True)
        if o['nlate']:
            self.wb_setup()
            self.label('L_wlate')
            self.wb_late()
            a('s_waitcnt vmcnt(0)')
            a('s_branch L_bar3b')
        a('s_branch L_tail')

    def controller(self):
        o = self.opt; a = self.a
        skip = self.newlab('L_ct')
        a('s_cmp_lg_u32 s38, 2')
        a(f's_cbranch_scc1 {skip}')
        pat = {0: 0, 1: 0b000001, 2: 0b001001, 3: 0b010101, 4: 0b011011, 5: 0b011111, 6: 0b111111}
        parts = o['cpart']
        for j, px in enumerate(parts):
            a(f's_xor_b32 s56, s2, {px}')
            a('s_lshl_b32 s56, s56, 7')
            a(f's_add_u32 s56, s56, {WS_PR}')
            a(f's_add_u32 s{8+2*j}, s26, s56')
            a(f's_addc_u32 s{9+2*j}, s27, 0')
        a('s_lshl_b32 s63, s2, 7')
        a(f's_add_u32 s63, s63, {WS_PR}')
        for k, ck in enumerate(o['ctrl']):
            lab, go, done = self.newlab('L_cw'), self.newlab('L_cg'), self.newlab('L_cd')
            self.label(lab)
            a(f'ds_read_b32 v5, v240 offset:{L_FLAG+8}')
            a('s_waitcnt lgkmcnt(0)')
            a('v_readfirstlane_b32 s56, v5')
            a(f's_cmp_ge_u32 s56, {4*k + 2}')
            a(f's_cbranch_scc1 {go}')
            a('s_sleep 4')
            a(f's_branch {lab}')
            self.label(go)
            a('s_memrealtime s[60:61]')
            if k:
                for j in range(len(parts)):
                    a(f's_load_dwordx2 s[{16+2*j}:{17+2*j}], s[{8+2*j}:{9+2*j}], {8*(k-1)} glc')
            a('s_waitcnt lgkmcnt(0)')
            a('s_mov_b64 exec, 1')
            a('v_mov_b32 v6, s60')
            a('v_mov_b32 v7, s36')
            a(f'buffer_store_dwordx2 v[6:7], v240, s[52:55], s63 offen offset:{8*k} sc1')
            if k:
                a('s_mov_b32 s56, 0')
                a('s_sub_u32 s57, s93, s60')
                for j in range(len(parts)):
                    a(f's_sub_u32 s58, s93, s{16+2*j}')
                    a(f's_cmp_eq_u32 s{17+2*j}, s36')
                    a('s_cselect_b32 s58, s58, s57')
                    a('s_add_u32 s56, s56, s58')
                trem = (32 - ck) * 85
                kk = int(round(6 * o['WL'] * o['cgain'] / trem / len(parts) * 65536))
                a(f's_mul_i32 s56, s56, {kk}')
                a('s_add_u32 s56, s56, 32768')
                a('s_ashr_i32 s56, s56, 16')
                for lv in range(-o['cmin'], o['cmax'] + 1):
                    bits = pat[lv] if lv >= 0 else pat[-lv] << 8
                    a(f's_mov_b32 s57, {bits}')
                    if lv < o['cmax']:
                        a(f's_cmp_le_i32 s56, {lv}')
                        a(f's_cbranch_scc1 {done}')
                self.label(done)
                a('v_mov_b32 v5, s57')
                a(f'ds_write_b32 v240, v5 offset:{L_FLAG+12}')
            a('s_mov_b32 s93, s60')
            a('s_mov_b64 exec, -1')
        self.label(skip)

    def wb_setup(self):
        a = self.a
        for i in range(5):
            a(f'v_add_u32 v5, {64*i}, v0')
            a('v_mul_u32_u24 v6, 6554, v5')
            a('v_lshrrev_b32 v6, 16, v6')
            a('v_mul_u32_u24 v7, 10, v6')
            a('v_sub_u32 v5, v5, v7')
            a('v_mul_u32_u24 v6, 1280, v6')
            a('v_lshlrev_b32 v5, 4, v5')
            a(f'v_add_u32 v{40+i}, v5, v6')
        self.srd(48, 12, WO_BYTES)
        self.srd(88, 20, WD_BYTES)

    def wb_period(self, preg):
        o = self.opt; a = self.a
        a('s_mul_i32 s56, s35, 245760')
        a('s_mul_i32 s57, s31, 160')
        a('s_add_u32 s56, s56, s57')
        a(f's_mul_i32 s57, {preg}, 40960')
        a('s_add_u32 s56, s56, s57')
        a(f's_mul_i32 s57, {preg}, 5120')
        a(f's_add_u32 s57, s57, {L_WB}')
        for i in range(5):
            a('s_mov_b32 m0, s57')
            a('s_add_u32 s57, s57, 1024')
            a(f'buffer_load_dwordx4 v{40+i}, s[48:51], s56 offen {o["ntwb"]} lds')

    def wb_early(self):
        o = self.opt; a = self.a
        nearly = 6 - o['nlate']
        for t in range((nearly + 2) // 3):
            lab = self.newlab('L_we')
            a(f's_add_u32 s58, s38, {3*t}')
            a(f's_cmp_lt_u32 s58, {nearly}')
            a(f's_cbranch_scc0 {lab}')
            self.wb_period('s58')
            self.label(lab)
        a('s_mul_i32 s56, s35, 61440')
        a('s_mul_i32 s57, s31, 160')
        a('s_add_u32 s56, s56, s57')
        lab0, lab1, labd = self.newlab('L_wd'), self.newlab('L_wd'), self.newlab('L_wd')
        a('s_cmp_eq_u32 s38, 0'); a(f's_cbranch_scc1 {lab0}')
        a('s_cmp_eq_u32 s38, 1'); a(f's_cbranch_scc1 {lab1}')

        def dma(i):
            a(f's_mov_b32 m0, {L_WD + 1024*i}')
            a(f's_add_u32 s57, s56, {40960*(i//5)}')
            a(f'buffer_load_dwordx4 v{40+i%5}, s[88:91], s57 offen {o["ntwb"]} lds')
        dma(6); dma(7); a(f's_branch {labd}')
        self.label(lab0); dma(0); dma(1); dma(2); a(f's_branch {labd}')
        self.label(lab1); dma(3); dma(4); dma(5)
        self.label(labd)

    def wb_late(self):
        o = self.opt; a = self.a
        nlate = o['nlate']
        lab, labd0 = self.newlab('L_ww'), self.newlab('L_wv')
        self.label(lab)
        a(f'ds_read_b32 v5, v240 offset:{L_FLAG}')
        a('s_waitcnt lgkmcnt(0)')
        a('v_readfirstlane_b32 s56, v5')
        a(f's_cmp_ge_u32 s56, {o["wtrig"]}')
        a(f's_cbranch_scc1 {labd0}')
        a('s_sleep 2')
        a(f's_branch {lab}')
        self.label(labd0)
        self.stamp(11)
        for t in range((nlate + 3) // 4):
            lab = self.newlab('L_wl')
            a(f's_add_u32 s58, s38, {4*t}')
            a(f's_cmp_lt_u32 s58, {nlate}')
            a(f's_cbranch_scc0 {lab}')
            a(f's_add_u32 s58, s58, {6 - nlate}')
            self.wb_period('s58')
            self.label(lab)

    def tail_prep(self, aux):
        o = self.opt; a = self.a
        self.c('---- tail constants ----')
        a('v_mov_b32 v238, s36')
        a('v_mov_b32 v239, s37')
        a('v_mov_b32 v240, 0')
        a('v_mov_b32 v241, 1')
        a('s_lshl_b32 s64, s28, 6')
        a('v_add_u32 v225, s64, v0')
        a('v_mov_b32 v224, 96')
        a('v_cmp_eq_u32 vcc, v224, v225')
        a('s_mov_b64 s[74:75], vcc')
        a('v_cmp_ge_u32 vcc, v224, v225')
        a('s_mov_b64 s[72:73], vcc')
        a('v_min_u32 v224, 95, v225')
        a('v_lshlrev_b32 v224, 3, v224')
        a('v_lshlrev_b32 v225, 4, v225')
        a('s_lshl_b32 s64, s35, 3')
        a('s_add_u32 s64, s64, s31')
        a('s_lshl_b32 s64, s64, 11')
        a(f's_add_u32 s64, s64, {WS_E3}')
        a('s_sub_u32 s65, s28, 2')
        a('s_cmp_ge_i32 s65, 3')
        a('s_cselect_b32 s66, 1, 0')
        a('s_mul_i32 s67, s66, 3')
        a('s_sub_u32 s67, s65, s67')
        a('v_lshrrev_b32 v227, 5, v0')
        a('v_lshlrev_b32 v227, 11, v227')
        a('v_and_b32 v228, 31, v0')
        a('s_lshl_b32 s68, s67, 5')
        a('v_add_u32 v226, s68, v228')
        a('v_lshl_add_u32 v226, v226, 4, v227')
        a('v_add_u32 v227, 1536, v227')
        a('s_mul_i32 s68, s66, 384')
        a('s_lshl_b32 s69, s67, 7')
        a('s_add_u32 s68, s68, s69')
        a(f's_add_u32 s68, s68, {L_ON}')
        a('v_lshl_add_u32 v228, v228, 2, s68')
        a('s_lshl_b32 s65, s35, 3')
        a('s_lshl_b32 s66, s66, 2')
        a('s_add_u32 s65, s65, s66')
        a('s_lshl_b32 s65, s65, 11')
        a(f's_add_u32 s65, s65, {WS_E3}')
        a('s_add_u32 s66, s65, 4096')
        a('v_and_b32 v234, 15, v0')
        a('v_lshrrev_b32 v235, 4, v0')
        a('v_and_b32 v236, 1, v0')
        a('v_lshlrev_b32 v237, 4, v235')
        a('v_mul_u32_u24 v229, 384, v236')
        a('v_add_u32 v229, v229, v237')
        a(f'v_add_u32 v229, {L_ON}, v229')
        a('v_lshlrev_b32 v230, 7, v236')
        a('v_add_u32 v230, v230, v237')
        a(f'v_add_u32 v230, {L_HV}, v230')
        a('v_lshlrev_b32 v231, 3, v235')
        a('v_lshrrev_b32 v232, 2, v234')
        a('v_add_u32 v231, v231, v232')
        a('v_mul_u32_u24 v231, 160, v231')
        a('v_and_b32 v232, 3, v234')
        a('v_lshlrev_b32 v232, 3, v232')
        a('s_lshl_b32 s67, s28, 5')
        a('v_add3_u32 v231, v231, v232, s67')
        a(f'v_add_u32 v231, {L_WB}, v231')
        a('v_cmp_le_u32 vcc, 2, v235')
        a('v_subrev_u32 v232, 2560, v231')
        a('s_nop 0')
        a('v_cndmask_b32 v232, v231, v232, vcc')
        a('v_and_b32 v233, 1, v235')
        a('v_mul_u32_u24 v233, 40960, v233')
        if o['r160']:
            a('v_lshrrev_b32 v237, 3, v234')
            a('v_lshl_add_u32 v233, v237, 12, v233')
            a('v_and_b32 v237, 7, v234')
            a('v_lshl_add_u32 v233, v237, 4, v233')
        else:
            a('v_lshl_add_u32 v233, v234, 4, v233')
        a('v_and_b32 v237, 16, v0')
        a('v_cmp_eq_u32 vcc, 16, v237')
        a('s_mov_b64 s[76:77], vcc')
        a('s_mul_i32 s67, s31, 10')
        a('s_add_u32 s67, s67, s28')
        a('s_lshl_b32 s67, s67, 13')
        a(f's_lshl_b32 s68, s35, {7 if o["r160"] else 8}')
        a('s_add_u32 s67, s67, s68')
        a(f's_add_u32 s67, s67, {WS_E4}')
        if aux:
            if o['r160']:
                a('s_lshl_b32 s71, s30, 3')
                a('s_add_u32 s71, s71, s29')
                a('s_lshr_b32 s69, s29, 1')
                a('s_add_u32 s69, s69, 16')
                a('s_bitcmp1_b32 s29, 0')
                a('s_cselect_b32 s69, 99, s69')
                a('s_cmp_eq_u32 s30, 2')
                a('s_cselect_b32 s71, s69, s71')
                a('s_cmp_eq_u32 s30, 3')
                a('s_cselect_b32 s71, 99, s71')
                a('s_cmp_ge_u32 s71, 10')
                a('s_cselect_b32 s69, 1, 0')
                a('s_mul_i32 s70, s69, 10')
                a('s_sub_u32 s70, s71, s70')
                a('s_lshl_b32 s68, s31, 1')
                a('s_add_u32 s68, s68, s69')
                a('s_mul_i32 s68, s68, 10')
                a('s_add_u32 s68, s68, s70')
                a('s_lshl_b32 s68, s68, 12')
                a(f's_add_u32 s68, s68, {WS_E4}')
                a('s_mul_i32 s69, s69, 1280')
                a('s_mul_i32 s81, s31, 160')
                a('s_add_u32 s69, s69, s81')
                a('s_lshl_b32 s70, s70, 4')
                a('s_add_u32 s70, s69, s70')
                a('v_and_b32 v234, 7, v0')
            else:
                a('s_mov_b32 s71, s35')
                a('s_cmp_ge_u32 s35, 5')
                a('s_cselect_b32 s69, 1, 0')
                a('s_mul_i32 s70, s69, 5')
                a('s_sub_u32 s70, s35, s70')
                a('s_lshl_b32 s68, s31, 1')
                a('s_add_u32 s68, s68, s69')
                a('s_mul_i32 s68, s68, 5')
                a('s_add_u32 s68, s68, s70')
                a('s_lshl_b32 s68, s68, 13')
                a(f's_add_u32 s68, s68, {WS_E4}')
                a('s_mul_i32 s69, s69, 1280')
                a('s_mul_i32 s81, s31, 160')
                a('s_add_u32 s69, s69, s81')
                a('s_lshl_b32 s70, s70, 5')
                a('s_add_u32 s70, s69, s70')
            a('s_add_u32 s69, s68, 4096')
            self.srd(40, 4, X_BYTES)
            self.srd(44, 22, X_BYTES)
            a('v_lshlrev_b32 v235, 1, v234')
            a('v_lshlrev_b32 v234, 4, v0')
            a('buffer_load_ushort v236, v235, s[40:43], s70 offen')
            a('s_waitcnt vmcnt(0)')
            a('v_lshlrev_b32 v236, 16, v236')
        a(f's_mov_b32 s80, {o["spin"]}')
        a(f's_mov_b32 s62, {LOG2E}')

    def gemv_pre(self):
        a = self.a
        for t in range(2):
            a(f'ds_read_b128 v[{40+4*t}:{43+4*t}], v230 offset:{64*t}')
        a(f'ds_read_b64_tr_b16 v[72:73], v231 offset:{L_WD - L_WB}')
        a(f'ds_read_b64_tr_b16 v[74:75], v231 offset:{L_WD - L_WB + 640}')
        a(f'ds_read_b64_tr_b16 v[76:77], v232 offset:{L_WD - L_WB + 5120}')
        a(f'ds_read_b64_tr_b16 v[78:79], v232 offset:{L_WD - L_WB + 5120 + 640}')
        for t in range(6):
            a(f'ds_read_b64_tr_b16 v[{48+4*t}:{49+4*t}], v231 offset:{5120*t}')
            a(f'ds_read_b64_tr_b16 v[{50+4*t}:{51+4*t}], v231 offset:{5120*t + 640}')
        for k in (4, 5, 6, 7, 0, 1, 2, 3):
            a(f'v_mov_b32 v{80+k}, 0')
        a('s_waitcnt lgkmcnt(12)')
        for t in range(2):
            a(f'v_mfma_f32_16x16x32_bf16 v[84:87], v[{40+4*t}:{43+4*t}], v[{72+4*t}:{75+4*t}], v[84:87]')
        a('s_waitcnt lgkmcnt(0)')

    def tail(self):
        o = self.opt; a = self.a
        self.c('==== tail (all waves) ====')
        if o['noaux']:
            a('s_barrier'); a('s_barrier'); a('s_branch L_end')
        if not o['nlate']:
            a('s_barrier')
            self.stamp(5)
            a('s_cmp_ge_u32 s28, 2')
            a('s_cbranch_scc1 L_gather')
        else:
            a('s_cmp_ge_u32 s28, 2')
            a('s_cbranch_scc1 L_bar3b')
            self.label('L_pw')
            a(f'ds_read_b32 v8, v240 offset:{L_FLAG+4}')
            a('s_waitcnt lgkmcnt(0)')
            a('v_readfirstlane_b32 s56, v8')
            a('s_cmp_ge_u32 s56, 4')
            a('s_cbranch_scc0 L_pw')
            self.stamp(5)
        a(f'ds_read_b128 v[24:27], v240 offset:{L_ML}')
        a(f'ds_read_b128 v[28:31], v240 offset:{L_ML+16}')
        for cidx in range(8):
            a(f'ds_read_b64 v[{8+2*cidx}:{9+2*cidx}], v224 offset:{L_OL + 768*cidx}')
        a('s_waitcnt lgkmcnt(8)')
        a('v_max3_f32 v32, v24, v25, v26')
        a('v_max_f32 v32, v32, v27')
        for w in range(4):
            a(f'v_sub_f32 v{24+w}, v{24+w}, v32')
        for w in range(4):
            a(f'v_mul_f32 v{24+w}, s62, v{24+w}')
        for w in range(4):
            a(f'v_exp_f32 v{24+w}, v{24+w}')
        a('s_waitcnt lgkmcnt(0)')
        for w in range(4):
            a(f'v_add_f32 v{8+4*w}, v{8+4*w}, v{10+4*w}')
            a(f'v_add_f32 v{9+4*w}, v{9+4*w}, v{11+4*w}')
        a('v_mul_f32 v33, v24, v28')
        a('v_mul_f32 v236, v24, v8')
        a('v_mul_f32 v237, v24, v9')
        for w in range(1, 4):
            a(f'v_fmac_f32 v33, v{24+w}, v{28+w}')
            a(f'v_fmac_f32 v236, v{24+w}, v{8+4*w}')
            a(f'v_fmac_f32 v237, v{24+w}, v{9+4*w}')
        a('v_cndmask_b32 v236, v236, v32, s[74:75]')
        a('v_cndmask_b32 v237, v237, v33, s[74:75]')
        a('s_mov_b64 exec, s[72:73]')
        if o['local']:
            l1, l2 = self.newlab('L_pl'), self.newlab('L_pl')
            a('s_cmp_eq_u32 s87, 1')
            a(f's_cbranch_scc1 {l1}')
            a('buffer_store_dwordx4 v[236:239], v225, s[52:55], s64 offen sc1')
            a(f's_branch {l2}')
            self.label(l1)
            a('buffer_store_dwordx4 v[236:239], v225, s[52:55], s64 offen')
            self.label(l2)
        else:
            a('buffer_store_dwordx4 v[236:239], v225, s[52:55], s64 offen sc1')
        a('s_mov_b64 exec, -1')
        self.stamp(6)
        if o['nlate']:
            a('s_barrier')
            self.stamp(10)
        self.gemv_pre()
        a('s_branch L_bar4')
        self.label('L_gather')

        def o_loads():
            a('buffer_load_dwordx4 v[8:11], v226, s[52:55], s65 offen sc1')
            a('buffer_load_dwordx4 v[12:15], v226, s[52:55], s66 offen sc1')
            a('buffer_load_dwordx4 v[16:19], v227, s[52:55], s65 offen sc1')
            a('buffer_load_dwordx4 v[20:23], v227, s[52:55], s66 offen sc1')
        if o['nlate']:
            self.label('L_bar3b')
            a('s_barrier')
        o_loads()
        a('s_cmp_ge_u32 s28, 5')
        a('s_cbranch_scc1 L_o_wait')
        self.gemv_pre()
        a('s_branch L_o_wait')
        self.label('L_o_poll')
        o_loads()
        self.label('L_o_wait')
        a('s_waitcnt vmcnt(0)')
        self.poll_check([8, 12, 16, 20], 'L_o_poll', sleep=o['tsleep'])
        self.stamp(6)
        a('v_max_f32 v24, v16, v20')
        self.swap_reduce('v_max_f32', 24, 25, 32)
        a('v_sub_f32 v16, v16, v24')
        a('v_sub_f32 v20, v20, v24')
        a('v_mul_f32 v16, s62, v16')
        a('v_mul_f32 v20, s62, v20')
        a('v_exp_f32 v16, v16')
        a('v_exp_f32 v20, v20')
        a('s_nop 0')
        a('v_mul_f32 v26, v16, v17')
        a('v_mul_f32 v27, v16, v8')
        a('v_mul_f32 v28, v16, v9')
        a('v_fmac_f32 v26, v20, v21')
        a('v_fmac_f32 v27, v20, v12')
        a('v_fmac_f32 v28, v20, v13')
        a('v_mov_b32 v29, v26')
        a('v_mov_b32 v30, v27')
        a('v_mov_b32 v31, v28')
        a('s_nop 0')
        a('v_permlane32_swap_b32 v26, v29')
        a('v_permlane32_swap_b32 v27, v30')
        a('v_permlane32_swap_b32 v28, v31')
        a('v_add_f32 v26, v26, v29')
        a('v_add_f32 v27, v27, v30')
        a('v_add_f32 v28, v28, v31')
        a('v_rcp_f32 v26, v26')
        a('s_nop 0')
        a('v_mul_f32 v27, v27, v26')
        a('v_mul_f32 v28, v28, v26')
        a('v_cvt_pk_bf16_f32 v27, v27, v28')
        a('ds_write_b32 v228, v27')
        if o['dbg']:
            a('s_lshl_b32 s60, s2, 10'); a(f's_add_u32 s60, s60, {WS_DBG + 0x40000 - L_ON}')
            a('buffer_store_dword v27, v228, s[52:55], s60 offen')
        a('s_waitcnt lgkmcnt(0)')
        self.label('L_bar4')
        a('s_barrier')
        self.stamp(7)
        a('s_cmp_ge_u32 s28, 5')
        a('s_cbranch_scc1 L_reduce')
        for t in range(6):
            a(f'ds_read_b128 v[{16+4*t}:{19+4*t}], v229 offset:{64*t}')
        for t in range(6):
            a(f's_waitcnt lgkmcnt({5-t})')
            a(f'v_mfma_f32_16x16x32_bf16 v[80:83], v[{16+4*t}:{19+4*t}], v[{48+4*t}:{51+4*t}], v[80:83]')
        a('v_cndmask_b32 v237, v84, v85, s[76:77]')
        a('s_mov_b32 exec_hi, 0')
        a('s_nop 5')
        a('v_cndmask_b32 v236, v80, v81, s[76:77]')
        a(f'buffer_store_dwordx4 v[236:239], v233, s[52:55], s67 offen {o["e4st"]}')
        self.stamp(8)
        a('s_branch L_end')
        self.label('L_reduce')
        a('s_cmp_lg_u32 s28, 5')
        a('s_cbranch_scc1 L_end')
        nred = 20 if o['r160'] else 10
        nld = 4 if o['r160'] else 8
        a(f's_cmp_ge_u32 s71, {nred}')
        a('s_cbranch_scc1 L_end')
        self.label('L_r_poll')
        for i in range(nld):
            so = 's68' if i < 4 else 's69'
            a(f'buffer_load_dwordx4 v[{8+4*i}:{11+4*i}], v234, s[52:55], {so} offen offset:{1024*(i%4)} {o["e4ld"]}')
        a('s_waitcnt vmcnt(0)')
        self.poll_check([8 + 4 * i for i in range(nld)], 'L_r_poll', sleep=o['rsleep'])
        self.stamp(10)
        for i in range(1, nld):
            a(f'v_add_f32 v8, v8, v{8+4*i}')
            a(f'v_add_f32 v9, v9, v{9+4*i}')
        if o['r160']:
            a('s_nop 0')
            self.dpp('v_add_f32', 8, 8, 8, 'row_ror:8')
            self.dpp('v_add_f32', 9, 9, 9, 'row_ror:8')
        for which in (16, 32):
            a('v_mov_b32 v10, v8')
            a('v_mov_b32 v11, v9')
            a('s_nop 0')
            a(f'v_permlane{which}_swap_b32 v8, v10')
            a(f'v_permlane{which}_swap_b32 v9, v11')
            a('v_add_f32 v8, v8, v10')
            a('v_add_f32 v9, v9, v11')
        a('v_cvt_pk_bf16_f32 v8, v8, v9')
        a('v_lshlrev_b32 v9, 16, v8')
        a('v_add_f32 v9, v236, v9')
        a('v_cvt_pk_bf16_f32 v9, v9, v9')
        a('v_lshlrev_b32 v9, 16, v9')
        a('v_and_b32 v8, 0xffff0000, v8')
        a('v_add_f32 v9, v9, v8')
        a('v_cvt_pk_bf16_f32 v9, v9, v9')
        a(f's_mov_b64 exec, {0xff if o["r160"] else 0xffff}')
        a('buffer_store_short v9, v235, s[44:47], s70 offen')
        self.stamp(9)
        a('s_cmp_lg_u32 s35, 0'); a('s_cbranch_scc1 L_end')
        a('s_cmp_lg_u32 s31, 0'); a('s_cbranch_scc1 L_end')
        a('s_mov_b64 exec, 1')
        a(f'buffer_store_dwordx2 v[238:239], v240, s[52:55], 0 offen offset:{WS_EPOCH} sc1')


if __name__ == '__main__':
    opts = {}
    for arg in sys.argv[2:]:
        k, v = arg.split('=')
        try:
            v = eval(v)
        except Exception:
            pass
        opts[k] = v
    src = Gen(**opts).build()
    open(sys.argv[1], 'w').write(src)
    print('wrote', sys.argv[1], len(src), 'bytes')
```

```python
import sys

NAME = 'parallel_sum__mha_block_cached__swiglu_ffn__decode_kernel'

D = 640; H = 32; SK = 4096; DH = 192; F = 1536
K_BYTES = 2 * H * SK * DH * 2
WQ_BYTES = D * H * DH * 2
WO_BYTES = H * DH * D * 2
WG_BYTES = D * F * 2
WD_BYTES = F * D * 2
X_BYTES = 2 * D * 2

WS_EPOCH = 0
WS_E1 = 0x10000
WS_F1 = 0xD8000
WS_F0 = 0xDE000
WS_E2F = 0xD0000
WS_E2 = 0xE0000
WS_E3 = 0x140000
WS_E4 = 0x1C0000
WS_USED = 0x260000
WS_PR = 0x270000
WS_DBG = 0x300000
WS_SRD_BYTES = 0x800000

L_XN = 0
L_Q = 2560
L_HV = 2944
L_ON = 3200
L_ML = 3968
L_FLAG = 4032
L_OL = 4096
L_UQ = 10240
L_UF = 40960
L_WB = 56320
L_WD = 87040
LDS_BYTES = 95232

LOG2E = 0x3FB8AA3B
SCALE = 0x3D93CD3A
INV640 = 0x3ACCCCCD
EPS_BF = 0x37280000


class Gen:
    def __init__(self, **opt):
        self.L = []
        self.opt = dict(NP=4, WL=5, gran=1, ntk='nt', ntv='nt', ntw='nt', dbg=False, spin=1 << 16, stamps=False, dbgtime=False, noaux=False, sent=True, psleep=4, ffn_late=True, skipffn=False, skipw=False, smem=True, fsleep=16, tsleep=0, wend=8, wendn=4, whalf=False, nlate=0, wtrig=4, wearly=0, ntwb='', prog=False, ctrl=None, cgain=1, catom='noret', fwait=10, cpart=[1,2,4,7], cmax=3, cmin=3, cstep=1, rot=None, inter=0, local=True, rsleep=0, e4ld='sc1', e4st='sc1', e3ld='sc1', r160=True, local1=False, l1try=8, hintfl='sc1', b2at=None, b1late=4, nob1=False)
        self.opt.update(opt)
        self.lab = 0
        self.ool = []

    def a(self, s):
        self.L.append('  ' + s)

    def label(self, s):
        self.L.append(s + ':')

    def newlab(self, p='L'):
        self.lab += 1
        return f'{p}_{self.lab}'

    def c(self, s):
        self.L.append('  ; ' + s)

    def srd(self, r, base, nbytes):
        self.a(f's_mov_b32 s{r}, s{base}')
        self.a(f's_and_b32 s{r+1}, s{base+1}, 0xffff')
        self.a(f's_mov_b32 s{r+2}, {nbytes}')
        self.a(f's_mov_b32 s{r+3}, 0x20000')

    def dpp(self, op, dst, src0, src1, ctrl):
        self.a(f'{op}_dpp v{dst}, v{src0}, v{src1} {ctrl} row_mask:0xf bank_mask:0xf')

    def swap_reduce(self, op, v, t, which):
        self.a(f'v_mov_b32 v{t}, v{v}')
        self.a('s_nop 1')
        self.a(f'v_permlane{which}_swap_b32 v{v}, v{t}')
        self.a(f'{op} v{v}, v{v}, v{t}')

    def stamp(self, idx):
        if not self.opt['stamps']:
            return
        self.a('s_memrealtime s[94:95]')
        self.a('s_waitcnt lgkmcnt(0)')
        self.a(f'v_writelane_b32 v249, s94, {idx}')

    def stamp_dump(self):
        if not self.opt['stamps']:
            return
        a = self.a
        a('s_mov_b64 exec, 0xffff')
        a('s_lshl_b32 s92, s2, 3')
        a('s_add_u32 s92, s92, s28')
        a('s_lshl_b32 s92, s92, 6')
        a(f's_add_u32 s92, s92, {WS_DBG}')
        a('v_lshlrev_b32 v251, 2, v0')
        a(f'buffer_store_dword v249, v251, s[52:55], s92 offen')

    def tmark(self, i):
        if self.opt['dbgtime']:
            self.a(f's_memrealtime s[{84+2*i}:{85+2*i}]')
            self.a('s_waitcnt lgkmcnt(0)')

    def smem_poll(self, base, ntags, sleep, lo_only=False):
        a = self.a
        again, done = self.newlab('L_sp'), self.newlab('L_sd')
        miss = self.newlab('L_sm')
        self.label(again)
        a(f's_load_dwordx16 s[64:79], s[{base}:{base+1}], 0 glc')
        a('s_waitcnt lgkmcnt(0)')
        for t in range(ntags):
            if lo_only:
                a(f's_cmp_eq_u32 s{64+2*t}, s36')
            else:
                a(f's_cmp_eq_u64 s[{64+2*t}:{65+2*t}], s[36:37]')
            a(f's_cbranch_scc0 {miss}')
        a(f's_branch {done}')
        self.label(miss)
        a('s_sub_u32 s80, s80, 1')
        a('s_cmp_eq_u32 s80, 0')
        a(f's_cbranch_scc1 {done}')
        a(f's_sleep {sleep}')
        a(f's_branch {again}')
        self.label(done)

    def poll_check(self, regs, again, cnt='s80', sleep=1):
        first = True
        for r in regs:
            self.a(f'v_cmp_ne_u64 vcc, s[36:37], v[{r+2}:{r+3}]')
            if first:
                self.a('s_mov_b64 s[82:83], vcc')
                first = False
            else:
                self.a('s_or_b64 s[82:83], s[82:83], vcc')
        done = self.newlab('L_pd')
        self.a('s_cmp_eq_u64 s[82:83], 0')
        self.a(f's_cbranch_scc1 {done}')
        self.a(f's_sub_u32 {cnt}, {cnt}, 1')
        self.a(f's_cmp_eq_u32 {cnt}, 0')
        self.a(f's_cbranch_scc1 {done}')
        if sleep:
            self.a(f's_sleep {sleep}')
        self.a(f's_branch {again}')
        self.label(done)

    def build(self):
        o = self.opt
        NP = o['NP']
        a = self.a
        head = [f'; fused LN + q-proj + split-KV attention + out-proj + SwiGLU FFN (decode), one launch',
                f'; @launch grid=(256,1,1) block=(512,1,1) lds={LDS_BYTES}',
                '.amdgcn_target "amdgcn-amd-amdhsa--gfx950"', '.text', f'.globl {NAME}', '.p2align 8',
                f'.type {NAME},@function', f'{NAME}:']
        a('s_cmp_ge_u32 s2, 256')
        a('s_cbranch_scc1 L_exit')
        if o['stamps']:
            a('v_mov_b32 v249, 0')
        a('s_load_dwordx16 s[4:19], s[0:1], 0')
        a('s_load_dwordx8 s[20:27], s[0:1], 64')
        a('v_lshrrev_b32 v1, 6, v0')
        a('v_and_b32 v0, 63, v0')
        a('s_and_b32 s29, s2, 7')
        a('v_readfirstlane_b32 s28, v1')
        a('s_lshr_b32 s34, s2, 3')
        a('s_lshr_b32 s30, s34, 3')
        a('s_and_b32 s31, s34, 7')
        a('s_lshl_b32 s35, s29, 2')
        a('s_add_u32 s35, s35, s30')
        a('s_lshr_b32 s32, s31, 2')
        a('s_and_b32 s33, s31, 3')
        a('s_waitcnt lgkmcnt(0)')
        a(f's_load_dwordx2 s[36:37], s[26:27], {WS_EPOCH}')
        self.srd(52, 26, WS_SRD_BYTES)
        self.stamp(0)
        self.tmark(0)
        a('s_cmp_ge_u32 s28, 4')
        a('s_cbranch_scc1 L_aux')
        self.stream()
        self.L += self.ool
        self.label('L_aux')
        self.aux()
        self.label('L_tail')
        self.tail()
        self.label('L_end')
        self.stamp_dump()
        self.label('L_exit')
        a('s_endpgm')
        nv = 256
        foot = ['.section .rodata,"a"', '.p2align 6', f'.amdhsa_kernel {NAME}',
                f'  .amdhsa_next_free_vgpr {nv}', '  .amdhsa_next_free_sgpr 96', f'  .amdhsa_accum_offset {nv}',
                '  .amdhsa_group_segment_fixed_size 0', '  .amdhsa_kernarg_size 96',
                '  .amdhsa_user_sgpr_count 2', '  .amdhsa_user_sgpr_kernarg_segment_ptr 1',
                '  .amdhsa_system_sgpr_workgroup_id_x 1', '  .amdhsa_float_denorm_mode_32 3',
                '.end_amdhsa_kernel']
        return '\n'.join(head + self.L + foot) + '\n'

    def stream(self):
        o = self.opt; a = self.a
        NP = o['NP']
        VOFF = 1
        M = 2
        Q = 8
        ACC = 20
        S = 32
        T = 48
        RB = 72
        assert RB + 24 * NP <= 250
        self.c('==== stream waves ====')
        self.srd(40, 6, K_BYTES)
        a('s_lshl_b32 s56, s32, 5')
        a('s_add_u32 s56, s56, s35')
        a('s_lshl_b32 s56, s56, 12')
        a('s_lshl_b32 s57, s33, 10')
        a('s_add_u32 s56, s56, s57')
        if o['inter'] == 0:
            a('s_lshl_b32 s57, s28, 8')
        elif o['inter'] == 1:
            a('s_lshl_b32 s57, s28, 4')
        else:
            a('s_lshl_b32 s57, s28, 5')
        a('s_add_u32 s56, s56, s57')
        a('s_mul_i32 s58, s56, 384')
        a(f'v_lshrrev_b32 v{T}, 3, v0')
        a(f'v_mul_u32_u24 v{T}, 384, v{T}')
        a(f'v_and_b32 v{T+1}, 7, v0')
        a(f'v_lshlrev_b32 v{T+2}, 4, v{T+1}')
        a(f'v_add_u32 v{VOFF}, v{T}, v{T+2}')
        if o['rot']:
            ra, rb = o['rot']
            a(f's_mul_i32 s57, s2, {ra}')
            a(f's_mul_i32 s59, s28, {rb}')
            a('s_add_u32 s57, s57, s59')
            a('s_and_b32 s57, s57, 15')
            a('s_mul_i32 s57, s57, 6144')
            a('s_add_u32 s86, s58, 98304')
            a('s_add_u32 s58, s58, s57')
        a('s_mov_b32 s59, s58')
        if not o['b1late'] and not o['nob1']:
            a('s_barrier')

        def late_setup():
            self.srd(44, 8, K_BYTES)
            a(f'v_and_b32 v{T+1}, 7, v0')
            a(f'v_and_b32 v{T+2}, 1, v0')
            a(f'v_mov_b32 v{T+3}, 0xffff')
            a(f'v_mov_b32 v{T+4}, 0xffff0000')
            a(f'v_cmp_eq_u32 vcc, 1, v{T+2}')
            a(f'v_lshrrev_b32 v{T+1}, 1, v{T+1}')
            a('s_nop 0')
            a(f'v_cndmask_b32 v{T+3}, v{T+3}, v{T+4}, vcc')
            for r in range(4):
                a(f'v_cmp_eq_u32 vcc, {r}, v{T+1}')
                a('s_nop 1')
                a(f'v_cndmask_b32 v{M+r}, 0, v{T+3}, vcc')
            for i in range(12):
                a(f'v_mov_b32 v{ACC+i}, 0')

        seq = [('K', p) for p in range(16)] + [('V', p) for p in range(16)]

        def issue(idx):
            if idx >= len(seq):
                return []
            kind, p = seq[idx]
            srd = 40 if kind == 'K' else 44
            nt = o['ntk'] if kind == 'K' else o['ntv']
            R = RB + 24 * (idx % NP)
            out = []
            if kind == 'V' and p == 0:
                out.append('s_mov_b32 s59, s58')
            for g in range(2):
                if o['WL'] and o['gran'] == 3 and not (idx * 6 + 3 * g + 3 <= o['WL']):
                    out.append(f's_waitcnt vmcnt({o["WL"] - 3})')
                for i in range(3):
                    wl = o['WL']
                    if o['wend'] and idx >= 32 - o['wendn']:
                        wl = o['wend']
                    if o['whalf'] and (3 * g + i) % 2 == 1:
                        wl += 1
                    adaptive = o['ctrl'] and idx - NP > o['ctrl'][1] and not (o['wend'] and idx >= 32 - o['wendn'])
                    r = R + 12 * g + 4 * i
                    ld = f'buffer_load_dwordx4 v[{r}:{r+3}], v{VOFF}, s[{srd}:{srd+3}], s59 offen offset:{3072*g+128*i} {nt}'
                    if adaptive:
                        n = 3 * g + i
                        lf, ls, lb = self.newlab('L_cf'), self.newlab('L_cs'), self.newlab('L_cb')
                        out.append(f's_bitcmp1_b32 s81, {n}')
                        out.append(f's_cbranch_scc1 {lf}')
                        out.append(f's_bitcmp1_b32 s81, {8 + n}')
                        out.append(f's_cbranch_scc1 {ls}')
                        out.append(f's_waitcnt vmcnt({wl - 1})')
                        out.append(ld)
                        out.append(('L', lb))
                        self.ool += [f'{lf}:', f'  s_waitcnt vmcnt({wl - 1 + o["cstep"]})', '  ' + ld, f'  s_branch {lb}',
                                     f'{ls}:', f'  s_waitcnt vmcnt({wl - 2})', '  ' + ld, f'  s_branch {lb}']
                        continue
                    if o['WL'] and o['gran'] == 1 and not (idx * 6 + 3 * g + i + 1 <= wl):
                        out.append(f's_waitcnt vmcnt({wl - 1})')
                    out.append(ld)
            if o['inter'] == 0:
                out.append('s_add_u32 s59, s59, 6144')
            elif o['inter'] == 1:
                out.append('s_add_u32 s59, s59, 24576')
            else:
                out.append(f's_add_u32 s59, s59, {6144 if p % 2 == 0 else 6144 + 3 * 12288}')
            if o['rot']:
                out.append('s_cmp_ge_u32 s59, s86')
                out.append('s_cselect_b32 s57, 98304, 0')
                out.append('s_sub_u32 s59, s59, s57')
            return out

        def emit(lst):
            for ins in lst:
                if isinstance(ins, tuple):
                    self.label(ins[1])
                else:
                    a(ins)

        def mode_read(idx):
            if o['ctrl'] and idx > o['ctrl'][1] and idx + NP < 32:
                a(f'ds_read_b32 v242, v240 offset:{L_FLAG+12}')

        def mode_get(idx):
            if o['ctrl'] and idx > o['ctrl'][1] and idx + NP < 32:
                a('s_waitcnt lgkmcnt(0)')
                a('v_readfirstlane_b32 s81, v242')

        def checkpoint(idx):
            if o['fwait'] and idx == o['fwait']:
                a('s_mov_b64 exec, 1')
                a(f'ds_add_u32 v240, v241 offset:{L_FLAG+16}')
                a('s_mov_b64 exec, -1')
            if o['ctrl'] and idx in o['ctrl']:
                a('s_mov_b64 exec, 1')
                a(f'ds_add_u32 v240, v241 offset:{L_FLAG+8}')
                a('s_mov_b64 exec, -1')

        pre = []
        b2at = o['b2at'] or NP
        for idx in range(b2at):
            pre += issue(idx)
        done_prep = False
        nld = 0
        for ins in pre:
            if ins.startswith('buffer_load'):
                if o['b1late'] and nld == o['b1late'] and not o['nob1']:
                    a('s_barrier')
                nld += 1
            if ins.startswith('s_waitcnt') and not done_prep:
                late_setup()
                a('s_waitcnt lgkmcnt(0)')
                a('s_add_u32 s36, s36, 1')
                self.tail_prep(aux=False)
                done_prep = True
            a(ins)
        assert done_prep
        self.stamp(1)
        a('s_barrier')
        self.stamp(2)
        a(f'v_and_b32 v{T}, 7, v0')
        a(f'v_lshlrev_b32 v{T}, 4, v{T}')
        for i in range(3):
            a(f'ds_read_b128 v[{Q+4*i}:{Q+4*i+3}], v{T} offset:{L_Q + 128*i}')
        if o['local']:
            a(f'ds_read_b32 v{T+9}, v240 offset:{L_FLAG+20}')
        a(f'v_mov_b32 v{T+8}, 0xff800000')
        MX = T + 8
        a(f's_mov_b32 s60, {SCALE}')
        a(f's_mov_b32 s61, 0xffff0000')
        a(f's_mov_b32 s62, {LOG2E}')
        for idx in range(b2at, NP):
            emit(issue(idx))
        a('s_waitcnt lgkmcnt(0)')
        if o['local']:
            a(f'v_readfirstlane_b32 s87, v{T+9}')

        def outstanding_after(idx):
            last = min(idx + NP - 1, len(seq) - 1)
            return (last - idx) * 6

        for p in range(16):
            idx = p
            R = RB + 24 * (idx % NP)
            self.c(f'K pair {p}')
            mode_read(idx)
            a(f's_waitcnt vmcnt({outstanding_after(idx)})')
            A, B = T, T + 1
            a(f'v_mov_b32 v{A}, 0')
            a(f'v_mov_b32 v{B}, 0')
            for g, acc in ((0, A), (1, B)):
                for i in range(3):
                    for r in range(4):
                        a(f'v_dot2c_f32_bf16 v{acc}, v{R+12*g+4*i+r}, v{Q+4*i+r}')
            nxt = issue(idx + NP)
            late_issue = any(isinstance(x, tuple) for x in nxt)
            fill = [] if late_issue else list(nxt)

            def f(n=1):
                for _ in range(n):
                    a(fill.pop(0) if fill else 's_nop 0')
            q1 = 'quad_perm:[1,0,3,2]'; q2 = 'quad_perm:[2,3,0,1]'; hm = 'row_half_mirror'
            self.dpp('v_add_f32', A, A, A, q1)
            f(2)
            self.dpp('v_add_f32', B, B, B, q1)
            self.dpp('v_add_f32', A, A, A, q2)
            f(1)
            self.dpp('v_add_f32', B, B, B, q2)
            self.dpp('v_add_f32', A, A, A, hm)
            f(1)
            self.dpp('v_add_f32', B, B, B, hm)
            while fill:
                f(1)
            if late_issue:
                mode_get(idx)
                emit(nxt)
            checkpoint(idx)
            a(f'v_cvt_pk_bf16_f32 v{T+2}, v{A}, v{B}')
            a(f'v_lshlrev_b32 v{T+3}, 16, v{T+2}')
            a(f'v_and_b32 v{T+4}, s61, v{T+2}')
            a(f'v_mul_f32 v{T+3}, s60, v{T+3}')
            a(f'v_mul_f32 v{T+4}, s60, v{T+4}')
            a(f'v_max3_f32 v{MX}, v{MX}, v{T+3}, v{T+4}')
            a(f'v_cvt_pk_bf16_f32 v{S+p}, v{T+3}, v{T+4}')
            if o['prog'] and p == 7:
                self.stamp(12)
            if o['prog'] and p == 15:
                self.stamp(13)
        self.c('wave max')
        a('s_nop 1')
        self.dpp('v_max_f32', MX, MX, MX, 'row_ror:8')
        self.swap_reduce('v_max_f32', MX, T, 16)
        self.swap_reduce('v_max_f32', MX, T, 32)
        a(f'v_cvt_pk_bf16_f32 v{T}, v{MX}, v{MX}')
        a(f'v_lshlrev_b32 v{MX}, 16, v{T}')
        NM = T + 9
        a(f'v_mul_f32 v{NM}, s62, v{MX}')
        a(f'v_sub_f32 v{NM}, 0, v{NM}')
        LA = T + 10
        a(f'v_mov_b32 v{LA}, 0')
        if o['dbg']:
            a('s_lshl_b32 s63, s2, 2'); a('s_add_u32 s63, s63, s28'); a('s_lshl_b32 s63, s63, 12')
            a(f's_add_u32 s63, s63, {WS_DBG + 0x100000}')
            a(f'v_lshlrev_b32 v{T}, 2, v0')
            for p in range(16):
                a(f'buffer_store_dword v{S+p}, v{T}, s[52:55], s63 offen offset:{256*p}')
            a('s_waitcnt vmcnt(0)')
        PA = T + 12
        for p in range(16):
            idx = 16 + p
            R = RB + 24 * (idx % NP)
            self.c(f'V pair {p}')
            mode_read(idx)
            e0, e1 = T, T + 1
            a(f'v_lshlrev_b32 v{e0}, 16, v{S+p}')
            a(f'v_and_b32 v{e1}, s61, v{S+p}')
            a(f'v_fma_f32 v{e0}, v{e0}, s62, v{NM}')
            a(f'v_fma_f32 v{e1}, v{e1}, s62, v{NM}')
            a(f'v_exp_f32 v{e0}, v{e0}')
            a(f'v_exp_f32 v{e1}, v{e1}')
            a('s_nop 0')
            a(f'v_cvt_pk_bf16_f32 v{T+2}, v{e0}, v{e0}')
            a(f'v_cvt_pk_bf16_f32 v{T+3}, v{e1}, v{e1}')
            for r in range(4):
                a(f'v_and_b32 v{PA+r}, v{T+2}, v{M+r}')
            for r in range(4):
                a(f'v_and_b32 v{PA+4+r}, v{T+3}, v{M+r}')
            a(f'v_add_f32 v{LA}, v{LA}, v{e0}')
            a(f'v_add_f32 v{LA}, v{LA}, v{e1}')
            if o['dbg'] and False:
                pass
            a(f's_waitcnt vmcnt({outstanding_after(idx)})')
            for g in range(2):
                for i in range(3):
                    r = R + 12 * g + 4 * i
                    a(f'v_mfma_f32_16x16x32_bf16 v[{ACC+4*i}:{ACC+4*i+3}], v[{PA+4*g}:{PA+4*g+3}], v[{r}:{r+3}], v[{ACC+4*i}:{ACC+4*i+3}]')
            mode_get(idx)
            emit(issue(idx + NP))
            checkpoint(idx)
            if o['prog'] and p == 7:
                self.stamp(14)
            if o['prog'] and p == 11:
                self.stamp(15)
            if o['nlate'] and idx + NP == 31 - o['wearly']:
                a('s_mov_b64 exec, 1')
                a(f'ds_add_u32 v240, v241 offset:{L_FLAG}')
                a('s_mov_b64 exec, -1')
        self.c('wave epilogue')
        self.stamp(3)
        a('s_nop 1')
        self.dpp('v_add_f32', LA, LA, LA, 'row_ror:8')
        self.swap_reduce('v_add_f32', LA, T, 16)
        self.swap_reduce('v_add_f32', LA, T, 32)
        a(f'v_lshrrev_b32 v{T}, 5, v0')
        a(f's_lshl_b32 s63, s28, 1')
        a(f'v_add_u32 v{T}, s63, v{T}')
        a(f'v_mul_u32_u24 v{T}, 768, v{T}')
        a(f'v_and_b32 v{T+1}, 7, v0')
        a(f'v_lshlrev_b32 v{T+1}, 5, v{T+1}')
        a(f'v_and_b32 v{T+2}, 16, v0')
        a(f'v_add3_u32 v{T}, v{T}, v{T+1}, v{T+2}')
        a(f's_lshl_b32 s63, s28, 2')
        a(f'v_mov_b32 v{T+3}, s63')
        a('s_mov_b32 exec_lo, 0x00ff00ff')
        a('s_mov_b32 exec_hi, 0xff00ff00')
        for i in range(3):
            a(f'ds_write_b128 v{T}, v[{ACC+4*i}:{ACC+4*i+3}] offset:{L_OL + 256*i}')
        a('s_mov_b64 exec, 1')
        a(f'ds_write_b32 v{T+3}, v{MX} offset:{L_ML}')
        a(f'ds_write_b32 v{T+3}, v{LA} offset:{L_ML+16}')
        a('s_waitcnt lgkmcnt(0)')
        if o['nlate']:
            a(f'ds_add_u32 v240, v241 offset:{L_FLAG+4}')
        a('s_mov_b64 exec, -1')
        a('s_branch L_tail')

    def gemv_unit(self, W, XB, ntile, nstep, lastvalid, addr, rowstride, tilebytes, acc):
        a = self.a
        for t in range(nstep):
            for tile in range(ntile):
                av = addr if t < nstep - 1 else addr + 1
                base = t * 32 * rowstride + tile * tilebytes
                r = W + 4 * (tile % 4)
                a(f'ds_read_b64_tr_b16 v[{r}:{r+1}], v{av} offset:{base}')
                a(f'ds_read_b64_tr_b16 v[{r+2}:{r+3}], v{av} offset:{base + 4*rowstride}')
                if tile % 4 == 3 or tile == ntile - 1:
                    a('s_waitcnt lgkmcnt(0)')
                    for tt in range(tile - tile % 4, tile + 1):
                        rr = W + 4 * (tt % 4)
                        a(f'v_mfma_f32_16x16x32_bf16 v[{acc+4*tt}:{acc+4*tt+3}], v[{rr}:{rr+3}], v[{XB+4*t}:{XB+4*t+3}], v[{acc+4*tt}:{acc+4*tt+3}]')

    def aux(self):
        o = self.opt; a = self.a
        ntw = o['ntw']
        self.c('==== aux waves ====')
        if o['noaux']:
            a('s_barrier'); a('s_barrier'); a('s_barrier'); a('s_barrier'); a('s_branch L_end')
        a('s_sub_u32 s38, s28, 4')
        self.srd(40, 4, X_BYTES)
        a('v_lshrrev_b32 v1, 5, v0')
        a('v_and_b32 v2, 31, v0')
        a('v_mul_u32_u24 v3, 1280, v1')
        a('v_mul_u32_u24 v4, 40, v2')
        a('v_add_u32 v3, v3, v4')
        a('buffer_load_dwordx4 v[8:11], v3, s[40:43], 0 offen')
        a('buffer_load_dwordx4 v[12:15], v3, s[40:43], 0 offen offset:16')
        a('buffer_load_dwordx2 v[16:17], v3, s[40:43], 0 offen offset:32')
        a('s_cmp_eq_u32 s38, 3')
        a('s_cbranch_scc1 L_aux_ffn_ld')
        self.srd(44, 10, WQ_BYTES)
        a('v_lshrrev_b32 v4, 3, v0')
        a('v_mul_u32_u24 v4, 12288, v4')
        a('v_and_b32 v5, 7, v0')
        a('v_lshlrev_b32 v5, 4, v5')
        a('v_add_u32 v4, v4, v5')
        a('s_mul_i32 s56, s31, 983040')
        a('s_mul_i32 s57, s35, 384')
        a('s_add_u32 s56, s56, s57')
        a('s_lshl_b32 s57, s38, 7')
        a('s_add_u32 s56, s56, s57')
        a('s_mul_i32 s57, s38, 10240')
        a(f's_add_u32 s57, s57, {L_UQ}')
        for i in range(10):
            a('s_mov_b32 m0, s57')
            a('s_add_u32 s57, s57, 1024')
            a(f'buffer_load_dwordx4 v4, s[44:47], s56 offen {ntw} lds')
            a('s_add_u32 s56, s56, 98304')
        if not o['nob1']:
            a('s_barrier')
        a('s_waitcnt vmcnt(10)')
        a('s_branch L_aux_ln')
        self.label('L_aux_ffn_ld')
        a('s_cmp_ge_u32 s34, 16')
        a('s_cselect_b32 s56, s18, s16')
        a('s_cselect_b32 s57, s19, s17')
        self.srd(44, 56, WG_BYTES)
        def ffn_dma():
            for i in range(3):
                a(f'v_add_u32 v43, {64*i}, v0')
                a('v_mul_u32_u24 v44, 2731, v43')
                a('v_lshrrev_b32 v44, 16, v44')
                a('v_mul_u32_u24 v45, 24, v44')
                a('v_sub_u32 v43, v43, v45')
                a('v_mul_u32_u24 v44, 3072, v44')
                a('v_lshlrev_b32 v43, 4, v43')
                a(f'v_add_u32 v{40+i}, v43, v44')
            a('s_and_b32 s56, s34, 15')
            a('s_mul_i32 s56, s56, 122880')
            a('s_mul_i32 s57, s29, 384')
            a('s_add_u32 s56, s56, s57')
            a(f's_mov_b32 s57, {L_UF}')
            for i in range(15):
                a('s_mov_b32 m0, s57')
                a('s_add_u32 s57, s57, 1024')
                a(f'buffer_load_dwordx4 v{40+i%3}, s[44:47], s56 offen {ntw} lds')
                if i % 3 == 2:
                    a('s_add_u32 s56, s56, 24576')
        if not o['ffn_late']:
            ffn_dma()
            a('s_barrier')
            a('s_waitcnt vmcnt(15)')
        else:
            if o['local1']:
                a('v_mov_b32 v43, 0')
                a(f'ds_write_b32 v43, v43 offset:{L_FLAG+24}')
                a('s_waitcnt lgkmcnt(0)')
            if not o['nob1']:
                a('s_barrier')
            if o['local1']:
                a('s_waitcnt lgkmcnt(0)')
                a('s_add_u32 s36, s36, 1')
                a('s_getreg_b32 s39, hwreg(HW_REG_XCC_ID, 0, 4)')
                a('s_add_u32 s39, s39, 1')
                a('s_lshl_b32 s39, s39, 24')
                a('s_add_u32 s39, s39, s37')
                a('v_mov_b32 v44, s36')
                a('v_mov_b32 v45, s39')
                a('v_mov_b32 v46, 0')
                a('s_lshl_b32 s56, s35, 7')
                a('s_lshl_b32 s57, s31, 3')
                a('s_add_u32 s56, s56, s57')
                a(f's_add_u32 s56, s56, {WS_F0}')
                a('s_mov_b64 exec, 1')
                a('buffer_store_dwordx2 v[44:45], v46, s[52:55], s56 offen sc1')
                a('s_mov_b64 exec, -1')
                a('s_lshl_b32 s56, s35, 7')
                a(f's_add_u32 s56, s56, {WS_F0}')
                a('s_add_u32 s58, s26, s56')
                a('s_addc_u32 s59, s27, 0')
                a(f's_mov_b32 s81, {o["l1try"]}')
                lt, ld = self.newlab('L_l1'), self.newlab('L_l1d')
                self.label(lt)
                a('s_sleep 4')
                a('s_load_dwordx16 s[64:79], s[58:59], 0 glc')
                a('s_waitcnt lgkmcnt(0)')
                a('s_mov_b32 s87, 1')
                for t in range(8):
                    a(f's_cmp_eq_u32 s{64+2*t}, s36')
                    a('s_cselect_b32 s87, s87, 0')
                    a(f's_cmp_eq_u32 s{65+2*t}, s39')
                    a('s_cselect_b32 s87, s87, 0')
                a('s_cmp_eq_u32 s87, 1')
                a(f's_cbranch_scc1 {ld}')
                a('s_sub_u32 s81, s81, 1')
                a('s_cmp_lg_u32 s81, 0')
                a(f's_cbranch_scc1 {lt}')
                self.label(ld)
                a('v_mov_b32 v43, 0')
                a('v_mov_b32 v44, s87')
                a(f'ds_write_b32 v43, v44 offset:{L_FLAG+24}')
            a('s_waitcnt vmcnt(1)' if o['local1'] else 's_waitcnt vmcnt(0)')
        self.label('L_aux_ln')
        self.stamp(1)
        X = 20
        for k in range(10):
            a(f'v_lshlrev_b32 v{X+2*k}, 16, v{8+k}')
            a(f'v_and_b32 v{X+2*k+1}, 0xffff0000, v{8+k}')
        a(f'v_add_f32 v44, v{X}, v{X+1}')
        a(f'v_add_f32 v45, v{X+2}, v{X+3}')
        for k in range(2, 10):
            a(f'v_add_f32 v{44+k%2}, v{44+k%2}, v{X+2*k}')
            a(f'v_add_f32 v{44+k%2}, v{44+k%2}, v{X+2*k+1}')
        a('v_add_f32 v44, v44, v45')

        def red32(v):
            for ctrl in ('quad_perm:[1,0,3,2]', 'quad_perm:[2,3,0,1]', 'row_half_mirror', 'row_mirror'):
                a('s_nop 1')
                self.dpp('v_add_f32', v, v, v, ctrl)
            self.swap_reduce('v_add_f32', v, 47, 16)
        red32(44)
        a(f's_mov_b32 s56, {INV640}')
        a('v_mul_f32 v44, s56, v44')
        a('v_mov_b32 v45, 0')
        a('v_mov_b32 v46, 0')
        for k in range(20):
            a(f'v_sub_f32 v48, v{X+k}, v44')
            a(f'v_fmac_f32 v{45+k%2}, v48, v48')
        a('v_add_f32 v45, v45, v46')
        red32(45)
        a('v_mul_f32 v45, s56, v45')
        a('v_cvt_pk_bf16_f32 v46, v44, v45')
        a('v_lshlrev_b32 v44, 16, v46')
        a('v_and_b32 v45, 0xffff0000, v46')
        a(f'v_add_f32 v45, {EPS_BF}, v45')
        a('v_cvt_pk_bf16_f32 v45, v45, v45')
        a('v_and_b32 v45, 0xffff0000, v45')
        a('v_sqrt_f32 v45, v45')
        a('s_nop 0')
        a('v_cvt_pk_bf16_f32 v45, v45, v45')
        a('v_and_b32 v45, 0xffff0000, v45')
        a('v_rcp_f32 v45, v45')
        for k in range(10):
            a(f'v_sub_f32 v48, v{X+2*k}, v44')
            a(f'v_sub_f32 v49, v{X+2*k+1}, v44')
            a('v_cvt_pk_bf16_f32 v48, v48, v49')
            a('v_and_b32 v49, 0xffff0000, v48')
            a('v_lshlrev_b32 v48, 16, v48')
            a('v_mul_f32 v48, v48, v45')
            a('v_mul_f32 v49, v49, v45')
            a(f'v_cvt_pk_bf16_f32 v{8+k}, v48, v49')
        for k in range(5):
            a(f'ds_write_b64 v3, v[{8+2*k}:{9+2*k}] offset:{L_XN + 8*k}')
        a('v_and_b32 v4, 15, v0')
        a('v_lshrrev_b32 v5, 4, v0')
        a('v_and_b32 v6, 1, v0')
        a('v_mul_u32_u24 v6, 1280, v6')
        a('v_lshlrev_b32 v7, 4, v5')
        a('v_add_u32 v6, v6, v7')
        a('v_lshlrev_b32 v50, 3, v5')
        a('v_lshrrev_b32 v51, 2, v4')
        a('v_add_u32 v50, v50, v51')
        a('v_and_b32 v51, 3, v4')
        a('v_lshlrev_b32 v51, 3, v51')
        a('s_waitcnt lgkmcnt(0)')
        a('s_cmp_eq_u32 s38, 3')
        a('s_cbranch_scc1 L_aux_ffn')

        XB = 8
        a('s_mul_i32 s56, s31, 160')
        a('v_add_u32 v6, s56, v6')
        for t in range(3):
            a(f'ds_read_b128 v[{XB+4*t}:{XB+4*t+3}], v6 offset:{L_XN + 64*t}')
        a('s_mul_i32 s56, s38, 10240')
        a(f's_add_u32 s56, s56, {L_UQ}')
        a('v_lshlrev_b32 v52, 7, v50')
        a('v_add3_u32 v52, v52, v51, s56')
        a('v_cmp_le_u32 vcc, 2, v5')
        a('v_subrev_u32 v53, 2048, v52')
        a('s_nop 0')
        a('v_cndmask_b32 v53, v52, v53, vcc')
        ACC = 24
        for k in range(16):
            a(f'v_mov_b32 v{ACC+k}, 0')
        a('s_waitcnt lgkmcnt(0)')
        for r in range(4):
            a(f'v_cndmask_b32 v{XB+8+r}, v{XB+8+r}, 0, vcc')
        if o['local1']:
            a('s_add_u32 s36, s36, 1')
            a('s_getreg_b32 s39, hwreg(HW_REG_XCC_ID, 0, 4)')
            a('s_add_u32 s39, s39, 1')
            a('s_lshl_b32 s39, s39, 24')
            a('s_add_u32 s39, s39, s37')
        a('s_waitcnt vmcnt(0)')
        self.stamp(2)
        self.gemv_unit(W=56, XB=XB, ntile=4, nstep=3, lastvalid=2, addr=52, rowstride=128, tilebytes=32, acc=ACC)
        a('v_and_b32 v6, 1, v4')
        a('v_mul_u32_u24 v6, 12288, v6')
        a('v_lshrrev_b32 v7, 1, v4')
        a('v_lshl_add_u32 v7, v5, 1, v7')
        a('v_lshlrev_b32 v7, 4, v7')
        a('v_add_u32 v6, v6, v7')
        a('s_mul_i32 s56, s35, 24576')
        a('s_lshl_b32 s57, s38, 12')
        a('s_add_u32 s56, s56, s57')
        a('s_lshl_b32 s57, s31, 9')
        a('s_add_u32 s56, s56, s57')
        a(f's_add_u32 s56, s56, {WS_E1}')
        a('v_and_b32 v7, 2, v4')
        a('v_cmp_eq_u32 vcc, 2, v7')
        a('s_waitcnt lgkmcnt(0)')
        if not o['local1']:
            a('s_add_u32 s36, s36, 1')
        a('v_mov_b32 v10, s36')
        a('v_mov_b32 v11, s37')
        a('s_nop 7')
        a('s_mov_b64 s[84:85], exec')
        def e1_publish(fl):
            a('s_mov_b32 exec_lo, 0x000f000f')
            a('s_mov_b32 exec_hi, 0x000f000f')
            for tile in range(4):
                a(f'v_cndmask_b32 v8, v{ACC+4*tile}, v{ACC+4*tile+2}, vcc')
                a(f'v_cndmask_b32 v9, v{ACC+4*tile+1}, v{ACC+4*tile+3}, vcc')
                a(f'buffer_store_dwordx4 v[8:11], v6, s[52:55], s56 offen offset:{128*tile} {fl}')
                a('s_nop 1')
            if o['smem']:
                a('s_mul_i32 s56, s35, 768')
                a('s_lshl_b32 s57, s38, 7')
                a('s_add_u32 s56, s56, s57')
                a('s_lshl_b32 s57, s31, 3')
                a('s_add_u32 s56, s56, s57')
                a(f's_add_u32 s56, s56, {WS_F1}')
                a('s_mov_b64 exec, 3')
                a('v_mul_u32_u24 v7, 384, v0')
                if o['local']:
                    if not o['local1']:
                        a('s_getreg_b32 s39, hwreg(HW_REG_XCC_ID, 0, 4)')
                        a('s_add_u32 s39, s39, 1')
                        a('s_lshl_b32 s39, s39, 24')
                        a('s_add_u32 s39, s39, s37')
                    a('v_mov_b32 v9, s39')
                    a('v_mov_b32 v8, s36')
                    a(f'buffer_store_dwordx2 v[8:9], v7, s[52:55], s56 offen {o["hintfl"] if o["hintfl"] is not None else fl}')
                else:
                    a(f'buffer_store_dwordx2 v[10:11], v7, s[52:55], s56 offen {fl}')
        if o['local1']:
            l1, l2 = self.newlab('L_e1'), self.newlab('L_e1')
            a('v_mov_b32 v43, 0')
            a(f'ds_read_b32 v43, v43 offset:{L_FLAG+24}')
            a('s_waitcnt lgkmcnt(0)')
            a('v_readfirstlane_b32 s87, v43')
            a('s_cmp_eq_u32 s87, 1')
            a(f's_cbranch_scc1 {l1}')
            e1_publish('sc1')
            a(f's_branch {l2}')
            self.label(l1)
            e1_publish('')
            self.label(l2)
        else:
            e1_publish('sc1')
        a('s_mov_b64 exec, s[84:85]')
        self.stamp(3)
        a('s_mul_i32 s56, s35, 24576')
        a('s_mul_i32 s57, s32, 12288')
        a('s_add_u32 s56, s56, s57')
        a('s_lshl_b32 s57, s38, 12')
        a('s_add_u32 s56, s56, s57')
        a(f's_add_u32 s56, s56, {WS_E1}')
        a(f's_mov_b32 s80, {o["spin"]}')
        if o['smem']:
            a('s_mul_i32 s57, s35, 768')
            a('s_mul_i32 s58, s32, 384')
            a('s_add_u32 s57, s57, s58')
            a('s_lshl_b32 s58, s38, 7')
            a('s_add_u32 s57, s57, s58')
            a(f's_add_u32 s57, s57, {WS_F1}')
            a('s_add_u32 s58, s26, s57')
            a('s_addc_u32 s59, s27, 0')
            self.smem_poll(58, 8, o['psleep'], lo_only=o['local'])
            if o['local']:
                a('s_mov_b32 s57, 1')
                for t in range(8):
                    a(f's_cmp_eq_u32 s{65+2*t}, s39')
                    a('s_cselect_b32 s57, s57, 0')
                a('v_mov_b32 v7, s57')
                a('v_mov_b32 v6, 0')
                a(f'ds_write_b32 v6, v7 offset:{L_FLAG+20}')
        elif o['sent']:
            a('v_lshlrev_b32 v6, 9, v0')
            a('v_add_u32 v6, 496, v6')
            a('s_mov_b64 exec, 0xff')
            self.label('L_q_sent')
            a('buffer_load_dwordx4 v[24:27], v6, s[52:55], s56 offen sc1')
            a('s_waitcnt vmcnt(0)')
            self.poll_check([24], 'L_q_sent', sleep=o['psleep'])
            a('s_mov_b64 exec, -1')
        a('v_lshlrev_b32 v6, 4, v0')
        self.label('L_q_poll')
        for i in range(4):
            a(f'buffer_load_dwordx4 v[{24+4*i}:{27+4*i}], v6, s[52:55], s56 offen offset:{1024*i} sc1')
        a('s_waitcnt vmcnt(0)')
        self.poll_check([24, 28, 32, 36], 'L_q_poll')
        a('v_add_f32 v24, v24, v28')
        a('v_add_f32 v25, v25, v29')
        a('v_add_f32 v32, v32, v36')
        a('v_add_f32 v33, v33, v37')
        a('v_add_f32 v24, v24, v32')
        a('v_add_f32 v25, v25, v33')
        self.swap_reduce('v_add_f32', 24, 26, 32)
        self.swap_reduce('v_add_f32', 25, 26, 32)
        a('v_cvt_pk_bf16_f32 v24, v24, v25')
        a('v_and_b32 v6, 31, v0')
        a('v_lshlrev_b32 v6, 2, v6')
        a('s_lshl_b32 s57, s38, 7')
        a('v_add_u32 v6, s57, v6')
        a(f'ds_write_b32 v6, v24 offset:{L_Q}')
        if o['dbg']:
            a('s_lshl_b32 s56, s2, 9'); a(f's_add_u32 s56, s56, {WS_DBG}')
            a('buffer_store_dword v24, v6, s[52:55], s56 offen')
        if o['nlate'] or o['fwait']:
            a('v_mov_b32 v7, 0')
            a(f'ds_write_b32 v7, v7 offset:{L_FLAG+16}')
            a(f'ds_write_b32 v7, v7 offset:{L_FLAG}')
            a(f'ds_write_b32 v7, v7 offset:{L_FLAG+4}')
            a(f'ds_write_b32 v7, v7 offset:{L_FLAG+8}')
            a(f'ds_write_b32 v7, v7 offset:{L_FLAG+12}')
        a('s_waitcnt lgkmcnt(0)')
        self.stamp(4)
        a('s_barrier')
        self.tmark(1)
        self.wb_setup()
        self.wb_early()
        self.tail_prep(aux=True)
        if o['ctrl']:
            self.controller()
        if o['nlate']:
            a('s_branch L_wlate')
        a('s_waitcnt vmcnt(0)')
        a('s_branch L_tail')

        self.label('L_aux_ffn')
        a('s_and_b32 s56, s34, 15')
        a('s_mul_i32 s56, s56, 80')
        a('v_add_u32 v6, s56, v6')
        for t in range(2):
            a(f'ds_read_b128 v[{XB+4*t}:{XB+4*t+3}], v6 offset:{L_XN + 64*t}')
        a('v_mul_u32_u24 v52, 384, v50')
        a(f'v_add_u32 v52, {L_UF}, v52')
        a('v_add_u32 v52, v52, v51')
        a('v_lshrrev_b32 v53, 2, v4')
        a('v_mul_u32_u24 v53, 384, v53')
        a(f'v_add_u32 v53, {L_UF}, v53')
        a('v_add_u32 v53, v53, v51')
        a('v_cmp_le_u32 vcc, 1, v5')
        FACC = 64
        for k in range(48):
            a(f'v_mov_b32 v{FACC+k}, 0')
        a('s_waitcnt lgkmcnt(0)')
        for r in range(4):
            a(f'v_cndmask_b32 v{XB+4+r}, v{XB+4+r}, 0, vcc')
        if o['ffn_late']:
            a('s_barrier')
            if o['skipffn']:
                if not o['local1']:
                    a('s_add_u32 s36, s36, 1')
                self.tail_prep(aux=True)
                a('s_branch L_tail')
            ffn_dma()
        a('s_waitcnt vmcnt(0)')
        self.gemv_unit(W=24, XB=XB, ntile=12, nstep=2, lastvalid=1, addr=52, rowstride=384, tilebytes=32, acc=FACC)
        a('v_and_b32 v6, 1, v4')
        a('v_mul_u32_u24 v6, 192, v6')
        a('v_lshlrev_b32 v7, 4, v5')
        a('v_add_u32 v6, v6, v7')
        a('s_mul_i32 s56, s29, 49152')
        a('s_mul_i32 s57, s34, 384')
        a('s_add_u32 s56, s56, s57')
        a(f's_add_u32 s56, s56, {WS_E2}')
        if not o['local1']:
            a('s_add_u32 s36, s36, 1')
        a('s_nop 7')
        a('s_mov_b32 exec_lo, 0x00030003')
        a('s_mov_b32 exec_hi, 0x00030003')
        for tile in range(12):
            r = tile // 3
            if tile % 3 == 0 and tile:
                a('s_add_u32 s56, s56, 12288')
            a(f'buffer_store_dwordx4 v[{FACC+4*tile}:{FACC+4*tile+3}], v6, s[52:55], s56 offen offset:{64*(tile%3)} sc1')
        a('s_mov_b64 exec, -1')
        if not o['ffn_late']:
            a('s_barrier')
        a('s_waitcnt vmcnt(0)')
        a('v_mov_b32 v8, s36')
        a('v_mov_b32 v9, s37')
        a('s_lshl_b32 s56, s29, 8')
        a('s_lshl_b32 s57, s34, 3')
        a('s_add_u32 s57, s57, s56')
        a(f's_add_u32 s57, s57, {WS_E2F}')
        a(f's_add_u32 s56, s56, {WS_E2F}')
        a('v_mov_b32 v10, 0')
        a('s_mov_b64 exec, 1')
        a('buffer_store_dwordx2 v[8:9], v10, s[52:55], s57 offen sc1')
        a('s_mov_b64 exec, -1')
        a(f's_mov_b32 s80, {o["spin"]}')
        if o['fwait']:
            lab, go = self.newlab('L_fw'), self.newlab('L_fg')
            a('v_mov_b32 v12, 0')
            self.label(lab)
            a(f'ds_read_b32 v13, v12 offset:{L_FLAG+16}')
            a('s_waitcnt lgkmcnt(0)')
            a('v_readfirstlane_b32 s57, v13')
            a('s_cmp_ge_u32 s57, 1')
            a(f's_cbranch_scc1 {go}')
            a('s_sleep 8')
            a(f's_branch {lab}')
            self.label(go)
        if o['smem']:
            a('s_add_u32 s58, s26, s56')
            a('s_addc_u32 s59, s27, 0')
            for c4 in range(4):
                self.smem_poll(58, 8, o['fsleep'])
                if c4 < 3:
                    a('s_add_u32 s58, s58, 64')
                    a('s_addc_u32 s59, s59, 0')
        else:
            a('v_and_b32 v10, 31, v0')
            a('v_lshlrev_b32 v10, 3, v10')
            self.label('L_f_poll')
            a('buffer_load_dwordx2 v[14:15], v10, s[52:55], s56 offen sc1')
            a('s_waitcnt vmcnt(0)')
            self.poll_check([12], 'L_f_poll')
        a('v_and_b32 v10, 31, v0')
        a('v_min_u32 v11, 23, v10')
        a('v_lshlrev_b32 v11, 4, v11')
        a('v_lshrrev_b32 v12, 5, v0')
        a('v_mul_u32_u24 v12, 6144, v12')
        a('v_add_u32 v11, v11, v12')
        a('s_mul_i32 s56, s29, 49152')
        a('s_mul_i32 s57, s30, 12288')
        a('s_add_u32 s56, s56, s57')
        a(f's_add_u32 s56, s56, {WS_E2}')
        for i in range(16):
            a(f'buffer_load_dwordx4 v[{64+4*i}:{67+4*i}], v11, s[52:55], s56 offen offset:{384*(i%8)} sc1')
            if i == 7:
                a('s_add_u32 s56, s56, 3072')
        a('s_waitcnt vmcnt(0)')
        for i in range(1, 16):
            for r in range(4):
                a(f'v_add_f32 v{64+r}, v{64+r}, v{64+4*i+r}')
        a('v_cvt_pk_bf16_f32 v64, v64, v65')
        a('v_cvt_pk_bf16_f32 v65, v66, v67')
        a('v_mov_b32 v68, v64')
        a('v_mov_b32 v69, v65')
        a('s_nop 1')
        a('v_permlane32_swap_b32 v64, v68')
        a('v_permlane32_swap_b32 v65, v69')
        for p in range(2):
            g, u = 64 + p, 68 + p
            a(f'v_lshlrev_b32 v72, 16, v{g}')
            a(f'v_and_b32 v73, 0xffff0000, v{g}')
            for t in (72, 73):
                a(f'v_mul_f32 v74, {0xBFB8AA3B}, v{t}')
                a('v_exp_f32 v74, v74')
                a('s_nop 0')
                a('v_add_f32 v74, 1.0, v74')
                a('v_rcp_f32 v74, v74')
                a('s_nop 0')
                a(f'v_mul_f32 v{t}, v{t}, v74')
            a('v_cvt_pk_bf16_f32 v72, v72, v73')
            a('v_and_b32 v73, 0xffff0000, v72')
            a('v_lshlrev_b32 v72, 16, v72')
            a(f'v_and_b32 v75, 0xffff0000, v{u}')
            a(f'v_lshlrev_b32 v74, 16, v{u}')
            a('v_mul_f32 v72, v72, v74')
            a('v_mul_f32 v73, v73, v75')
            a(f'v_cvt_pk_bf16_f32 v{76+p}, v72, v73')
        a('v_cmp_le_u32 vcc, 12, v10')
        a('v_subrev_u32 v11, 12, v10')
        a('s_nop 0')
        a('v_cndmask_b32 v11, v10, v11, vcc')
        a('v_lshlrev_b32 v11, 3, v11')
        a('v_add_u32 v12, 128, v11')
        a('v_cndmask_b32 v11, v11, v12, vcc')
        a('v_subrev_u32 v12, 24, v10')
        a('v_lshrrev_b32 v13, 2, v12')
        a('v_lshlrev_b32 v13, 7, v13')
        a('v_and_b32 v12, 3, v12')
        a('v_lshl_add_u32 v12, v12, 3, v13')
        a('v_add_u32 v12, 96, v12')
        a('v_cmp_le_u32 vcc, 24, v10')
        a('s_nop 1')
        a('v_cndmask_b32 v11, v11, v12, vcc')
        a('v_cndmask_b32 v76, v76, 0, vcc')
        a('v_cndmask_b32 v77, v77, 0, vcc')
        a('s_mov_b32 exec_hi, 0')
        a(f'ds_write_b64 v11, v[76:77] offset:{L_HV}')
        a('s_mov_b64 exec, -1')
        a('s_waitcnt lgkmcnt(0)')
        self.stamp(4)
        self.tail_prep(aux=True)
        if o['nlate']:
            self.wb_setup()
            self.label('L_wlate')
            self.wb_late()
            a('s_waitcnt vmcnt(0)')
            a('s_branch L_bar3b')
        a('s_branch L_tail')

    def controller(self):
        o = self.opt; a = self.a
        skip = self.newlab('L_ct')
        a('s_cmp_lg_u32 s38, 2')
        a(f's_cbranch_scc1 {skip}')
        pat = {0: 0, 1: 0b000001, 2: 0b001001, 3: 0b010101, 4: 0b011011, 5: 0b011111, 6: 0b111111}
        parts = o['cpart']
        for j, px in enumerate(parts):
            a(f's_xor_b32 s56, s2, {px}')
            a('s_lshl_b32 s56, s56, 7')
            a(f's_add_u32 s56, s56, {WS_PR}')
            a(f's_add_u32 s{8+2*j}, s26, s56')
            a(f's_addc_u32 s{9+2*j}, s27, 0')
        a('s_lshl_b32 s63, s2, 7')
        a(f's_add_u32 s63, s63, {WS_PR}')
        for k, ck in enumerate(o['ctrl']):
            lab, go, done = self.newlab('L_cw'), self.newlab('L_cg'), self.newlab('L_cd')
            self.label(lab)
            a(f'ds_read_b32 v5, v240 offset:{L_FLAG+8}')
            a('s_waitcnt lgkmcnt(0)')
            a('v_readfirstlane_b32 s56, v5')
            a(f's_cmp_ge_u32 s56, {4*k + 2}')
            a(f's_cbranch_scc1 {go}')
            a('s_sleep 4')
            a(f's_branch {lab}')
            self.label(go)
            a('s_memrealtime s[60:61]')
            if k:
                for j in range(len(parts)):
                    a(f's_load_dwordx2 s[{16+2*j}:{17+2*j}], s[{8+2*j}:{9+2*j}], {8*(k-1)} glc')
            a('s_waitcnt lgkmcnt(0)')
            a('s_mov_b64 exec, 1')
            a('v_mov_b32 v6, s60')
            a('v_mov_b32 v7, s36')
            a(f'buffer_store_dwordx2 v[6:7], v240, s[52:55], s63 offen offset:{8*k} sc1')
            if k:
                a('s_mov_b32 s56, 0')
                a('s_sub_u32 s57, s93, s60')
                for j in range(len(parts)):
                    a(f's_sub_u32 s58, s93, s{16+2*j}')
                    a(f's_cmp_eq_u32 s{17+2*j}, s36')
                    a('s_cselect_b32 s58, s58, s57')
                    a('s_add_u32 s56, s56, s58')
                trem = (32 - ck) * 85
                kk = int(round(6 * o['WL'] * o['cgain'] / trem / len(parts) * 65536))
                a(f's_mul_i32 s56, s56, {kk}')
                a('s_add_u32 s56, s56, 32768')
                a('s_ashr_i32 s56, s56, 16')
                for lv in range(-o['cmin'], o['cmax'] + 1):
                    bits = pat[lv] if lv >= 0 else pat[-lv] << 8
                    a(f's_mov_b32 s57, {bits}')
                    if lv < o['cmax']:
                        a(f's_cmp_le_i32 s56, {lv}')
                        a(f's_cbranch_scc1 {done}')
                self.label(done)
                a('v_mov_b32 v5, s57')
                a(f'ds_write_b32 v240, v5 offset:{L_FLAG+12}')
            a('s_mov_b32 s93, s60')
            a('s_mov_b64 exec, -1')
        self.label(skip)

    def wb_setup(self):
        a = self.a
        for i in range(5):
            a(f'v_add_u32 v5, {64*i}, v0')
            a('v_mul_u32_u24 v6, 6554, v5')
            a('v_lshrrev_b32 v6, 16, v6')
            a('v_mul_u32_u24 v7, 10, v6')
            a('v_sub_u32 v5, v5, v7')
            a('v_mul_u32_u24 v6, 1280, v6')
            a('v_lshlrev_b32 v5, 4, v5')
            a(f'v_add_u32 v{40+i}, v5, v6')
        self.srd(48, 12, WO_BYTES)
        self.srd(88, 20, WD_BYTES)

    def wb_period(self, preg):
        o = self.opt; a = self.a
        a('s_mul_i32 s56, s35, 245760')
        a('s_mul_i32 s57, s31, 160')
        a('s_add_u32 s56, s56, s57')
        a(f's_mul_i32 s57, {preg}, 40960')
        a('s_add_u32 s56, s56, s57')
        a(f's_mul_i32 s57, {preg}, 5120')
        a(f's_add_u32 s57, s57, {L_WB}')
        for i in range(5):
            a('s_mov_b32 m0, s57')
            a('s_add_u32 s57, s57, 1024')
            a(f'buffer_load_dwordx4 v{40+i}, s[48:51], s56 offen {o["ntwb"]} lds')

    def wb_early(self):
        o = self.opt; a = self.a
        nearly = 6 - o['nlate']
        for t in range((nearly + 2) // 3):
            lab = self.newlab('L_we')
            a(f's_add_u32 s58, s38, {3*t}')
            a(f's_cmp_lt_u32 s58, {nearly}')
            a(f's_cbranch_scc0 {lab}')
            self.wb_period('s58')
            self.label(lab)
        a('s_mul_i32 s56, s35, 61440')
        a('s_mul_i32 s57, s31, 160')
        a('s_add_u32 s56, s56, s57')
        lab0, lab1, labd = self.newlab('L_wd'), self.newlab('L_wd'), self.newlab('L_wd')
        a('s_cmp_eq_u32 s38, 0'); a(f's_cbranch_scc1 {lab0}')
        a('s_cmp_eq_u32 s38, 1'); a(f's_cbranch_scc1 {lab1}')

        def dma(i):
            a(f's_mov_b32 m0, {L_WD + 1024*i}')
            a(f's_add_u32 s57, s56, {40960*(i//5)}')
            a(f'buffer_load_dwordx4 v{40+i%5}, s[88:91], s57 offen {o["ntwb"]} lds')
        dma(6); dma(7); a(f's_branch {labd}')
        self.label(lab0); dma(0); dma(1); dma(2); a(f's_branch {labd}')
        self.label(lab1); dma(3); dma(4); dma(5)
        self.label(labd)

    def wb_late(self):
        o = self.opt; a = self.a
        nlate = o['nlate']
        lab, labd0 = self.newlab('L_ww'), self.newlab('L_wv')
        self.label(lab)
        a(f'ds_read_b32 v5, v240 offset:{L_FLAG}')
        a('s_waitcnt lgkmcnt(0)')
        a('v_readfirstlane_b32 s56, v5')
        a(f's_cmp_ge_u32 s56, {o["wtrig"]}')
        a(f's_cbranch_scc1 {labd0}')
        a('s_sleep 2')
        a(f's_branch {lab}')
        self.label(labd0)
        self.stamp(11)
        for t in range((nlate + 3) // 4):
            lab = self.newlab('L_wl')
            a(f's_add_u32 s58, s38, {4*t}')
            a(f's_cmp_lt_u32 s58, {nlate}')
            a(f's_cbranch_scc0 {lab}')
            a(f's_add_u32 s58, s58, {6 - nlate}')
            self.wb_period('s58')
            self.label(lab)

    def tail_prep(self, aux):
        o = self.opt; a = self.a
        self.c('---- tail constants ----')
        a('v_mov_b32 v238, s36')
        a('v_mov_b32 v239, s37')
        a('v_mov_b32 v240, 0')
        a('v_mov_b32 v241, 1')
        a('s_lshl_b32 s64, s28, 6')
        a('v_add_u32 v225, s64, v0')
        a('v_mov_b32 v224, 96')
        a('v_cmp_eq_u32 vcc, v224, v225')
        a('s_mov_b64 s[74:75], vcc')
        a('v_cmp_ge_u32 vcc, v224, v225')
        a('s_mov_b64 s[72:73], vcc')
        a('v_min_u32 v224, 95, v225')
        a('v_lshlrev_b32 v224, 3, v224')
        a('v_lshlrev_b32 v225, 4, v225')
        a('s_lshl_b32 s64, s35, 3')
        a('s_add_u32 s64, s64, s31')
        a('s_lshl_b32 s64, s64, 11')
        a(f's_add_u32 s64, s64, {WS_E3}')
        a('s_sub_u32 s65, s28, 2')
        a('s_cmp_ge_i32 s65, 3')
        a('s_cselect_b32 s66, 1, 0')
        a('s_mul_i32 s67, s66, 3')
        a('s_sub_u32 s67, s65, s67')
        a('v_lshrrev_b32 v227, 5, v0')
        a('v_lshlrev_b32 v227, 11, v227')
        a('v_and_b32 v228, 31, v0')
        a('s_lshl_b32 s68, s67, 5')
        a('v_add_u32 v226, s68, v228')
        a('v_lshl_add_u32 v226, v226, 4, v227')
        a('v_add_u32 v227, 1536, v227')
        a('s_mul_i32 s68, s66, 384')
        a('s_lshl_b32 s69, s67, 7')
        a('s_add_u32 s68, s68, s69')
        a(f's_add_u32 s68, s68, {L_ON}')
        a('v_lshl_add_u32 v228, v228, 2, s68')
        a('s_lshl_b32 s65, s35, 3')
        a('s_lshl_b32 s66, s66, 2')
        a('s_add_u32 s65, s65, s66')
        a('s_lshl_b32 s65, s65, 11')
        a(f's_add_u32 s65, s65, {WS_E3}')
        a('s_add_u32 s66, s65, 4096')
        a('v_and_b32 v234, 15, v0')
        a('v_lshrrev_b32 v235, 4, v0')
        a('v_and_b32 v236, 1, v0')
        a('v_lshlrev_b32 v237, 4, v235')
        a('v_mul_u32_u24 v229, 384, v236')
        a('v_add_u32 v229, v229, v237')
        a(f'v_add_u32 v229, {L_ON}, v229')
        a('v_lshlrev_b32 v230, 7, v236')
        a('v_add_u32 v230, v230, v237')
        a(f'v_add_u32 v230, {L_HV}, v230')
        a('v_lshlrev_b32 v231, 3, v235')
        a('v_lshrrev_b32 v232, 2, v234')
        a('v_add_u32 v231, v231, v232')
        a('v_mul_u32_u24 v231, 160, v231')
        a('v_and_b32 v232, 3, v234')
        a('v_lshlrev_b32 v232, 3, v232')
        a('s_lshl_b32 s67, s28, 5')
        a('v_add3_u32 v231, v231, v232, s67')
        a(f'v_add_u32 v231, {L_WB}, v231')
        a('v_cmp_le_u32 vcc, 2, v235')
        a('v_subrev_u32 v232, 2560, v231')
        a('s_nop 0')
        a('v_cndmask_b32 v232, v231, v232, vcc')
        a('v_and_b32 v233, 1, v235')
        a('v_mul_u32_u24 v233, 40960, v233')
        if o['r160']:
            a('v_lshrrev_b32 v237, 3, v234')
            a('v_lshl_add_u32 v233, v237, 12, v233')
            a('v_and_b32 v237, 7, v234')
            a('v_lshl_add_u32 v233, v237, 4, v233')
        else:
            a('v_lshl_add_u32 v233, v234, 4, v233')
        a('v_and_b32 v237, 16, v0')
        a('v_cmp_eq_u32 vcc, 16, v237')
        a('s_mov_b64 s[76:77], vcc')
        a('s_mul_i32 s67, s31, 10')
        a('s_add_u32 s67, s67, s28')
        a('s_lshl_b32 s67, s67, 13')
        a(f's_lshl_b32 s68, s35, {7 if o["r160"] else 8}')
        a('s_add_u32 s67, s67, s68')
        a(f's_add_u32 s67, s67, {WS_E4}')
        if aux:
            if o['r160']:
                a('s_lshl_b32 s71, s30, 3')
                a('s_add_u32 s71, s71, s29')
                a('s_lshr_b32 s69, s29, 1')
                a('s_add_u32 s69, s69, 16')
                a('s_bitcmp1_b32 s29, 0')
                a('s_cselect_b32 s69, 99, s69')
                a('s_cmp_eq_u32 s30, 2')
                a('s_cselect_b32 s71, s69, s71')
                a('s_cmp_eq_u32 s30, 3')
                a('s_cselect_b32 s71, 99, s71')
                a('s_cmp_ge_u32 s71, 10')
                a('s_cselect_b32 s69, 1, 0')
                a('s_mul_i32 s70, s69, 10')
                a('s_sub_u32 s70, s71, s70')
                a('s_lshl_b32 s68, s31, 1')
                a('s_add_u32 s68, s68, s69')
                a('s_mul_i32 s68, s68, 10')
                a('s_add_u32 s68, s68, s70')
                a('s_lshl_b32 s68, s68, 12')
                a(f's_add_u32 s68, s68, {WS_E4}')
                a('s_mul_i32 s69, s69, 1280')
                a('s_mul_i32 s81, s31, 160')
                a('s_add_u32 s69, s69, s81')
                a('s_lshl_b32 s70, s70, 4')
                a('s_add_u32 s70, s69, s70')
                a('v_and_b32 v234, 7, v0')
            else:
                a('s_mov_b32 s71, s35')
                a('s_cmp_ge_u32 s35, 5')
                a('s_cselect_b32 s69, 1, 0')
                a('s_mul_i32 s70, s69, 5')
                a('s_sub_u32 s70, s35, s70')
                a('s_lshl_b32 s68, s31, 1')
                a('s_add_u32 s68, s68, s69')
                a('s_mul_i32 s68, s68, 5')
                a('s_add_u32 s68, s68, s70')
                a('s_lshl_b32 s68, s68, 13')
                a(f's_add_u32 s68, s68, {WS_E4}')
                a('s_mul_i32 s69, s69, 1280')
                a('s_mul_i32 s81, s31, 160')
                a('s_add_u32 s69, s69, s81')
                a('s_lshl_b32 s70, s70, 5')
                a('s_add_u32 s70, s69, s70')
            a('s_add_u32 s69, s68, 4096')
            self.srd(40, 4, X_BYTES)
            self.srd(44, 22, X_BYTES)
            a('v_lshlrev_b32 v235, 1, v234')
            a('v_lshlrev_b32 v234, 4, v0')
            a('buffer_load_ushort v236, v235, s[40:43], s70 offen')
            a('s_waitcnt vmcnt(0)')
            a('v_lshlrev_b32 v236, 16, v236')
        a(f's_mov_b32 s80, {o["spin"]}')
        a(f's_mov_b32 s62, {LOG2E}')

    def gemv_pre(self):
        a = self.a
        for t in range(2):
            a(f'ds_read_b128 v[{40+4*t}:{43+4*t}], v230 offset:{64*t}')
        a(f'ds_read_b64_tr_b16 v[72:73], v231 offset:{L_WD - L_WB}')
        a(f'ds_read_b64_tr_b16 v[74:75], v231 offset:{L_WD - L_WB + 640}')
        a(f'ds_read_b64_tr_b16 v[76:77], v232 offset:{L_WD - L_WB + 5120}')
        a(f'ds_read_b64_tr_b16 v[78:79], v232 offset:{L_WD - L_WB + 5120 + 640}')
        for t in range(6):
            a(f'ds_read_b64_tr_b16 v[{48+4*t}:{49+4*t}], v231 offset:{5120*t}')
            a(f'ds_read_b64_tr_b16 v[{50+4*t}:{51+4*t}], v231 offset:{5120*t + 640}')
        for k in (4, 5, 6, 7, 0, 1, 2, 3):
            a(f'v_mov_b32 v{80+k}, 0')
        a('s_waitcnt lgkmcnt(12)')
        for t in range(2):
            a(f'v_mfma_f32_16x16x32_bf16 v[84:87], v[{40+4*t}:{43+4*t}], v[{72+4*t}:{75+4*t}], v[84:87]')
        a('s_waitcnt lgkmcnt(0)')

    def tail(self):
        o = self.opt; a = self.a
        self.c('==== tail (all waves) ====')
        if o['noaux']:
            a('s_barrier'); a('s_barrier'); a('s_branch L_end')
        if not o['nlate']:
            a('s_barrier')
            self.stamp(5)
            a('s_cmp_ge_u32 s28, 2')
            a('s_cbranch_scc1 L_gather')
        else:
            a('s_cmp_ge_u32 s28, 2')
            a('s_cbranch_scc1 L_bar3b')
            self.label('L_pw')
            a(f'ds_read_b32 v8, v240 offset:{L_FLAG+4}')
            a('s_waitcnt lgkmcnt(0)')
            a('v_readfirstlane_b32 s56, v8')
            a('s_cmp_ge_u32 s56, 4')
            a('s_cbranch_scc0 L_pw')
            self.stamp(5)
        a(f'ds_read_b128 v[24:27], v240 offset:{L_ML}')
        a(f'ds_read_b128 v[28:31], v240 offset:{L_ML+16}')
        for cidx in range(8):
            a(f'ds_read_b64 v[{8+2*cidx}:{9+2*cidx}], v224 offset:{L_OL + 768*cidx}')
        a('s_waitcnt lgkmcnt(8)')
        a('v_max3_f32 v32, v24, v25, v26')
        a('v_max_f32 v32, v32, v27')
        for w in range(4):
            a(f'v_sub_f32 v{24+w}, v{24+w}, v32')
        for w in range(4):
            a(f'v_mul_f32 v{24+w}, s62, v{24+w}')
        for w in range(4):
            a(f'v_exp_f32 v{24+w}, v{24+w}')
        a('s_waitcnt lgkmcnt(0)')
        for w in range(4):
            a(f'v_add_f32 v{8+4*w}, v{8+4*w}, v{10+4*w}')
            a(f'v_add_f32 v{9+4*w}, v{9+4*w}, v{11+4*w}')
        a('v_mul_f32 v33, v24, v28')
        a('v_mul_f32 v236, v24, v8')
        a('v_mul_f32 v237, v24, v9')
        for w in range(1, 4):
            a(f'v_fmac_f32 v33, v{24+w}, v{28+w}')
            a(f'v_fmac_f32 v236, v{24+w}, v{8+4*w}')
            a(f'v_fmac_f32 v237, v{24+w}, v{9+4*w}')
        a('v_cndmask_b32 v236, v236, v32, s[74:75]')
        a('v_cndmask_b32 v237, v237, v33, s[74:75]')
        a('s_mov_b64 exec, s[72:73]')
        if o['local']:
            l1, l2 = self.newlab('L_pl'), self.newlab('L_pl')
            a('s_cmp_eq_u32 s87, 1')
            a(f's_cbranch_scc1 {l1}')
            a('buffer_store_dwordx4 v[236:239], v225, s[52:55], s64 offen sc1')
            a(f's_branch {l2}')
            self.label(l1)
            a('buffer_store_dwordx4 v[236:239], v225, s[52:55], s64 offen')
            self.label(l2)
        else:
            a('buffer_store_dwordx4 v[236:239], v225, s[52:55], s64 offen sc1')
        a('s_mov_b64 exec, -1')
        self.stamp(6)
        if o['nlate']:
            a('s_barrier')
            self.stamp(10)
        self.gemv_pre()
        a('s_branch L_bar4')
        self.label('L_gather')

        def o_loads():
            a('buffer_load_dwordx4 v[8:11], v226, s[52:55], s65 offen sc1')
            a('buffer_load_dwordx4 v[12:15], v226, s[52:55], s66 offen sc1')
            a('buffer_load_dwordx4 v[16:19], v227, s[52:55], s65 offen sc1')
            a('buffer_load_dwordx4 v[20:23], v227, s[52:55], s66 offen sc1')
        if o['nlate']:
            self.label('L_bar3b')
            a('s_barrier')
        o_loads()
        a('s_cmp_ge_u32 s28, 5')
        a('s_cbranch_scc1 L_o_wait')
        self.gemv_pre()
        a('s_branch L_o_wait')
        self.label('L_o_poll')
        o_loads()
        self.label('L_o_wait')
        a('s_waitcnt vmcnt(0)')
        self.poll_check([8, 12, 16, 20], 'L_o_poll', sleep=o['tsleep'])
        self.stamp(6)
        a('v_max_f32 v24, v16, v20')
        self.swap_reduce('v_max_f32', 24, 25, 32)
        a('v_sub_f32 v16, v16, v24')
        a('v_sub_f32 v20, v20, v24')
        a('v_mul_f32 v16, s62, v16')
        a('v_mul_f32 v20, s62, v20')
        a('v_exp_f32 v16, v16')
        a('v_exp_f32 v20, v20')
        a('s_nop 0')
        a('v_mul_f32 v26, v16, v17')
        a('v_mul_f32 v27, v16, v8')
        a('v_mul_f32 v28, v16, v9')
        a('v_fmac_f32 v26, v20, v21')
        a('v_fmac_f32 v27, v20, v12')
        a('v_fmac_f32 v28, v20, v13')
        a('v_mov_b32 v29, v26')
        a('v_mov_b32 v30, v27')
        a('v_mov_b32 v31, v28')
        a('s_nop 0')
        a('v_permlane32_swap_b32 v26, v29')
        a('v_permlane32_swap_b32 v27, v30')
        a('v_permlane32_swap_b32 v28, v31')
        a('v_add_f32 v26, v26, v29')
        a('v_add_f32 v27, v27, v30')
        a('v_add_f32 v28, v28, v31')
        a('v_rcp_f32 v26, v26')
        a('s_nop 0')
        a('v_mul_f32 v27, v27, v26')
        a('v_mul_f32 v28, v28, v26')
        a('v_cvt_pk_bf16_f32 v27, v27, v28')
        a('ds_write_b32 v228, v27')
        if o['dbg']:
            a('s_lshl_b32 s60, s2, 10'); a(f's_add_u32 s60, s60, {WS_DBG + 0x40000 - L_ON}')
            a('buffer_store_dword v27, v228, s[52:55], s60 offen')
        a('s_waitcnt lgkmcnt(0)')
        self.label('L_bar4')
        a('s_barrier')
        self.stamp(7)
        a('s_cmp_ge_u32 s28, 5')
        a('s_cbranch_scc1 L_reduce')
        for t in range(6):
            a(f'ds_read_b128 v[{16+4*t}:{19+4*t}], v229 offset:{64*t}')
        for t in range(6):
            a(f's_waitcnt lgkmcnt({5-t})')
            a(f'v_mfma_f32_16x16x32_bf16 v[80:83], v[{16+4*t}:{19+4*t}], v[{48+4*t}:{51+4*t}], v[80:83]')
        a('v_cndmask_b32 v237, v84, v85, s[76:77]')
        a('s_mov_b32 exec_hi, 0')
        a('s_nop 5')
        a('v_cndmask_b32 v236, v80, v81, s[76:77]')
        a(f'buffer_store_dwordx4 v[236:239], v233, s[52:55], s67 offen {o["e4st"]}')
        self.stamp(8)
        a('s_branch L_end')
        self.label('L_reduce')
        a('s_cmp_lg_u32 s28, 5')
        a('s_cbranch_scc1 L_end')
        nred = 20 if o['r160'] else 10
        nld = 4 if o['r160'] else 8
        a(f's_cmp_ge_u32 s71, {nred}')
        a('s_cbranch_scc1 L_end')
        self.label('L_r_poll')
        for i in range(nld):
            so = 's68' if i < 4 else 's69'
            a(f'buffer_load_dwordx4 v[{8+4*i}:{11+4*i}], v234, s[52:55], {so} offen offset:{1024*(i%4)} {o["e4ld"]}')
        a('s_waitcnt vmcnt(0)')
        self.poll_check([8 + 4 * i for i in range(nld)], 'L_r_poll', sleep=o['rsleep'])
        self.stamp(10)
        for i in range(1, nld):
            a(f'v_add_f32 v8, v8, v{8+4*i}')
            a(f'v_add_f32 v9, v9, v{9+4*i}')
        if o['r160']:
            a('s_nop 0')
            self.dpp('v_add_f32', 8, 8, 8, 'row_ror:8')
            self.dpp('v_add_f32', 9, 9, 9, 'row_ror:8')
        for which in (16, 32):
            a('v_mov_b32 v10, v8')
            a('v_mov_b32 v11, v9')
            a('s_nop 0')
            a(f'v_permlane{which}_swap_b32 v8, v10')
            a(f'v_permlane{which}_swap_b32 v9, v11')
            a('v_add_f32 v8, v8, v10')
            a('v_add_f32 v9, v9, v11')
        a('v_cvt_pk_bf16_f32 v8, v8, v9')
        a('v_lshlrev_b32 v9, 16, v8')
        a('v_add_f32 v9, v236, v9')
        a('v_cvt_pk_bf16_f32 v9, v9, v9')
        a('v_lshlrev_b32 v9, 16, v9')
        a('v_and_b32 v8, 0xffff0000, v8')
        a('v_add_f32 v9, v9, v8')
        a('v_cvt_pk_bf16_f32 v9, v9, v9')
        a(f's_mov_b64 exec, {0xff if o["r160"] else 0xffff}')
        a('buffer_store_short v9, v235, s[44:47], s70 offen')
        self.stamp(9)
        a('s_cmp_lg_u32 s35, 0'); a('s_cbranch_scc1 L_end')
        a('s_cmp_lg_u32 s31, 0'); a('s_cbranch_scc1 L_end')
        a('s_mov_b64 exec, 1')
        a(f'buffer_store_dwordx2 v[238:239], v240, s[52:55], 0 offen offset:{WS_EPOCH} sc1')


if __name__ == '__main__':
    opts = {}
    for arg in sys.argv[2:]:
        k, v = arg.split('=')
        try:
            v = eval(v)
        except Exception:
            pass
        opts[k] = v
    src = Gen(**opts).build()
    open(sys.argv[1], 'w').write(src)
    print('wrote', sys.argv[1], len(src), 'bytes')
```

```python
import sys

NAME = 'parallel_sum__mha_block_cached__swiglu_ffn__decode_kernel'

D = 640; H = 32; SK = 4096; DH = 192; F = 1536
K_BYTES = 2 * H * SK * DH * 2
WQ_BYTES = D * H * DH * 2
WO_BYTES = H * DH * D * 2
WG_BYTES = D * F * 2
WD_BYTES = F * D * 2
X_BYTES = 2 * D * 2

WS_EPOCH = 0
WS_E1 = 0x10000
WS_F1 = 0xD8000
WS_F0 = 0xDE000
WS_E2F = 0xD0000
WS_E2 = 0xE0000
WS_E3 = 0x140000
WS_E4 = 0x1C0000
WS_USED = 0x260000
WS_PR = 0x270000
WS_DBG = 0x300000
WS_SRD_BYTES = 0x800000

L_XN = 0
L_Q = 2560
L_HV = 2944
L_ON = 3200
L_ML = 3968
L_FLAG = 4032
L_OL = 4096
L_UQ = 10240
L_UF = 40960
L_WB = 56320
L_WD = 87040
LDS_BYTES = 95232

LOG2E = 0x3FB8AA3B
SCALE = 0x3D93CD3A
INV640 = 0x3ACCCCCD
EPS_BF = 0x37280000


class Gen:
    def __init__(self, **opt):
        self.L = []
        self.opt = dict(NP=4, WL=5, gran=1, ntk='nt', ntv='nt', ntw='nt', dbg=False, spin=1 << 16, stamps=False, dbgtime=False, noaux=False, sent=True, psleep=4, ffn_late=True, skipffn=False, skipw=False, smem=True, fsleep=16, tsleep=0, wend=8, wendn=4, whalf=False, nlate=0, wtrig=4, wearly=0, ntwb='', prog=False, ctrl=None, cgain=1, catom='noret', fwait=10, cpart=[1,2,4,7], cmax=3, cmin=3, cstep=1, rot=None, inter=0, local=True, rsleep=0, e4ld='sc1', e4st='sc1', e3ld='sc1', r160=True, local1=False, l1try=8, hintfl='sc1', b2at=None, b1late=4, nob1=False, wpat=None)
        self.opt.update(opt)
        self.lab = 0
        self.ool = []

    def a(self, s):
        self.L.append('  ' + s)

    def label(self, s):
        self.L.append(s + ':')

    def newlab(self, p='L'):
        self.lab += 1
        return f'{p}_{self.lab}'

    def c(self, s):
        self.L.append('  ; ' + s)

    def srd(self, r, base, nbytes):
        self.a(f's_mov_b32 s{r}, s{base}')
        self.a(f's_and_b32 s{r+1}, s{base+1}, 0xffff')
        self.a(f's_mov_b32 s{r+2}, {nbytes}')
        self.a(f's_mov_b32 s{r+3}, 0x20000')

    def dpp(self, op, dst, src0, src1, ctrl):
        self.a(f'{op}_dpp v{dst}, v{src0}, v{src1} {ctrl} row_mask:0xf bank_mask:0xf')

    def swap_reduce(self, op, v, t, which):
        self.a(f'v_mov_b32 v{t}, v{v}')
        self.a('s_nop 1')
        self.a(f'v_permlane{which}_swap_b32 v{v}, v{t}')
        self.a(f'{op} v{v}, v{v}, v{t}')

    def stamp(self, idx):
        if not self.opt['stamps']:
            return
        self.a('s_memrealtime s[94:95]')
        self.a('s_waitcnt lgkmcnt(0)')
        self.a(f'v_writelane_b32 v249, s94, {idx}')

    def stamp_dump(self):
        if not self.opt['stamps']:
            return
        a = self.a
        a('s_mov_b64 exec, 0xffff')
        a('s_lshl_b32 s92, s2, 3')
        a('s_add_u32 s92, s92, s28')
        a('s_lshl_b32 s92, s92, 6')
        a(f's_add_u32 s92, s92, {WS_DBG}')
        a('v_lshlrev_b32 v251, 2, v0')
        a(f'buffer_store_dword v249, v251, s[52:55], s92 offen')

    def tmark(self, i):
        if self.opt['dbgtime']:
            self.a(f's_memrealtime s[{84+2*i}:{85+2*i}]')
            self.a('s_waitcnt lgkmcnt(0)')

    def smem_poll(self, base, ntags, sleep, lo_only=False):
        a = self.a
        again, done = self.newlab('L_sp'), self.newlab('L_sd')
        miss = self.newlab('L_sm')
        self.label(again)
        a(f's_load_dwordx16 s[64:79], s[{base}:{base+1}], 0 glc')
        a('s_waitcnt lgkmcnt(0)')
        for t in range(ntags):
            if lo_only:
                a(f's_cmp_eq_u32 s{64+2*t}, s36')
            else:
                a(f's_cmp_eq_u64 s[{64+2*t}:{65+2*t}], s[36:37]')
            a(f's_cbranch_scc0 {miss}')
        a(f's_branch {done}')
        self.label(miss)
        a('s_sub_u32 s80, s80, 1')
        a('s_cmp_eq_u32 s80, 0')
        a(f's_cbranch_scc1 {done}')
        a(f's_sleep {sleep}')
        a(f's_branch {again}')
        self.label(done)

    def poll_check(self, regs, again, cnt='s80', sleep=1):
        first = True
        for r in regs:
            self.a(f'v_cmp_ne_u64 vcc, s[36:37], v[{r+2}:{r+3}]')
            if first:
                self.a('s_mov_b64 s[82:83], vcc')
                first = False
            else:
                self.a('s_or_b64 s[82:83], s[82:83], vcc')
        done = self.newlab('L_pd')
        self.a('s_cmp_eq_u64 s[82:83], 0')
        self.a(f's_cbranch_scc1 {done}')
        self.a(f's_sub_u32 {cnt}, {cnt}, 1')
        self.a(f's_cmp_eq_u32 {cnt}, 0')
        self.a(f's_cbranch_scc1 {done}')
        if sleep:
            self.a(f's_sleep {sleep}')
        self.a(f's_branch {again}')
        self.label(done)

    def build(self):
        o = self.opt
        NP = o['NP']
        a = self.a
        head = [f'; fused LN + q-proj + split-KV attention + out-proj + SwiGLU FFN (decode), one launch',
                f'; @launch grid=(256,1,1) block=(512,1,1) lds={LDS_BYTES}',
                '.amdgcn_target "amdgcn-amd-amdhsa--gfx950"', '.text', f'.globl {NAME}', '.p2align 8',
                f'.type {NAME},@function', f'{NAME}:']
        a('s_cmp_ge_u32 s2, 256')
        a('s_cbranch_scc1 L_exit')
        if o['stamps']:
            a('v_mov_b32 v249, 0')
        a('s_load_dwordx16 s[4:19], s[0:1], 0')
        a('s_load_dwordx8 s[20:27], s[0:1], 64')
        a('v_lshrrev_b32 v1, 6, v0')
        a('v_and_b32 v0, 63, v0')
        a('s_and_b32 s29, s2, 7')
        a('v_readfirstlane_b32 s28, v1')
        a('s_lshr_b32 s34, s2, 3')
        a('s_lshr_b32 s30, s34, 3')
        a('s_and_b32 s31, s34, 7')
        a('s_lshl_b32 s35, s29, 2')
        a('s_add_u32 s35, s35, s30')
        a('s_lshr_b32 s32, s31, 2')
        a('s_and_b32 s33, s31, 3')
        a('s_waitcnt lgkmcnt(0)')
        a(f's_load_dwordx2 s[36:37], s[26:27], {WS_EPOCH}')
        self.srd(52, 26, WS_SRD_BYTES)
        self.stamp(0)
        self.tmark(0)
        a('s_cmp_ge_u32 s28, 4')
        a('s_cbranch_scc1 L_aux')
        self.stream()
        self.L += self.ool
        self.label('L_aux')
        self.aux()
        self.label('L_tail')
        self.tail()
        self.label('L_end')
        self.stamp_dump()
        self.label('L_exit')
        a('s_endpgm')
        nv = 256
        foot = ['.section .rodata,"a"', '.p2align 6', f'.amdhsa_kernel {NAME}',
                f'  .amdhsa_next_free_vgpr {nv}', '  .amdhsa_next_free_sgpr 96', f'  .amdhsa_accum_offset {nv}',
                '  .amdhsa_group_segment_fixed_size 0', '  .amdhsa_kernarg_size 96',
                '  .amdhsa_user_sgpr_count 2', '  .amdhsa_user_sgpr_kernarg_segment_ptr 1',
                '  .amdhsa_system_sgpr_workgroup_id_x 1', '  .amdhsa_float_denorm_mode_32 3',
                '.end_amdhsa_kernel']
        return '\n'.join(head + self.L + foot) + '\n'

    def stream(self):
        o = self.opt; a = self.a
        NP = o['NP']
        VOFF = 1
        M = 2
        Q = 8
        ACC = 20
        S = 32
        T = 48
        RB = 72
        assert RB + 24 * NP <= 250
        self.c('==== stream waves ====')
        self.srd(40, 6, K_BYTES)
        a('s_lshl_b32 s56, s32, 5')
        a('s_add_u32 s56, s56, s35')
        a('s_lshl_b32 s56, s56, 12')
        a('s_lshl_b32 s57, s33, 10')
        a('s_add_u32 s56, s56, s57')
        if o['inter'] == 0:
            a('s_lshl_b32 s57, s28, 8')
        elif o['inter'] == 1:
            a('s_lshl_b32 s57, s28, 4')
        else:
            a('s_lshl_b32 s57, s28, 5')
        a('s_add_u32 s56, s56, s57')
        a('s_mul_i32 s58, s56, 384')
        a(f'v_lshrrev_b32 v{T}, 3, v0')
        a(f'v_mul_u32_u24 v{T}, 384, v{T}')
        a(f'v_and_b32 v{T+1}, 7, v0')
        a(f'v_lshlrev_b32 v{T+2}, 4, v{T+1}')
        a(f'v_add_u32 v{VOFF}, v{T}, v{T+2}')
        if o['rot']:
            ra, rb = o['rot']
            a(f's_mul_i32 s57, s2, {ra}')
            a(f's_mul_i32 s59, s28, {rb}')
            a('s_add_u32 s57, s57, s59')
            a('s_and_b32 s57, s57, 15')
            a('s_mul_i32 s57, s57, 6144')
            a('s_add_u32 s86, s58, 98304')
            a('s_add_u32 s58, s58, s57')
        a('s_mov_b32 s59, s58')
        if not o['b1late'] and not o['nob1']:
            a('s_barrier')

        def late_setup():
            self.srd(44, 8, K_BYTES)
            a(f'v_and_b32 v{T+1}, 7, v0')
            a(f'v_and_b32 v{T+2}, 1, v0')
            a(f'v_mov_b32 v{T+3}, 0xffff')
            a(f'v_mov_b32 v{T+4}, 0xffff0000')
            a(f'v_cmp_eq_u32 vcc, 1, v{T+2}')
            a(f'v_lshrrev_b32 v{T+1}, 1, v{T+1}')
            a('s_nop 0')
            a(f'v_cndmask_b32 v{T+3}, v{T+3}, v{T+4}, vcc')
            for r in range(4):
                a(f'v_cmp_eq_u32 vcc, {r}, v{T+1}')
                a('s_nop 1')
                a(f'v_cndmask_b32 v{M+r}, 0, v{T+3}, vcc')
            for i in range(12):
                a(f'v_mov_b32 v{ACC+i}, 0')

        seq = [('K', p) for p in range(16)] + [('V', p) for p in range(16)]

        def issue(idx):
            if idx >= len(seq):
                return []
            kind, p = seq[idx]
            srd = 40 if kind == 'K' else 44
            nt = o['ntk'] if kind == 'K' else o['ntv']
            R = RB + 24 * (idx % NP)
            out = []
            if kind == 'V' and p == 0:
                out.append('s_mov_b32 s59, s58')
            for g in range(2):
                if o['WL'] and o['gran'] == 3 and not (idx * 6 + 3 * g + 3 <= o['WL']):
                    out.append(f's_waitcnt vmcnt({o["WL"] - 3})')
                for i in range(3):
                    wl = o['WL']
                    if o['wend'] and idx >= 32 - o['wendn']:
                        wl = o['wend']
                    if o['whalf'] and (3 * g + i) % 2 == 1:
                        wl += 1
                    if o['wpat']:
                        w6 = [w for (st, w) in o['wpat'] if idx >= st][-1]
                        base, frac = divmod(w6, 6)
                        pat = {0: [], 1: [0], 2: [0, 3], 3: [0, 2, 4], 4: [0, 1, 3, 4], 5: [0, 1, 2, 3, 4]}[frac]
                        wl = base + (1 if (3 * g + i) in pat else 0)
                    adaptive = o['ctrl'] and idx - NP > o['ctrl'][1] and not (o['wend'] and idx >= 32 - o['wendn'])
                    r = R + 12 * g + 4 * i
                    ld = f'buffer_load_dwordx4 v[{r}:{r+3}], v{VOFF}, s[{srd}:{srd+3}], s59 offen offset:{3072*g+128*i} {nt}'
                    if adaptive:
                        n = 3 * g + i
                        lf, ls, lb = self.newlab('L_cf'), self.newlab('L_cs'), self.newlab('L_cb')
                        out.append(f's_bitcmp1_b32 s81, {n}')
                        out.append(f's_cbranch_scc1 {lf}')
                        out.append(f's_bitcmp1_b32 s81, {8 + n}')
                        out.append(f's_cbranch_scc1 {ls}')
                        out.append(f's_waitcnt vmcnt({wl - 1})')
                        out.append(ld)
                        out.append(('L', lb))
                        self.ool += [f'{lf}:', f'  s_waitcnt vmcnt({wl - 1 + o["cstep"]})', '  ' + ld, f'  s_branch {lb}',
                                     f'{ls}:', f'  s_waitcnt vmcnt({wl - 2})', '  ' + ld, f'  s_branch {lb}']
                        continue
                    if o['WL'] and o['gran'] == 1 and not (idx * 6 + 3 * g + i + 1 <= wl):
                        out.append(f's_waitcnt vmcnt({wl - 1})')
                    out.append(ld)
            if o['inter'] == 0:
                out.append('s_add_u32 s59, s59, 6144')
            elif o['inter'] == 1:
                out.append('s_add_u32 s59, s59, 24576')
            else:
                out.append(f's_add_u32 s59, s59, {6144 if p % 2 == 0 else 6144 + 3 * 12288}')
            if o['rot']:
                out.append('s_cmp_ge_u32 s59, s86')
                out.append('s_cselect_b32 s57, 98304, 0')
                out.append('s_sub_u32 s59, s59, s57')
            return out

        def emit(lst):
            for ins in lst:
                if isinstance(ins, tuple):
                    self.label(ins[1])
                else:
                    a(ins)

        def mode_read(idx):
            if o['ctrl'] and idx > o['ctrl'][1] and idx + NP < 32:
                a(f'ds_read_b32 v242, v240 offset:{L_FLAG+12}')

        def mode_get(idx):
            if o['ctrl'] and idx > o['ctrl'][1] and idx + NP < 32:
                a('s_waitcnt lgkmcnt(0)')
                a('v_readfirstlane_b32 s81, v242')

        def checkpoint(idx):
            if o['fwait'] and idx == o['fwait']:
                a('s_mov_b64 exec, 1')
                a(f'ds_add_u32 v240, v241 offset:{L_FLAG+16}')
                a('s_mov_b64 exec, -1')
            if o['ctrl'] and idx in o['ctrl']:
                a('s_mov_b64 exec, 1')
                a(f'ds_add_u32 v240, v241 offset:{L_FLAG+8}')
                a('s_mov_b64 exec, -1')

        pre = []
        b2at = o['b2at'] or NP
        for idx in range(b2at):
            pre += issue(idx)
        done_prep = False
        nld = 0
        for ins in pre:
            if ins.startswith('buffer_load'):
                if o['b1late'] and nld == o['b1late'] and not o['nob1']:
                    a('s_barrier')
                nld += 1
            if ins.startswith('s_waitcnt') and not done_prep:
                late_setup()
                a('s_waitcnt lgkmcnt(0)')
                a('s_add_u32 s36, s36, 1')
                self.tail_prep(aux=False)
                done_prep = True
            a(ins)
        assert done_prep
        self.stamp(1)
        a('s_barrier')
        self.stamp(2)
        a(f'v_and_b32 v{T}, 7, v0')
        a(f'v_lshlrev_b32 v{T}, 4, v{T}')
        for i in range(3):
            a(f'ds_read_b128 v[{Q+4*i}:{Q+4*i+3}], v{T} offset:{L_Q + 128*i}')
        if o['local']:
            a(f'ds_read_b32 v{T+9}, v240 offset:{L_FLAG+20}')
        a(f'v_mov_b32 v{T+8}, 0xff800000')
        MX = T + 8
        a(f's_mov_b32 s60, {SCALE}')
        a(f's_mov_b32 s61, 0xffff0000')
        a(f's_mov_b32 s62, {LOG2E}')
        for idx in range(b2at, NP):
            emit(issue(idx))
        a('s_waitcnt lgkmcnt(0)')
        if o['local']:
            a(f'v_readfirstlane_b32 s87, v{T+9}')

        def outstanding_after(idx):
            last = min(idx + NP - 1, len(seq) - 1)
            return (last - idx) * 6

        for p in range(16):
            idx = p
            R = RB + 24 * (idx % NP)
            self.c(f'K pair {p}')
            mode_read(idx)
            a(f's_waitcnt vmcnt({outstanding_after(idx)})')
            A, B = T, T + 1
            a(f'v_mov_b32 v{A}, 0')
            a(f'v_mov_b32 v{B}, 0')
            for g, acc in ((0, A), (1, B)):
                for i in range(3):
                    for r in range(4):
                        a(f'v_dot2c_f32_bf16 v{acc}, v{R+12*g+4*i+r}, v{Q+4*i+r}')
            nxt = issue(idx + NP)
            late_issue = any(isinstance(x, tuple) for x in nxt)
            fill = [] if late_issue else list(nxt)

            def f(n=1):
                for _ in range(n):
                    a(fill.pop(0) if fill else 's_nop 0')
            q1 = 'quad_perm:[1,0,3,2]'; q2 = 'quad_perm:[2,3,0,1]'; hm = 'row_half_mirror'
            self.dpp('v_add_f32', A, A, A, q1)
            f(2)
            self.dpp('v_add_f32', B, B, B, q1)
            self.dpp('v_add_f32', A, A, A, q2)
            f(1)
            self.dpp('v_add_f32', B, B, B, q2)
            self.dpp('v_add_f32', A, A, A, hm)
            f(1)
            self.dpp('v_add_f32', B, B, B, hm)
            while fill:
                f(1)
            if late_issue:
                mode_get(idx)
                emit(nxt)
            checkpoint(idx)
            a(f'v_cvt_pk_bf16_f32 v{T+2}, v{A}, v{B}')
            a(f'v_lshlrev_b32 v{T+3}, 16, v{T+2}')
            a(f'v_and_b32 v{T+4}, s61, v{T+2}')
            a(f'v_mul_f32 v{T+3}, s60, v{T+3}')
            a(f'v_mul_f32 v{T+4}, s60, v{T+4}')
            a(f'v_max3_f32 v{MX}, v{MX}, v{T+3}, v{T+4}')
            a(f'v_cvt_pk_bf16_f32 v{S+p}, v{T+3}, v{T+4}')
            if o['prog'] and p == 7:
                self.stamp(12)
            if o['prog'] and p == 15:
                self.stamp(13)
        self.c('wave max')
        a('s_nop 1')
        self.dpp('v_max_f32', MX, MX, MX, 'row_ror:8')
        self.swap_reduce('v_max_f32', MX, T, 16)
        self.swap_reduce('v_max_f32', MX, T, 32)
        a(f'v_cvt_pk_bf16_f32 v{T}, v{MX}, v{MX}')
        a(f'v_lshlrev_b32 v{MX}, 16, v{T}')
        NM = T + 9
        a(f'v_mul_f32 v{NM}, s62, v{MX}')
        a(f'v_sub_f32 v{NM}, 0, v{NM}')
        LA = T + 10
        a(f'v_mov_b32 v{LA}, 0')
        if o['dbg']:
            a('s_lshl_b32 s63, s2, 2'); a('s_add_u32 s63, s63, s28'); a('s_lshl_b32 s63, s63, 12')
            a(f's_add_u32 s63, s63, {WS_DBG + 0x100000}')
            a(f'v_lshlrev_b32 v{T}, 2, v0')
            for p in range(16):
                a(f'buffer_store_dword v{S+p}, v{T}, s[52:55], s63 offen offset:{256*p}')
            a('s_waitcnt vmcnt(0)')
        PA = T + 12
        for p in range(16):
            idx = 16 + p
            R = RB + 24 * (idx % NP)
            self.c(f'V pair {p}')
            mode_read(idx)
            e0, e1 = T, T + 1
            a(f'v_lshlrev_b32 v{e0}, 16, v{S+p}')
            a(f'v_and_b32 v{e1}, s61, v{S+p}')
            a(f'v_fma_f32 v{e0}, v{e0}, s62, v{NM}')
            a(f'v_fma_f32 v{e1}, v{e1}, s62, v{NM}')
            a(f'v_exp_f32 v{e0}, v{e0}')
            a(f'v_exp_f32 v{e1}, v{e1}')
            a('s_nop 0')
            a(f'v_cvt_pk_bf16_f32 v{T+2}, v{e0}, v{e0}')
            a(f'v_cvt_pk_bf16_f32 v{T+3}, v{e1}, v{e1}')
            for r in range(4):
                a(f'v_and_b32 v{PA+r}, v{T+2}, v{M+r}')
            for r in range(4):
                a(f'v_and_b32 v{PA+4+r}, v{T+3}, v{M+r}')
            a(f'v_add_f32 v{LA}, v{LA}, v{e0}')
            a(f'v_add_f32 v{LA}, v{LA}, v{e1}')
            if o['dbg'] and False:
                pass
            a(f's_waitcnt vmcnt({outstanding_after(idx)})')
            for g in range(2):
                for i in range(3):
                    r = R + 12 * g + 4 * i
                    a(f'v_mfma_f32_16x16x32_bf16 v[{ACC+4*i}:{ACC+4*i+3}], v[{PA+4*g}:{PA+4*g+3}], v[{r}:{r+3}], v[{ACC+4*i}:{ACC+4*i+3}]')
            mode_get(idx)
            emit(issue(idx + NP))
            checkpoint(idx)
            if o['prog'] and p == 7:
                self.stamp(14)
            if o['prog'] and p == 11:
                self.stamp(15)
            if o['nlate'] and idx + NP == 31 - o['wearly']:
                a('s_mov_b64 exec, 1')
                a(f'ds_add_u32 v240, v241 offset:{L_FLAG}')
                a('s_mov_b64 exec, -1')
        self.c('wave epilogue')
        self.stamp(3)
        a('s_nop 1')
        self.dpp('v_add_f32', LA, LA, LA, 'row_ror:8')
        self.swap_reduce('v_add_f32', LA, T, 16)
        self.swap_reduce('v_add_f32', LA, T, 32)
        a(f'v_lshrrev_b32 v{T}, 5, v0')
        a(f's_lshl_b32 s63, s28, 1')
        a(f'v_add_u32 v{T}, s63, v{T}')
        a(f'v_mul_u32_u24 v{T}, 768, v{T}')
        a(f'v_and_b32 v{T+1}, 7, v0')
        a(f'v_lshlrev_b32 v{T+1}, 5, v{T+1}')
        a(f'v_and_b32 v{T+2}, 16, v0')
        a(f'v_add3_u32 v{T}, v{T}, v{T+1}, v{T+2}')
        a(f's_lshl_b32 s63, s28, 2')
        a(f'v_mov_b32 v{T+3}, s63')
        a('s_mov_b32 exec_lo, 0x00ff00ff')
        a('s_mov_b32 exec_hi, 0xff00ff00')
        for i in range(3):
            a(f'ds_write_b128 v{T}, v[{ACC+4*i}:{ACC+4*i+3}] offset:{L_OL + 256*i}')
        a('s_mov_b64 exec, 1')
        a(f'ds_write_b32 v{T+3}, v{MX} offset:{L_ML}')
        a(f'ds_write_b32 v{T+3}, v{LA} offset:{L_ML+16}')
        a('s_waitcnt lgkmcnt(0)')
        if o['nlate']:
            a(f'ds_add_u32 v240, v241 offset:{L_FLAG+4}')
        a('s_mov_b64 exec, -1')
        a('s_branch L_tail')

    def gemv_unit(self, W, XB, ntile, nstep, lastvalid, addr, rowstride, tilebytes, acc):
        a = self.a
        for t in range(nstep):
            for tile in range(ntile):
                av = addr if t < nstep - 1 else addr + 1
                base = t * 32 * rowstride + tile * tilebytes
                r = W + 4 * (tile % 4)
                a(f'ds_read_b64_tr_b16 v[{r}:{r+1}], v{av} offset:{base}')
                a(f'ds_read_b64_tr_b16 v[{r+2}:{r+3}], v{av} offset:{base + 4*rowstride}')
                if tile % 4 == 3 or tile == ntile - 1:
                    a('s_waitcnt lgkmcnt(0)')
                    for tt in range(tile - tile % 4, tile + 1):
                        rr = W + 4 * (tt % 4)
                        a(f'v_mfma_f32_16x16x32_bf16 v[{acc+4*tt}:{acc+4*tt+3}], v[{rr}:{rr+3}], v[{XB+4*t}:{XB+4*t+3}], v[{acc+4*tt}:{acc+4*tt+3}]')

    def aux(self):
        o = self.opt; a = self.a
        ntw = o['ntw']
        self.c('==== aux waves ====')
        if o['noaux']:
            a('s_barrier'); a('s_barrier'); a('s_barrier'); a('s_barrier'); a('s_branch L_end')
        a('s_sub_u32 s38, s28, 4')
        self.srd(40, 4, X_BYTES)
        a('v_lshrrev_b32 v1, 5, v0')
        a('v_and_b32 v2, 31, v0')
        a('v_mul_u32_u24 v3, 1280, v1')
        a('v_mul_u32_u24 v4, 40, v2')
        a('v_add_u32 v3, v3, v4')
        a('buffer_load_dwordx4 v[8:11], v3, s[40:43], 0 offen')
        a('buffer_load_dwordx4 v[12:15], v3, s[40:43], 0 offen offset:16')
        a('buffer_load_dwordx2 v[16:17], v3, s[40:43], 0 offen offset:32')
        a('s_cmp_eq_u32 s38, 3')
        a('s_cbranch_scc1 L_aux_ffn_ld')
        self.srd(44, 10, WQ_BYTES)
        a('v_lshrrev_b32 v4, 3, v0')
        a('v_mul_u32_u24 v4, 12288, v4')
        a('v_and_b32 v5, 7, v0')
        a('v_lshlrev_b32 v5, 4, v5')
        a('v_add_u32 v4, v4, v5')
        a('s_mul_i32 s56, s31, 983040')
        a('s_mul_i32 s57, s35, 384')
        a('s_add_u32 s56, s56, s57')
        a('s_lshl_b32 s57, s38, 7')
        a('s_add_u32 s56, s56, s57')
        a('s_mul_i32 s57, s38, 10240')
        a(f's_add_u32 s57, s57, {L_UQ}')
        for i in range(10):
            a('s_mov_b32 m0, s57')
            a('s_add_u32 s57, s57, 1024')
            a(f'buffer_load_dwordx4 v4, s[44:47], s56 offen {ntw} lds')
            a('s_add_u32 s56, s56, 98304')
        if not o['nob1']:
            a('s_barrier')
        a('s_waitcnt vmcnt(10)')
        a('s_branch L_aux_ln')
        self.label('L_aux_ffn_ld')
        a('s_cmp_ge_u32 s34, 16')
        a('s_cselect_b32 s56, s18, s16')
        a('s_cselect_b32 s57, s19, s17')
        self.srd(44, 56, WG_BYTES)
        def ffn_dma():
            for i in range(3):
                a(f'v_add_u32 v43, {64*i}, v0')
                a('v_mul_u32_u24 v44, 2731, v43')
                a('v_lshrrev_b32 v44, 16, v44')
                a('v_mul_u32_u24 v45, 24, v44')
                a('v_sub_u32 v43, v43, v45')
                a('v_mul_u32_u24 v44, 3072, v44')
                a('v_lshlrev_b32 v43, 4, v43')
                a(f'v_add_u32 v{40+i}, v43, v44')
            a('s_and_b32 s56, s34, 15')
            a('s_mul_i32 s56, s56, 122880')
            a('s_mul_i32 s57, s29, 384')
            a('s_add_u32 s56, s56, s57')
            a(f's_mov_b32 s57, {L_UF}')
            for i in range(15):
                a('s_mov_b32 m0, s57')
                a('s_add_u32 s57, s57, 1024')
                a(f'buffer_load_dwordx4 v{40+i%3}, s[44:47], s56 offen {ntw} lds')
                if i % 3 == 2:
                    a('s_add_u32 s56, s56, 24576')
        if not o['ffn_late']:
            ffn_dma()
            a('s_barrier')
            a('s_waitcnt vmcnt(15)')
        else:
            if o['local1']:
                a('v_mov_b32 v43, 0')
                a(f'ds_write_b32 v43, v43 offset:{L_FLAG+24}')
                a('s_waitcnt lgkmcnt(0)')
            if not o['nob1']:
                a('s_barrier')
            if o['local1']:
                a('s_waitcnt lgkmcnt(0)')
                a('s_add_u32 s36, s36, 1')
                a('s_getreg_b32 s39, hwreg(HW_REG_XCC_ID, 0, 4)')
                a('s_add_u32 s39, s39, 1')
                a('s_lshl_b32 s39, s39, 24')
                a('s_add_u32 s39, s39, s37')
                a('v_mov_b32 v44, s36')
                a('v_mov_b32 v45, s39')
                a('v_mov_b32 v46, 0')
                a('s_lshl_b32 s56, s35, 7')
                a('s_lshl_b32 s57, s31, 3')
                a('s_add_u32 s56, s56, s57')
                a(f's_add_u32 s56, s56, {WS_F0}')
                a('s_mov_b64 exec, 1')
                a('buffer_store_dwordx2 v[44:45], v46, s[52:55], s56 offen sc1')
                a('s_mov_b64 exec, -1')
                a('s_lshl_b32 s56, s35, 7')
                a(f's_add_u32 s56, s56, {WS_F0}')
                a('s_add_u32 s58, s26, s56')
                a('s_addc_u32 s59, s27, 0')
                a(f's_mov_b32 s81, {o["l1try"]}')
                lt, ld = self.newlab('L_l1'), self.newlab('L_l1d')
                self.label(lt)
                a('s_sleep 4')
                a('s_load_dwordx16 s[64:79], s[58:59], 0 glc')
                a('s_waitcnt lgkmcnt(0)')
                a('s_mov_b32 s87, 1')
                for t in range(8):
                    a(f's_cmp_eq_u32 s{64+2*t}, s36')
                    a('s_cselect_b32 s87, s87, 0')
                    a(f's_cmp_eq_u32 s{65+2*t}, s39')
                    a('s_cselect_b32 s87, s87, 0')
                a('s_cmp_eq_u32 s87, 1')
                a(f's_cbranch_scc1 {ld}')
                a('s_sub_u32 s81, s81, 1')
                a('s_cmp_lg_u32 s81, 0')
                a(f's_cbranch_scc1 {lt}')
                self.label(ld)
                a('v_mov_b32 v43, 0')
                a('v_mov_b32 v44, s87')
                a(f'ds_write_b32 v43, v44 offset:{L_FLAG+24}')
            a('s_waitcnt vmcnt(1)' if o['local1'] else 's_waitcnt vmcnt(0)')
        self.label('L_aux_ln')
        self.stamp(1)
        X = 20
        for k in range(10):
            a(f'v_lshlrev_b32 v{X+2*k}, 16, v{8+k}')
            a(f'v_and_b32 v{X+2*k+1}, 0xffff0000, v{8+k}')
        a(f'v_add_f32 v44, v{X}, v{X+1}')
        a(f'v_add_f32 v45, v{X+2}, v{X+3}')
        for k in range(2, 10):
            a(f'v_add_f32 v{44+k%2}, v{44+k%2}, v{X+2*k}')
            a(f'v_add_f32 v{44+k%2}, v{44+k%2}, v{X+2*k+1}')
        a('v_add_f32 v44, v44, v45')

        def red32(v):
            for ctrl in ('quad_perm:[1,0,3,2]', 'quad_perm:[2,3,0,1]', 'row_half_mirror', 'row_mirror'):
                a('s_nop 1')
                self.dpp('v_add_f32', v, v, v, ctrl)
            self.swap_reduce('v_add_f32', v, 47, 16)
        red32(44)
        a(f's_mov_b32 s56, {INV640}')
        a('v_mul_f32 v44, s56, v44')
        a('v_mov_b32 v45, 0')
        a('v_mov_b32 v46, 0')
        for k in range(20):
            a(f'v_sub_f32 v48, v{X+k}, v44')
            a(f'v_fmac_f32 v{45+k%2}, v48, v48')
        a('v_add_f32 v45, v45, v46')
        red32(45)
        a('v_mul_f32 v45, s56, v45')
        a('v_cvt_pk_bf16_f32 v46, v44, v45')
        a('v_lshlrev_b32 v44, 16, v46')
        a('v_and_b32 v45, 0xffff0000, v46')
        a(f'v_add_f32 v45, {EPS_BF}, v45')
        a('v_cvt_pk_bf16_f32 v45, v45, v45')
        a('v_and_b32 v45, 0xffff0000, v45')
        a('v_sqrt_f32 v45, v45')
        a('s_nop 0')
        a('v_cvt_pk_bf16_f32 v45, v45, v45')
        a('v_and_b32 v45, 0xffff0000, v45')
        a('v_rcp_f32 v45, v45')
        for k in range(10):
            a(f'v_sub_f32 v48, v{X+2*k}, v44')
            a(f'v_sub_f32 v49, v{X+2*k+1}, v44')
            a('v_cvt_pk_bf16_f32 v48, v48, v49')
            a('v_and_b32 v49, 0xffff0000, v48')
            a('v_lshlrev_b32 v48, 16, v48')
            a('v_mul_f32 v48, v48, v45')
            a('v_mul_f32 v49, v49, v45')
            a(f'v_cvt_pk_bf16_f32 v{8+k}, v48, v49')
        for k in range(5):
            a(f'ds_write_b64 v3, v[{8+2*k}:{9+2*k}] offset:{L_XN + 8*k}')
        a('v_and_b32 v4, 15, v0')
        a('v_lshrrev_b32 v5, 4, v0')
        a('v_and_b32 v6, 1, v0')
        a('v_mul_u32_u24 v6, 1280, v6')
        a('v_lshlrev_b32 v7, 4, v5')
        a('v_add_u32 v6, v6, v7')
        a('v_lshlrev_b32 v50, 3, v5')
        a('v_lshrrev_b32 v51, 2, v4')
        a('v_add_u32 v50, v50, v51')
        a('v_and_b32 v51, 3, v4')
        a('v_lshlrev_b32 v51, 3, v51')
        a('s_waitcnt lgkmcnt(0)')
        a('s_cmp_eq_u32 s38, 3')
        a('s_cbranch_scc1 L_aux_ffn')

        XB = 8
        a('s_mul_i32 s56, s31, 160')
        a('v_add_u32 v6, s56, v6')
        for t in range(3):
            a(f'ds_read_b128 v[{XB+4*t}:{XB+4*t+3}], v6 offset:{L_XN + 64*t}')
        a('s_mul_i32 s56, s38, 10240')
        a(f's_add_u32 s56, s56, {L_UQ}')
        a('v_lshlrev_b32 v52, 7, v50')
        a('v_add3_u32 v52, v52, v51, s56')
        a('v_cmp_le_u32 vcc, 2, v5')
        a('v_subrev_u32 v53, 2048, v52')
        a('s_nop 0')
        a('v_cndmask_b32 v53, v52, v53, vcc')
        ACC = 24
        for k in range(16):
            a(f'v_mov_b32 v{ACC+k}, 0')
        a('s_waitcnt lgkmcnt(0)')
        for r in range(4):
            a(f'v_cndmask_b32 v{XB+8+r}, v{XB+8+r}, 0, vcc')
        if o['local1']:
            a('s_add_u32 s36, s36, 1')
            a('s_getreg_b32 s39, hwreg(HW_REG_XCC_ID, 0, 4)')
            a('s_add_u32 s39, s39, 1')
            a('s_lshl_b32 s39, s39, 24')
            a('s_add_u32 s39, s39, s37')
        a('s_waitcnt vmcnt(0)')
        self.stamp(2)
        self.gemv_unit(W=56, XB=XB, ntile=4, nstep=3, lastvalid=2, addr=52, rowstride=128, tilebytes=32, acc=ACC)
        a('v_and_b32 v6, 1, v4')
        a('v_mul_u32_u24 v6, 12288, v6')
        a('v_lshrrev_b32 v7, 1, v4')
        a('v_lshl_add_u32 v7, v5, 1, v7')
        a('v_lshlrev_b32 v7, 4, v7')
        a('v_add_u32 v6, v6, v7')
        a('s_mul_i32 s56, s35, 24576')
        a('s_lshl_b32 s57, s38, 12')
        a('s_add_u32 s56, s56, s57')
        a('s_lshl_b32 s57, s31, 9')
        a('s_add_u32 s56, s56, s57')
        a(f's_add_u32 s56, s56, {WS_E1}')
        a('v_and_b32 v7, 2, v4')
        a('v_cmp_eq_u32 vcc, 2, v7')
        a('s_waitcnt lgkmcnt(0)')
        if not o['local1']:
            a('s_add_u32 s36, s36, 1')
        a('v_mov_b32 v10, s36')
        a('v_mov_b32 v11, s37')
        a('s_nop 7')
        a('s_mov_b64 s[84:85], exec')
        def e1_publish(fl):
            a('s_mov_b32 exec_lo, 0x000f000f')
            a('s_mov_b32 exec_hi, 0x000f000f')
            for tile in range(4):
                a(f'v_cndmask_b32 v8, v{ACC+4*tile}, v{ACC+4*tile+2}, vcc')
                a(f'v_cndmask_b32 v9, v{ACC+4*tile+1}, v{ACC+4*tile+3}, vcc')
                a(f'buffer_store_dwordx4 v[8:11], v6, s[52:55], s56 offen offset:{128*tile} {fl}')
                a('s_nop 1')
            if o['smem']:
                a('s_mul_i32 s56, s35, 768')
                a('s_lshl_b32 s57, s38, 7')
                a('s_add_u32 s56, s56, s57')
                a('s_lshl_b32 s57, s31, 3')
                a('s_add_u32 s56, s56, s57')
                a(f's_add_u32 s56, s56, {WS_F1}')
                a('s_mov_b64 exec, 3')
                a('v_mul_u32_u24 v7, 384, v0')
                if o['local']:
                    if not o['local1']:
                        a('s_getreg_b32 s39, hwreg(HW_REG_XCC_ID, 0, 4)')
                        a('s_add_u32 s39, s39, 1')
                        a('s_lshl_b32 s39, s39, 24')
                        a('s_add_u32 s39, s39, s37')
                    a('v_mov_b32 v9, s39')
                    a('v_mov_b32 v8, s36')
                    a(f'buffer_store_dwordx2 v[8:9], v7, s[52:55], s56 offen {o["hintfl"] if o["hintfl"] is not None else fl}')
                else:
                    a(f'buffer_store_dwordx2 v[10:11], v7, s[52:55], s56 offen {fl}')
        if o['local1']:
            l1, l2 = self.newlab('L_e1'), self.newlab('L_e1')
            a('v_mov_b32 v43, 0')
            a(f'ds_read_b32 v43, v43 offset:{L_FLAG+24}')
            a('s_waitcnt lgkmcnt(0)')
            a('v_readfirstlane_b32 s87, v43')
            a('s_cmp_eq_u32 s87, 1')
            a(f's_cbranch_scc1 {l1}')
            e1_publish('sc1')
            a(f's_branch {l2}')
            self.label(l1)
            e1_publish('')
            self.label(l2)
        else:
            e1_publish('sc1')
        a('s_mov_b64 exec, s[84:85]')
        self.stamp(3)
        a('s_mul_i32 s56, s35, 24576')
        a('s_mul_i32 s57, s32, 12288')
        a('s_add_u32 s56, s56, s57')
        a('s_lshl_b32 s57, s38, 12')
        a('s_add_u32 s56, s56, s57')
        a(f's_add_u32 s56, s56, {WS_E1}')
        a(f's_mov_b32 s80, {o["spin"]}')
        if o['smem']:
            a('s_mul_i32 s57, s35, 768')
            a('s_mul_i32 s58, s32, 384')
            a('s_add_u32 s57, s57, s58')
            a('s_lshl_b32 s58, s38, 7')
            a('s_add_u32 s57, s57, s58')
            a(f's_add_u32 s57, s57, {WS_F1}')
            a('s_add_u32 s58, s26, s57')
            a('s_addc_u32 s59, s27, 0')
            self.smem_poll(58, 8, o['psleep'], lo_only=o['local'])
            if o['local']:
                a('s_mov_b32 s57, 1')
                for t in range(8):
                    a(f's_cmp_eq_u32 s{65+2*t}, s39')
                    a('s_cselect_b32 s57, s57, 0')
                a('v_mov_b32 v7, s57')
                a('v_mov_b32 v6, 0')
                a(f'ds_write_b32 v6, v7 offset:{L_FLAG+20}')
        elif o['sent']:
            a('v_lshlrev_b32 v6, 9, v0')
            a('v_add_u32 v6, 496, v6')
            a('s_mov_b64 exec, 0xff')
            self.label('L_q_sent')
            a('buffer_load_dwordx4 v[24:27], v6, s[52:55], s56 offen sc1')
            a('s_waitcnt vmcnt(0)')
            self.poll_check([24], 'L_q_sent', sleep=o['psleep'])
            a('s_mov_b64 exec, -1')
        a('v_lshlrev_b32 v6, 4, v0')
        self.label('L_q_poll')
        for i in range(4):
            a(f'buffer_load_dwordx4 v[{24+4*i}:{27+4*i}], v6, s[52:55], s56 offen offset:{1024*i} sc1')
        a('s_waitcnt vmcnt(0)')
        self.poll_check([24, 28, 32, 36], 'L_q_poll')
        a('v_add_f32 v24, v24, v28')
        a('v_add_f32 v25, v25, v29')
        a('v_add_f32 v32, v32, v36')
        a('v_add_f32 v33, v33, v37')
        a('v_add_f32 v24, v24, v32')
        a('v_add_f32 v25, v25, v33')
        self.swap_reduce('v_add_f32', 24, 26, 32)
        self.swap_reduce('v_add_f32', 25, 26, 32)
        a('v_cvt_pk_bf16_f32 v24, v24, v25')
        a('v_and_b32 v6, 31, v0')
        a('v_lshlrev_b32 v6, 2, v6')
        a('s_lshl_b32 s57, s38, 7')
        a('v_add_u32 v6, s57, v6')
        a(f'ds_write_b32 v6, v24 offset:{L_Q}')
        if o['dbg']:
            a('s_lshl_b32 s56, s2, 9'); a(f's_add_u32 s56, s56, {WS_DBG}')
            a('buffer_store_dword v24, v6, s[52:55], s56 offen')
        if o['nlate'] or o['fwait']:
            a('v_mov_b32 v7, 0')
            a(f'ds_write_b32 v7, v7 offset:{L_FLAG+16}')
            a(f'ds_write_b32 v7, v7 offset:{L_FLAG}')
            a(f'ds_write_b32 v7, v7 offset:{L_FLAG+4}')
            a(f'ds_write_b32 v7, v7 offset:{L_FLAG+8}')
            a(f'ds_write_b32 v7, v7 offset:{L_FLAG+12}')
        a('s_waitcnt lgkmcnt(0)')
        self.stamp(4)
        a('s_barrier')
        self.tmark(1)
        self.wb_setup()
        self.wb_early()
        self.tail_prep(aux=True)
        if o['ctrl']:
            self.controller()
        if o['nlate']:
            a('s_branch L_wlate')
        a('s_waitcnt vmcnt(0)')
        a('s_branch L_tail')

        self.label('L_aux_ffn')
        a('s_and_b32 s56, s34, 15')
        a('s_mul_i32 s56, s56, 80')
        a('v_add_u32 v6, s56, v6')
        for t in range(2):
            a(f'ds_read_b128 v[{XB+4*t}:{XB+4*t+3}], v6 offset:{L_XN + 64*t}')
        a('v_mul_u32_u24 v52, 384, v50')
        a(f'v_add_u32 v52, {L_UF}, v52')
        a('v_add_u32 v52, v52, v51')
        a('v_lshrrev_b32 v53, 2, v4')
        a('v_mul_u32_u24 v53, 384, v53')
        a(f'v_add_u32 v53, {L_UF}, v53')
        a('v_add_u32 v53, v53, v51')
        a('v_cmp_le_u32 vcc, 1, v5')
        FACC = 64
        for k in range(48):
            a(f'v_mov_b32 v{FACC+k}, 0')
        a('s_waitcnt lgkmcnt(0)')
        for r in range(4):
            a(f'v_cndmask_b32 v{XB+4+r}, v{XB+4+r}, 0, vcc')
        if o['ffn_late']:
            a('s_barrier')
            if o['skipffn']:
                if not o['local1']:
                    a('s_add_u32 s36, s36, 1')
                self.tail_prep(aux=True)
                a('s_branch L_tail')
            ffn_dma()
        a('s_waitcnt vmcnt(0)')
        self.gemv_unit(W=24, XB=XB, ntile=12, nstep=2, lastvalid=1, addr=52, rowstride=384, tilebytes=32, acc=FACC)
        a('v_and_b32 v6, 1, v4')
        a('v_mul_u32_u24 v6, 192, v6')
        a('v_lshlrev_b32 v7, 4, v5')
        a('v_add_u32 v6, v6, v7')
        a('s_mul_i32 s56, s29, 49152')
        a('s_mul_i32 s57, s34, 384')
        a('s_add_u32 s56, s56, s57')
        a(f's_add_u32 s56, s56, {WS_E2}')
        if not o['local1']:
            a('s_add_u32 s36, s36, 1')
        a('s_nop 7')
        a('s_mov_b32 exec_lo, 0x00030003')
        a('s_mov_b32 exec_hi, 0x00030003')
        for tile in range(12):
            r = tile // 3
            if tile % 3 == 0 and tile:
                a('s_add_u32 s56, s56, 12288')
            a(f'buffer_store_dwordx4 v[{FACC+4*tile}:{FACC+4*tile+3}], v6, s[52:55], s56 offen offset:{64*(tile%3)} sc1')
        a('s_mov_b64 exec, -1')
        if not o['ffn_late']:
            a('s_barrier')
        a('s_waitcnt vmcnt(0)')
        a('v_mov_b32 v8, s36')
        a('v_mov_b32 v9, s37')
        a('s_lshl_b32 s56, s29, 8')
        a('s_lshl_b32 s57, s34, 3')
        a('s_add_u32 s57, s57, s56')
        a(f's_add_u32 s57, s57, {WS_E2F}')
        a(f's_add_u32 s56, s56, {WS_E2F}')
        a('v_mov_b32 v10, 0')
        a('s_mov_b64 exec, 1')
        a('buffer_store_dwordx2 v[8:9], v10, s[52:55], s57 offen sc1')
        a('s_mov_b64 exec, -1')
        a(f's_mov_b32 s80, {o["spin"]}')
        if o['fwait']:
            lab, go = self.newlab('L_fw'), self.newlab('L_fg')
            a('v_mov_b32 v12, 0')
            self.label(lab)
            a(f'ds_read_b32 v13, v12 offset:{L_FLAG+16}')
            a('s_waitcnt lgkmcnt(0)')
            a('v_readfirstlane_b32 s57, v13')
            a('s_cmp_ge_u32 s57, 1')
            a(f's_cbranch_scc1 {go}')
            a('s_sleep 8')
            a(f's_branch {lab}')
            self.label(go)
        if o['smem']:
            a('s_add_u32 s58, s26, s56')
            a('s_addc_u32 s59, s27, 0')
            for c4 in range(4):
                self.smem_poll(58, 8, o['fsleep'])
                if c4 < 3:
                    a('s_add_u32 s58, s58, 64')
                    a('s_addc_u32 s59, s59, 0')
        else:
            a('v_and_b32 v10, 31, v0')
            a('v_lshlrev_b32 v10, 3, v10')
            self.label('L_f_poll')
            a('buffer_load_dwordx2 v[14:15], v10, s[52:55], s56 offen sc1')
            a('s_waitcnt vmcnt(0)')
            self.poll_check([12], 'L_f_poll')
        a('v_and_b32 v10, 31, v0')
        a('v_min_u32 v11, 23, v10')
        a('v_lshlrev_b32 v11, 4, v11')
        a('v_lshrrev_b32 v12, 5, v0')
        a('v_mul_u32_u24 v12, 6144, v12')
        a('v_add_u32 v11, v11, v12')
        a('s_mul_i32 s56, s29, 49152')
        a('s_mul_i32 s57, s30, 12288')
        a('s_add_u32 s56, s56, s57')
        a(f's_add_u32 s56, s56, {WS_E2}')
        for i in range(16):
            a(f'buffer_load_dwordx4 v[{64+4*i}:{67+4*i}], v11, s[52:55], s56 offen offset:{384*(i%8)} sc1')
            if i == 7:
                a('s_add_u32 s56, s56, 3072')
        a('s_waitcnt vmcnt(0)')
        for i in range(1, 16):
            for r in range(4):
                a(f'v_add_f32 v{64+r}, v{64+r}, v{64+4*i+r}')
        a('v_cvt_pk_bf16_f32 v64, v64, v65')
        a('v_cvt_pk_bf16_f32 v65, v66, v67')
        a('v_mov_b32 v68, v64')
        a('v_mov_b32 v69, v65')
        a('s_nop 1')
        a('v_permlane32_swap_b32 v64, v68')
        a('v_permlane32_swap_b32 v65, v69')
        for p in range(2):
            g, u = 64 + p, 68 + p
            a(f'v_lshlrev_b32 v72, 16, v{g}')
            a(f'v_and_b32 v73, 0xffff0000, v{g}')
            for t in (72, 73):
                a(f'v_mul_f32 v74, {0xBFB8AA3B}, v{t}')
                a('v_exp_f32 v74, v74')
                a('s_nop 0')
                a('v_add_f32 v74, 1.0, v74')
                a('v_rcp_f32 v74, v74')
                a('s_nop 0')
                a(f'v_mul_f32 v{t}, v{t}, v74')
            a('v_cvt_pk_bf16_f32 v72, v72, v73')
            a('v_and_b32 v73, 0xffff0000, v72')
            a('v_lshlrev_b32 v72, 16, v72')
            a(f'v_and_b32 v75, 0xffff0000, v{u}')
            a(f'v_lshlrev_b32 v74, 16, v{u}')
            a('v_mul_f32 v72, v72, v74')
            a('v_mul_f32 v73, v73, v75')
            a(f'v_cvt_pk_bf16_f32 v{76+p}, v72, v73')
        a('v_cmp_le_u32 vcc, 12, v10')
        a('v_subrev_u32 v11, 12, v10')
        a('s_nop 0')
        a('v_cndmask_b32 v11, v10, v11, vcc')
        a('v_lshlrev_b32 v11, 3, v11')
        a('v_add_u32 v12, 128, v11')
        a('v_cndmask_b32 v11, v11, v12, vcc')
        a('v_subrev_u32 v12, 24, v10')
        a('v_lshrrev_b32 v13, 2, v12')
        a('v_lshlrev_b32 v13, 7, v13')
        a('v_and_b32 v12, 3, v12')
        a('v_lshl_add_u32 v12, v12, 3, v13')
        a('v_add_u32 v12, 96, v12')
        a('v_cmp_le_u32 vcc, 24, v10')
        a('s_nop 1')
        a('v_cndmask_b32 v11, v11, v12, vcc')
        a('v_cndmask_b32 v76, v76, 0, vcc')
        a('v_cndmask_b32 v77, v77, 0, vcc')
        a('s_mov_b32 exec_hi, 0')
        a(f'ds_write_b64 v11, v[76:77] offset:{L_HV}')
        a('s_mov_b64 exec, -1')
        a('s_waitcnt lgkmcnt(0)')
        self.stamp(4)
        self.tail_prep(aux=True)
        if o['nlate']:
            self.wb_setup()
            self.label('L_wlate')
            self.wb_late()
            a('s_waitcnt vmcnt(0)')
            a('s_branch L_bar3b')
        a('s_branch L_tail')

    def controller(self):
        o = self.opt; a = self.a
        skip = self.newlab('L_ct')
        a('s_cmp_lg_u32 s38, 2')
        a(f's_cbranch_scc1 {skip}')
        pat = {0: 0, 1: 0b000001, 2: 0b001001, 3: 0b010101, 4: 0b011011, 5: 0b011111, 6: 0b111111}
        parts = o['cpart']
        for j, px in enumerate(parts):
            a(f's_xor_b32 s56, s2, {px}')
            a('s_lshl_b32 s56, s56, 7')
            a(f's_add_u32 s56, s56, {WS_PR}')
            a(f's_add_u32 s{8+2*j}, s26, s56')
            a(f's_addc_u32 s{9+2*j}, s27, 0')
        a('s_lshl_b32 s63, s2, 7')
        a(f's_add_u32 s63, s63, {WS_PR}')
        for k, ck in enumerate(o['ctrl']):
            lab, go, done = self.newlab('L_cw'), self.newlab('L_cg'), self.newlab('L_cd')
            self.label(lab)
            a(f'ds_read_b32 v5, v240 offset:{L_FLAG+8}')
            a('s_waitcnt lgkmcnt(0)')
            a('v_readfirstlane_b32 s56, v5')
            a(f's_cmp_ge_u32 s56, {4*k + 2}')
            a(f's_cbranch_scc1 {go}')
            a('s_sleep 4')
            a(f's_branch {lab}')
            self.label(go)
            a('s_memrealtime s[60:61]')
            if k:
                for j in range(len(parts)):
                    a(f's_load_dwordx2 s[{16+2*j}:{17+2*j}], s[{8+2*j}:{9+2*j}], {8*(k-1)} glc')
            a('s_waitcnt lgkmcnt(0)')
            a('s_mov_b64 exec, 1')
            a('v_mov_b32 v6, s60')
            a('v_mov_b32 v7, s36')
            a(f'buffer_store_dwordx2 v[6:7], v240, s[52:55], s63 offen offset:{8*k} sc1')
            if k:
                a('s_mov_b32 s56, 0')
                a('s_sub_u32 s57, s93, s60')
                for j in range(len(parts)):
                    a(f's_sub_u32 s58, s93, s{16+2*j}')
                    a(f's_cmp_eq_u32 s{17+2*j}, s36')
                    a('s_cselect_b32 s58, s58, s57')
                    a('s_add_u32 s56, s56, s58')
                trem = (32 - ck) * 85
                kk = int(round(6 * o['WL'] * o['cgain'] / trem / len(parts) * 65536))
                a(f's_mul_i32 s56, s56, {kk}')
                a('s_add_u32 s56, s56, 32768')
                a('s_ashr_i32 s56, s56, 16')
                for lv in range(-o['cmin'], o['cmax'] + 1):
                    bits = pat[lv] if lv >= 0 else pat[-lv] << 8
                    a(f's_mov_b32 s57, {bits}')
                    if lv < o['cmax']:
                        a(f's_cmp_le_i32 s56, {lv}')
                        a(f's_cbranch_scc1 {done}')
                self.label(done)
                a('v_mov_b32 v5, s57')
                a(f'ds_write_b32 v240, v5 offset:{L_FLAG+12}')
            a('s_mov_b32 s93, s60')
            a('s_mov_b64 exec, -1')
        self.label(skip)

    def wb_setup(self):
        a = self.a
        for i in range(5):
            a(f'v_add_u32 v5, {64*i}, v0')
            a('v_mul_u32_u24 v6, 6554, v5')
            a('v_lshrrev_b32 v6, 16, v6')
            a('v_mul_u32_u24 v7, 10, v6')
            a('v_sub_u32 v5, v5, v7')
            a('v_mul_u32_u24 v6, 1280, v6')
            a('v_lshlrev_b32 v5, 4, v5')
            a(f'v_add_u32 v{40+i}, v5, v6')
        self.srd(48, 12, WO_BYTES)
        self.srd(88, 20, WD_BYTES)

    def wb_period(self, preg):
        o = self.opt; a = self.a
        a('s_mul_i32 s56, s35, 245760')
        a('s_mul_i32 s57, s31, 160')
        a('s_add_u32 s56, s56, s57')
        a(f's_mul_i32 s57, {preg}, 40960')
        a('s_add_u32 s56, s56, s57')
        a(f's_mul_i32 s57, {preg}, 5120')
        a(f's_add_u32 s57, s57, {L_WB}')
        for i in range(5):
            a('s_mov_b32 m0, s57')
            a('s_add_u32 s57, s57, 1024')
            a(f'buffer_load_dwordx4 v{40+i}, s[48:51], s56 offen {o["ntwb"]} lds')

    def wb_early(self):
        o = self.opt; a = self.a
        nearly = 6 - o['nlate']
        for t in range((nearly + 2) // 3):
            lab = self.newlab('L_we')
            a(f's_add_u32 s58, s38, {3*t}')
            a(f's_cmp_lt_u32 s58, {nearly}')
            a(f's_cbranch_scc0 {lab}')
            self.wb_period('s58')
            self.label(lab)
        a('s_mul_i32 s56, s35, 61440')
        a('s_mul_i32 s57, s31, 160')
        a('s_add_u32 s56, s56, s57')
        lab0, lab1, labd = self.newlab('L_wd'), self.newlab('L_wd'), self.newlab('L_wd')
        a('s_cmp_eq_u32 s38, 0'); a(f's_cbranch_scc1 {lab0}')
        a('s_cmp_eq_u32 s38, 1'); a(f's_cbranch_scc1 {lab1}')

        def dma(i):
            a(f's_mov_b32 m0, {L_WD + 1024*i}')
            a(f's_add_u32 s57, s56, {40960*(i//5)}')
            a(f'buffer_load_dwordx4 v{40+i%5}, s[88:91], s57 offen {o["ntwb"]} lds')
        dma(6); dma(7); a(f's_branch {labd}')
        self.label(lab0); dma(0); dma(1); dma(2); a(f's_branch {labd}')
        self.label(lab1); dma(3); dma(4); dma(5)
        self.label(labd)

    def wb_late(self):
        o = self.opt; a = self.a
        nlate = o['nlate']
        lab, labd0 = self.newlab('L_ww'), self.newlab('L_wv')
        self.label(lab)
        a(f'ds_read_b32 v5, v240 offset:{L_FLAG}')
        a('s_waitcnt lgkmcnt(0)')
        a('v_readfirstlane_b32 s56, v5')
        a(f's_cmp_ge_u32 s56, {o["wtrig"]}')
        a(f's_cbranch_scc1 {labd0}')
        a('s_sleep 2')
        a(f's_branch {lab}')
        self.label(labd0)
        self.stamp(11)
        for t in range((nlate + 3) // 4):
            lab = self.newlab('L_wl')
            a(f's_add_u32 s58, s38, {4*t}')
            a(f's_cmp_lt_u32 s58, {nlate}')
            a(f's_cbranch_scc0 {lab}')
            a(f's_add_u32 s58, s58, {6 - nlate}')
            self.wb_period('s58')
            self.label(lab)

    def tail_prep(self, aux):
        o = self.opt; a = self.a
        self.c('---- tail constants ----')
        a('v_mov_b32 v238, s36')
        a('v_mov_b32 v239, s37')
        a('v_mov_b32 v240, 0')
        a('v_mov_b32 v241, 1')
        a('s_lshl_b32 s64, s28, 6')
        a('v_add_u32 v225, s64, v0')
        a('v_mov_b32 v224, 96')
        a('v_cmp_eq_u32 vcc, v224, v225')
        a('s_mov_b64 s[74:75], vcc')
        a('v_cmp_ge_u32 vcc, v224, v225')
        a('s_mov_b64 s[72:73], vcc')
        a('v_min_u32 v224, 95, v225')
        a('v_lshlrev_b32 v224, 3, v224')
        a('v_lshlrev_b32 v225, 4, v225')
        a('s_lshl_b32 s64, s35, 3')
        a('s_add_u32 s64, s64, s31')
        a('s_lshl_b32 s64, s64, 11')
        a(f's_add_u32 s64, s64, {WS_E3}')
        a('s_sub_u32 s65, s28, 2')
        a('s_cmp_ge_i32 s65, 3')
        a('s_cselect_b32 s66, 1, 0')
        a('s_mul_i32 s67, s66, 3')
        a('s_sub_u32 s67, s65, s67')
        a('v_lshrrev_b32 v227, 5, v0')
        a('v_lshlrev_b32 v227, 11, v227')
        a('v_and_b32 v228, 31, v0')
        a('s_lshl_b32 s68, s67, 5')
        a('v_add_u32 v226, s68, v228')
        a('v_lshl_add_u32 v226, v226, 4, v227')
        a('v_add_u32 v227, 1536, v227')
        a('s_mul_i32 s68, s66, 384')
        a('s_lshl_b32 s69, s67, 7')
        a('s_add_u32 s68, s68, s69')
        a(f's_add_u32 s68, s68, {L_ON}')
        a('v_lshl_add_u32 v228, v228, 2, s68')
        a('s_lshl_b32 s65, s35, 3')
        a('s_lshl_b32 s66, s66, 2')
        a('s_add_u32 s65, s65, s66')
        a('s_lshl_b32 s65, s65, 11')
        a(f's_add_u32 s65, s65, {WS_E3}')
        a('s_add_u32 s66, s65, 4096')
        a('v_and_b32 v234, 15, v0')
        a('v_lshrrev_b32 v235, 4, v0')
        a('v_and_b32 v236, 1, v0')
        a('v_lshlrev_b32 v237, 4, v235')
        a('v_mul_u32_u24 v229, 384, v236')
        a('v_add_u32 v229, v229, v237')
        a(f'v_add_u32 v229, {L_ON}, v229')
        a('v_lshlrev_b32 v230, 7, v236')
        a('v_add_u32 v230, v230, v237')
        a(f'v_add_u32 v230, {L_HV}, v230')
        a('v_lshlrev_b32 v231, 3, v235')
        a('v_lshrrev_b32 v232, 2, v234')
        a('v_add_u32 v231, v231, v232')
        a('v_mul_u32_u24 v231, 160, v231')
        a('v_and_b32 v232, 3, v234')
        a('v_lshlrev_b32 v232, 3, v232')
        a('s_lshl_b32 s67, s28, 5')
        a('v_add3_u32 v231, v231, v232, s67')
        a(f'v_add_u32 v231, {L_WB}, v231')
        a('v_cmp_le_u32 vcc, 2, v235')
        a('v_subrev_u32 v232, 2560, v231')
        a('s_nop 0')
        a('v_cndmask_b32 v232, v231, v232, vcc')
        a('v_and_b32 v233, 1, v235')
        a('v_mul_u32_u24 v233, 40960, v233')
        if o['r160']:
            a('v_lshrrev_b32 v237, 3, v234')
            a('v_lshl_add_u32 v233, v237, 12, v233')
            a('v_and_b32 v237, 7, v234')
            a('v_lshl_add_u32 v233, v237, 4, v233')
        else:
            a('v_lshl_add_u32 v233, v234, 4, v233')
        a('v_and_b32 v237, 16, v0')
        a('v_cmp_eq_u32 vcc, 16, v237')
        a('s_mov_b64 s[76:77], vcc')
        a('s_mul_i32 s67, s31, 10')
        a('s_add_u32 s67, s67, s28')
        a('s_lshl_b32 s67, s67, 13')
        a(f's_lshl_b32 s68, s35, {7 if o["r160"] else 8}')
        a('s_add_u32 s67, s67, s68')
        a(f's_add_u32 s67, s67, {WS_E4}')
        if aux:
            if o['r160']:
                a('s_lshl_b32 s71, s30, 3')
                a('s_add_u32 s71, s71, s29')
                a('s_lshr_b32 s69, s29, 1')
                a('s_add_u32 s69, s69, 16')
                a('s_bitcmp1_b32 s29, 0')
                a('s_cselect_b32 s69, 99, s69')
                a('s_cmp_eq_u32 s30, 2')
                a('s_cselect_b32 s71, s69, s71')
                a('s_cmp_eq_u32 s30, 3')
                a('s_cselect_b32 s71, 99, s71')
                a('s_cmp_ge_u32 s71, 10')
                a('s_cselect_b32 s69, 1, 0')
                a('s_mul_i32 s70, s69, 10')
                a('s_sub_u32 s70, s71, s70')
                a('s_lshl_b32 s68, s31, 1')
                a('s_add_u32 s68, s68, s69')
                a('s_mul_i32 s68, s68, 10')
                a('s_add_u32 s68, s68, s70')
                a('s_lshl_b32 s68, s68, 12')
                a(f's_add_u32 s68, s68, {WS_E4}')
                a('s_mul_i32 s69, s69, 1280')
                a('s_mul_i32 s81, s31, 160')
                a('s_add_u32 s69, s69, s81')
                a('s_lshl_b32 s70, s70, 4')
                a('s_add_u32 s70, s69, s70')
                a('v_and_b32 v234, 7, v0')
            else:
                a('s_mov_b32 s71, s35')
                a('s_cmp_ge_u32 s35, 5')
                a('s_cselect_b32 s69, 1, 0')
                a('s_mul_i32 s70, s69, 5')
                a('s_sub_u32 s70, s35, s70')
                a('s_lshl_b32 s68, s31, 1')
                a('s_add_u32 s68, s68, s69')
                a('s_mul_i32 s68, s68, 5')
                a('s_add_u32 s68, s68, s70')
                a('s_lshl_b32 s68, s68, 13')
                a(f's_add_u32 s68, s68, {WS_E4}')
                a('s_mul_i32 s69, s69, 1280')
                a('s_mul_i32 s81, s31, 160')
                a('s_add_u32 s69, s69, s81')
                a('s_lshl_b32 s70, s70, 5')
                a('s_add_u32 s70, s69, s70')
            a('s_add_u32 s69, s68, 4096')
            self.srd(40, 4, X_BYTES)
            self.srd(44, 22, X_BYTES)
            a('v_lshlrev_b32 v235, 1, v234')
            a('v_lshlrev_b32 v234, 4, v0')
            a('buffer_load_ushort v236, v235, s[40:43], s70 offen')
            a('s_waitcnt vmcnt(0)')
            a('v_lshlrev_b32 v236, 16, v236')
        a(f's_mov_b32 s80, {o["spin"]}')
        a(f's_mov_b32 s62, {LOG2E}')

    def gemv_pre(self):
        a = self.a
        for t in range(2):
            a(f'ds_read_b128 v[{40+4*t}:{43+4*t}], v230 offset:{64*t}')
        a(f'ds_read_b64_tr_b16 v[72:73], v231 offset:{L_WD - L_WB}')
        a(f'ds_read_b64_tr_b16 v[74:75], v231 offset:{L_WD - L_WB + 640}')
        a(f'ds_read_b64_tr_b16 v[76:77], v232 offset:{L_WD - L_WB + 5120}')
        a(f'ds_read_b64_tr_b16 v[78:79], v232 offset:{L_WD - L_WB + 5120 + 640}')
        for t in range(6):
            a(f'ds_read_b64_tr_b16 v[{48+4*t}:{49+4*t}], v231 offset:{5120*t}')
            a(f'ds_read_b64_tr_b16 v[{50+4*t}:{51+4*t}], v231 offset:{5120*t + 640}')
        for k in (4, 5, 6, 7, 0, 1, 2, 3):
            a(f'v_mov_b32 v{80+k}, 0')
        a('s_waitcnt lgkmcnt(12)')
        for t in range(2):
            a(f'v_mfma_f32_16x16x32_bf16 v[84:87], v[{40+4*t}:{43+4*t}], v[{72+4*t}:{75+4*t}], v[84:87]')
        a('s_waitcnt lgkmcnt(0)')

    def tail(self):
        o = self.opt; a = self.a
        self.c('==== tail (all waves) ====')
        if o['noaux']:
            a('s_barrier'); a('s_barrier'); a('s_branch L_end')
        if not o['nlate']:
            a('s_barrier')
            self.stamp(5)
            a('s_cmp_ge_u32 s28, 2')
            a('s_cbranch_scc1 L_gather')
        else:
            a('s_cmp_ge_u32 s28, 2')
            a('s_cbranch_scc1 L_bar3b')
            self.label('L_pw')
            a(f'ds_read_b32 v8, v240 offset:{L_FLAG+4}')
            a('s_waitcnt lgkmcnt(0)')
            a('v_readfirstlane_b32 s56, v8')
            a('s_cmp_ge_u32 s56, 4')
            a('s_cbranch_scc0 L_pw')
            self.stamp(5)
        a(f'ds_read_b128 v[24:27], v240 offset:{L_ML}')
        a(f'ds_read_b128 v[28:31], v240 offset:{L_ML+16}')
        for cidx in range(8):
            a(f'ds_read_b64 v[{8+2*cidx}:{9+2*cidx}], v224 offset:{L_OL + 768*cidx}')
        a('s_waitcnt lgkmcnt(8)')
        a('v_max3_f32 v32, v24, v25, v26')
        a('v_max_f32 v32, v32, v27')
        for w in range(4):
            a(f'v_sub_f32 v{24+w}, v{24+w}, v32')
        for w in range(4):
            a(f'v_mul_f32 v{24+w}, s62, v{24+w}')
        for w in range(4):
            a(f'v_exp_f32 v{24+w}, v{24+w}')
        a('s_waitcnt lgkmcnt(0)')
        for w in range(4):
            a(f'v_add_f32 v{8+4*w}, v{8+4*w}, v{10+4*w}')
            a(f'v_add_f32 v{9+4*w}, v{9+4*w}, v{11+4*w}')
        a('v_mul_f32 v33, v24, v28')
        a('v_mul_f32 v236, v24, v8')
        a('v_mul_f32 v237, v24, v9')
        for w in range(1, 4):
            a(f'v_fmac_f32 v33, v{24+w}, v{28+w}')
            a(f'v_fmac_f32 v236, v{24+w}, v{8+4*w}')
            a(f'v_fmac_f32 v237, v{24+w}, v{9+4*w}')
        a('v_cndmask_b32 v236, v236, v32, s[74:75]')
        a('v_cndmask_b32 v237, v237, v33, s[74:75]')
        a('s_mov_b64 exec, s[72:73]')
        if o['local']:
            l1, l2 = self.newlab('L_pl'), self.newlab('L_pl')
            a('s_cmp_eq_u32 s87, 1')
            a(f's_cbranch_scc1 {l1}')
            a('buffer_store_dwordx4 v[236:239], v225, s[52:55], s64 offen sc1')
            a(f's_branch {l2}')
            self.label(l1)
            a('buffer_store_dwordx4 v[236:239], v225, s[52:55], s64 offen')
            self.label(l2)
        else:
            a('buffer_store_dwordx4 v[236:239], v225, s[52:55], s64 offen sc1')
        a('s_mov_b64 exec, -1')
        self.stamp(6)
        if o['nlate']:
            a('s_barrier')
            self.stamp(10)
        self.gemv_pre()
        a('s_branch L_bar4')
        self.label('L_gather')

        def o_loads():
            a('buffer_load_dwordx4 v[8:11], v226, s[52:55], s65 offen sc1')
            a('buffer_load_dwordx4 v[12:15], v226, s[52:55], s66 offen sc1')
            a('buffer_load_dwordx4 v[16:19], v227, s[52:55], s65 offen sc1')
            a('buffer_load_dwordx4 v[20:23], v227, s[52:55], s66 offen sc1')
        if o['nlate']:
            self.label('L_bar3b')
            a('s_barrier')
        o_loads()
        a('s_cmp_ge_u32 s28, 5')
        a('s_cbranch_scc1 L_o_wait')
        self.gemv_pre()
        a('s_branch L_o_wait')
        self.label('L_o_poll')
        o_loads()
        self.label('L_o_wait')
        a('s_waitcnt vmcnt(0)')
        self.poll_check([8, 12, 16, 20], 'L_o_poll', sleep=o['tsleep'])
        self.stamp(6)
        a('v_max_f32 v24, v16, v20')
        self.swap_reduce('v_max_f32', 24, 25, 32)
        a('v_sub_f32 v16, v16, v24')
        a('v_sub_f32 v20, v20, v24')
        a('v_mul_f32 v16, s62, v16')
        a('v_mul_f32 v20, s62, v20')
        a('v_exp_f32 v16, v16')
        a('v_exp_f32 v20, v20')
        a('s_nop 0')
        a('v_mul_f32 v26, v16, v17')
        a('v_mul_f32 v27, v16, v8')
        a('v_mul_f32 v28, v16, v9')
        a('v_fmac_f32 v26, v20, v21')
        a('v_fmac_f32 v27, v20, v12')
        a('v_fmac_f32 v28, v20, v13')
        a('v_mov_b32 v29, v26')
        a('v_mov_b32 v30, v27')
        a('v_mov_b32 v31, v28')
        a('s_nop 0')
        a('v_permlane32_swap_b32 v26, v29')
        a('v_permlane32_swap_b32 v27, v30')
        a('v_permlane32_swap_b32 v28, v31')
        a('v_add_f32 v26, v26, v29')
        a('v_add_f32 v27, v27, v30')
        a('v_add_f32 v28, v28, v31')
        a('v_rcp_f32 v26, v26')
        a('s_nop 0')
        a('v_mul_f32 v27, v27, v26')
        a('v_mul_f32 v28, v28, v26')
        a('v_cvt_pk_bf16_f32 v27, v27, v28')
        a('ds_write_b32 v228, v27')
        if o['dbg']:
            a('s_lshl_b32 s60, s2, 10'); a(f's_add_u32 s60, s60, {WS_DBG + 0x40000 - L_ON}')
            a('buffer_store_dword v27, v228, s[52:55], s60 offen')
        a('s_waitcnt lgkmcnt(0)')
        self.label('L_bar4')
        a('s_barrier')
        self.stamp(7)
        a('s_cmp_ge_u32 s28, 5')
        a('s_cbranch_scc1 L_reduce')
        for t in range(6):
            a(f'ds_read_b128 v[{16+4*t}:{19+4*t}], v229 offset:{64*t}')
        for t in range(6):
            a(f's_waitcnt lgkmcnt({5-t})')
            a(f'v_mfma_f32_16x16x32_bf16 v[80:83], v[{16+4*t}:{19+4*t}], v[{48+4*t}:{51+4*t}], v[80:83]')
        a('v_cndmask_b32 v237, v84, v85, s[76:77]')
        a('s_mov_b32 exec_hi, 0')
        a('s_nop 5')
        a('v_cndmask_b32 v236, v80, v81, s[76:77]')
        a(f'buffer_store_dwordx4 v[236:239], v233, s[52:55], s67 offen {o["e4st"]}')
        self.stamp(8)
        a('s_branch L_end')
        self.label('L_reduce')
        a('s_cmp_lg_u32 s28, 5')
        a('s_cbranch_scc1 L_end')
        nred = 20 if o['r160'] else 10
        nld = 4 if o['r160'] else 8
        a(f's_cmp_ge_u32 s71, {nred}')
        a('s_cbranch_scc1 L_end')
        self.label('L_r_poll')
        for i in range(nld):
            so = 's68' if i < 4 else 's69'
            a(f'buffer_load_dwordx4 v[{8+4*i}:{11+4*i}], v234, s[52:55], {so} offen offset:{1024*(i%4)} {o["e4ld"]}')
        a('s_waitcnt vmcnt(0)')
        self.poll_check([8 + 4 * i for i in range(nld)], 'L_r_poll', sleep=o['rsleep'])
        self.stamp(10)
        for i in range(1, nld):
            a(f'v_add_f32 v8, v8, v{8+4*i}')
            a(f'v_add_f32 v9, v9, v{9+4*i}')
        if o['r160']:
            a('s_nop 0')
            self.dpp('v_add_f32', 8, 8, 8, 'row_ror:8')
            self.dpp('v_add_f32', 9, 9, 9, 'row_ror:8')
        for which in (16, 32):
            a('v_mov_b32 v10, v8')
            a('v_mov_b32 v11, v9')
            a('s_nop 0')
            a(f'v_permlane{which}_swap_b32 v8, v10')
            a(f'v_permlane{which}_swap_b32 v9, v11')
            a('v_add_f32 v8, v8, v10')
            a('v_add_f32 v9, v9, v11')
        a('v_cvt_pk_bf16_f32 v8, v8, v9')
        a('v_lshlrev_b32 v9, 16, v8')
        a('v_add_f32 v9, v236, v9')
        a('v_cvt_pk_bf16_f32 v9, v9, v9')
        a('v_lshlrev_b32 v9, 16, v9')
        a('v_and_b32 v8, 0xffff0000, v8')
        a('v_add_f32 v9, v9, v8')
        a('v_cvt_pk_bf16_f32 v9, v9, v9')
        a(f's_mov_b64 exec, {0xff if o["r160"] else 0xffff}')
        a('buffer_store_short v9, v235, s[44:47], s70 offen')
        self.stamp(9)
        a('s_cmp_lg_u32 s35, 0'); a('s_cbranch_scc1 L_end')
        a('s_cmp_lg_u32 s31, 0'); a('s_cbranch_scc1 L_end')
        a('s_mov_b64 exec, 1')
        a(f'buffer_store_dwordx2 v[238:239], v240, s[52:55], 0 offen offset:{WS_EPOCH} sc1')


if __name__ == '__main__':
    opts = {}
    for arg in sys.argv[2:]:
        k, v = arg.split('=')
        try:
            v = eval(v)
        except Exception:
            pass
        opts[k] = v
    src = Gen(**opts).build()
    open(sys.argv[1], 'w').write(src)
    print('wrote', sys.argv[1], len(src), 'bytes')
```

```python
import sys

NAME = 'parallel_sum__mha_block_cached__swiglu_ffn__decode_kernel'

D = 640; H = 32; SK = 4096; DH = 192; F = 1536
K_BYTES = 2 * H * SK * DH * 2
WQ_BYTES = D * H * DH * 2
WO_BYTES = H * DH * D * 2
WG_BYTES = D * F * 2
WD_BYTES = F * D * 2
X_BYTES = 2 * D * 2

WS_EPOCH = 0
WS_E1 = 0x10000
WS_F1 = 0xD8000
WS_F0 = 0xDE000
WS_E2F = 0xD0000
WS_E2 = 0xE0000
WS_E3 = 0x140000
WS_E4 = 0x1C0000
WS_USED = 0x260000
WS_PR = 0x270000
WS_DBG = 0x300000
WS_SRD_BYTES = 0x800000

L_XN = 0
L_Q = 2560
L_HV = 2944
L_ON = 3200
L_ML = 3968
L_FLAG = 4032
L_OL = 4096
L_UQ = 10240
L_UF = 40960
L_WB = 56320
L_WD = 87040
LDS_BYTES = 95232

LOG2E = 0x3FB8AA3B
SCALE = 0x3D93CD3A
INV640 = 0x3ACCCCCD
EPS_BF = 0x37280000


class Gen:
    def __init__(self, **opt):
        self.L = []
        self.opt = dict(NP=4, WL=5, gran=1, ntk='nt', ntv='nt', ntw='nt', dbg=False, spin=1 << 16, stamps=False, dbgtime=False, noaux=False, sent=True, psleep=4, ffn_late=True, skipffn=False, skipw=False, smem=True, fsleep=16, tsleep=0, wend=8, wendn=4, whalf=False, nlate=6, wtrig=4, wearly=0, ntwb='', prog=False, ctrl=None, cgain=1, catom='noret', fwait=10, cpart=[1,2,4,7], cmax=3, cmin=3, cstep=1, rot=None, inter=0, local=True, rsleep=0, e4ld='sc1', e4st='sc1', e3ld='sc1', r160=True, local1=False, l1try=8, hintfl='sc1', b2at=None, b1late=4, nob1=False, wpat=None, pp=0, ppst=2, prepn=12, tlbw=0, ibs=0)
        self.opt.update(opt)
        self.lab = 0
        self.ool = []

    def a(self, s):
        self.L.append('  ' + s)

    def label(self, s):
        self.L.append(s + ':')

    def newlab(self, p='L'):
        self.lab += 1
        return f'{p}_{self.lab}'

    def c(self, s):
        self.L.append('  ; ' + s)

    def srd(self, r, base, nbytes):
        self.a(f's_mov_b32 s{r}, s{base}')
        self.a(f's_and_b32 s{r+1}, s{base+1}, 0xffff')
        self.a(f's_mov_b32 s{r+2}, {nbytes}')
        self.a(f's_mov_b32 s{r+3}, 0x20000')

    def dpp(self, op, dst, src0, src1, ctrl):
        self.a(f'{op}_dpp v{dst}, v{src0}, v{src1} {ctrl} row_mask:0xf bank_mask:0xf')

    def swap_reduce(self, op, v, t, which):
        self.a(f'v_mov_b32 v{t}, v{v}')
        self.a('s_nop 1')
        self.a(f'v_permlane{which}_swap_b32 v{v}, v{t}')
        self.a(f'{op} v{v}, v{v}, v{t}')

    def stamp(self, idx):
        if not self.opt['stamps']:
            return
        self.a('s_memrealtime s[94:95]')
        self.a('s_waitcnt lgkmcnt(0)')
        self.a(f'v_writelane_b32 v249, s94, {idx}')

    def stamp_dump(self):
        if not self.opt['stamps']:
            return
        a = self.a
        a('s_mov_b64 exec, 0xffff')
        a('s_lshl_b32 s92, s2, 3')
        a('s_add_u32 s92, s92, s28')
        a('s_lshl_b32 s92, s92, 6')
        a(f's_add_u32 s92, s92, {WS_DBG}')
        a('v_lshlrev_b32 v251, 2, v0')
        a(f'buffer_store_dword v249, v251, s[52:55], s92 offen')

    def tmark(self, i):
        if self.opt['dbgtime']:
            self.a(f's_memrealtime s[{84+2*i}:{85+2*i}]')
            self.a('s_waitcnt lgkmcnt(0)')

    def smem_poll(self, base, ntags, sleep, lo_only=False):
        a = self.a
        again, done = self.newlab('L_sp'), self.newlab('L_sd')
        miss = self.newlab('L_sm')
        self.label(again)
        a(f's_load_dwordx16 s[64:79], s[{base}:{base+1}], 0 glc')
        a('s_waitcnt lgkmcnt(0)')
        for t in range(ntags):
            if lo_only:
                a(f's_cmp_eq_u32 s{64+2*t}, s36')
            else:
                a(f's_cmp_eq_u64 s[{64+2*t}:{65+2*t}], s[36:37]')
            a(f's_cbranch_scc0 {miss}')
        a(f's_branch {done}')
        self.label(miss)
        a('s_sub_u32 s80, s80, 1')
        a('s_cmp_eq_u32 s80, 0')
        a(f's_cbranch_scc1 {done}')
        a(f's_sleep {sleep}')
        a(f's_branch {again}')
        self.label(done)

    def pp_poll(self, loads, A, B, C, n, keep, stagger):
        a = self.a
        loop, doneA, doneB = self.newlab('L_pp'), self.newlab('L_pa'), self.newlab('L_pb')

        def bad(base):
            for i in range(n):
                r = base + 4 * i
                a(f'v_cmp_ne_u64 vcc, s[36:37], v[{r+2}:{r+3}]')
                a('s_mov_b64 s[82:83], vcc' if i == 0 else 's_or_b64 s[82:83], s[82:83], vcc')
            a('s_cmp_eq_u64 s[82:83], 0')
        a(f's_sleep {stagger}')
        loads(B)
        self.label(loop)
        a(f's_waitcnt vmcnt({n})')
        bad(A)
        a(f's_cbranch_scc1 {doneA}')
        loads(A)
        a(f's_waitcnt vmcnt({n})')
        bad(B)
        a(f's_cbranch_scc1 {doneB}')
        loads(B)
        a('s_sub_u32 s80, s80, 1')
        a('s_cmp_lg_u32 s80, 0')
        a(f's_cbranch_scc1 {loop}')
        a('s_waitcnt vmcnt(0)')
        a(f's_branch {doneA}')
        self.label(doneB)
        for k in keep:
            a(f'v_mov_b32 v{C+k}, v{B+k}')
        fin = self.newlab('L_pf')
        a(f's_branch {fin}')
        self.label(doneA)
        for k in keep:
            a(f'v_mov_b32 v{C+k}, v{A+k}')
        self.label(fin)

    def poll_check(self, regs, again, cnt='s80', sleep=1):
        first = True
        for r in regs:
            self.a(f'v_cmp_ne_u64 vcc, s[36:37], v[{r+2}:{r+3}]')
            if first:
                self.a('s_mov_b64 s[82:83], vcc')
                first = False
            else:
                self.a('s_or_b64 s[82:83], s[82:83], vcc')
        done = self.newlab('L_pd')
        self.a('s_cmp_eq_u64 s[82:83], 0')
        self.a(f's_cbranch_scc1 {done}')
        self.a(f's_sub_u32 {cnt}, {cnt}, 1')
        self.a(f's_cmp_eq_u32 {cnt}, 0')
        self.a(f's_cbranch_scc1 {done}')
        if sleep:
            self.a(f's_sleep {sleep}')
        self.a(f's_branch {again}')
        self.label(done)

    def build(self):
        o = self.opt
        NP = o['NP']
        a = self.a
        doc = """
;
; (1024 keys).  The eight workgroups of a head have equal w % 8 (one XCD under round-robin dispatch: speed only).
;
;
; Hand-offs between workgroups go through d_ws as 16-byte granules {data, data, tag64}; the tag is the epoch word in
"""
        head = [l for l in doc.strip('\n').split('\n')] + [
                f'; @launch grid=(256,1,1) block=(512,1,1) lds={LDS_BYTES}',
                '.amdgcn_target "amdgcn-amd-amdhsa--gfx950"', '.text', f'.globl {NAME}', '.p2align 8',
                f'.type {NAME},@function', f'{NAME}:']
        a('s_cmp_ge_u32 s2, 256')
        a('s_cbranch_scc1 L_exit')
        if o['stamps']:
            a('v_mov_b32 v249, 0')
        a('s_load_dwordx16 s[4:19], s[0:1], 0')
        a('s_load_dwordx8 s[20:27], s[0:1], 64')
        a('v_lshrrev_b32 v1, 6, v0')
        a('v_and_b32 v0, 63, v0')
        a('s_and_b32 s29, s2, 7')
        a('v_readfirstlane_b32 s28, v1')
        a('s_lshr_b32 s34, s2, 3')
        a('s_lshr_b32 s30, s34, 3')
        a('s_and_b32 s31, s34, 7')
        a('s_lshl_b32 s35, s29, 2')
        a('s_add_u32 s35, s35, s30')
        a('s_lshr_b32 s32, s31, 2')
        a('s_and_b32 s33, s31, 3')
        a('s_waitcnt lgkmcnt(0)')
        a(f's_load_dwordx2 s[36:37], s[26:27], {WS_EPOCH}')
        self.srd(52, 26, WS_SRD_BYTES)
        self.stamp(0)
        self.tmark(0)
        a('s_cmp_ge_u32 s28, 4')
        a('s_cbranch_scc1 L_aux')
        self.stream()
        self.L += self.ool
        self.label('L_aux')
        self.aux()
        self.label('L_tail')
        self.tail()
        self.label('L_end')
        self.stamp_dump()
        self.label('L_exit')
        a('s_endpgm')
        nv = 256
        foot = ['.section .rodata,"a"', '.p2align 6', f'.amdhsa_kernel {NAME}',
                f'  .amdhsa_next_free_vgpr {nv}', '  .amdhsa_next_free_sgpr 96', f'  .amdhsa_accum_offset {nv}',
                '  .amdhsa_group_segment_fixed_size 0', '  .amdhsa_kernarg_size 96',
                '  .amdhsa_user_sgpr_count 2', '  .amdhsa_user_sgpr_kernarg_segment_ptr 1',
                '  .amdhsa_system_sgpr_workgroup_id_x 1', '  .amdhsa_float_denorm_mode_32 3',
                '.end_amdhsa_kernel']
        return '\n'.join(head + self.L + foot) + '\n'

    def stream(self):
        o = self.opt; a = self.a
        NP = o['NP']
        VOFF = 1
        M = 2
        Q = 8
        ACC = 20
        S = 32
        T = 48
        RB = 72
        assert RB + 24 * NP <= 250
        self.c('==== stream waves ====')
        self.srd(40, 6, K_BYTES)
        a('s_lshl_b32 s56, s32, 5')
        a('s_add_u32 s56, s56, s35')
        a('s_lshl_b32 s56, s56, 12')
        a('s_lshl_b32 s57, s33, 10')
        a('s_add_u32 s56, s56, s57')
        if o['inter'] == 0:
            a('s_lshl_b32 s57, s28, 8')
        elif o['inter'] == 1:
            a('s_lshl_b32 s57, s28, 4')
        else:
            a('s_lshl_b32 s57, s28, 5')
        a('s_add_u32 s56, s56, s57')
        a('s_mul_i32 s58, s56, 384')
        a(f'v_lshrrev_b32 v{T}, 3, v0')
        a(f'v_mul_u32_u24 v{T}, 384, v{T}')
        a(f'v_and_b32 v{T+1}, 7, v0')
        a(f'v_lshlrev_b32 v{T+2}, 4, v{T+1}')
        a(f'v_add_u32 v{VOFF}, v{T}, v{T+2}')
        if o['rot']:
            ra, rb = o['rot']
            a(f's_mul_i32 s57, s2, {ra}')
            a(f's_mul_i32 s59, s28, {rb}')
            a('s_add_u32 s57, s57, s59')
            a('s_and_b32 s57, s57, 15')
            a('s_mul_i32 s57, s57, 6144')
            a('s_add_u32 s86, s58, 98304')
            a('s_add_u32 s58, s58, s57')
        a('s_mov_b32 s59, s58')
        if not o['b1late'] and not o['nob1']:
            a('s_barrier')

        def late_setup():
            self.srd(44, 8, K_BYTES)
            a(f'v_lshrrev_b32 v243, 5, v0')
            a(f's_lshl_b32 s63, s28, 1')
            a(f'v_add_u32 v243, s63, v243')
            a(f'v_mul_u32_u24 v243, 768, v243')
            a(f'v_and_b32 v{T+1}, 7, v0')
            a(f'v_lshlrev_b32 v{T+1}, 5, v{T+1}')
            a(f'v_and_b32 v{T+2}, 16, v0')
            a(f'v_add3_u32 v243, v243, v{T+1}, v{T+2}')
            a(f's_lshl_b32 s63, s28, 2')
            a(f'v_mov_b32 v244, s63')
            a(f'v_and_b32 v{T+1}, 7, v0')
            a(f'v_and_b32 v{T+2}, 1, v0')
            a(f'v_mov_b32 v{T+3}, 0xffff')
            a(f'v_mov_b32 v{T+4}, 0xffff0000')
            a(f'v_cmp_eq_u32 vcc, 1, v{T+2}')
            a(f'v_lshrrev_b32 v{T+1}, 1, v{T+1}')
            a('s_nop 0')
            a(f'v_cndmask_b32 v{T+3}, v{T+3}, v{T+4}, vcc')
            for r in range(4):
                a(f'v_cmp_eq_u32 vcc, {r}, v{T+1}')
                a('s_nop 1')
                a(f'v_cndmask_b32 v{M+r}, 0, v{T+3}, vcc')
            for i in range(12):
                a(f'v_mov_b32 v{ACC+i}, 0')

        seq = [('K', p) for p in range(16)] + [('V', p) for p in range(16)]

        def issue(idx):
            if idx >= len(seq):
                return []
            kind, p = seq[idx]
            srd = 40 if kind == 'K' else 44
            nt = o['ntk'] if kind == 'K' else o['ntv']
            R = RB + 24 * (idx % NP)
            out = []
            if kind == 'V' and p == 0:
                out.append('s_mov_b32 s59, s58')
            for g in range(2):
                if o['WL'] and o['gran'] == 3 and not (idx * 6 + 3 * g + 3 <= o['WL']):
                    out.append(f's_waitcnt vmcnt({o["WL"] - 3})')
                for i in range(3):
                    wl = o['WL']
                    if o['wend'] and idx >= 32 - o['wendn']:
                        wl = o['wend']
                    if o['whalf'] and (3 * g + i) % 2 == 1:
                        wl += 1
                    if o['wpat']:
                        w6 = [w for (st, w) in o['wpat'] if idx >= st][-1]
                        base, frac = divmod(w6, 6)
                        pat = {0: [], 1: [0], 2: [0, 3], 3: [0, 2, 4], 4: [0, 1, 3, 4], 5: [0, 1, 2, 3, 4]}[frac]
                        wl = base + (1 if (3 * g + i) in pat else 0)
                    adaptive = ((o['ctrl'] and idx - NP > o['ctrl'][1]) or (o['ibs'] and idx >= NP + 2)) and not (o['wend'] and idx >= 32 - o['wendn'])
                    r = R + 12 * g + 4 * i
                    ld = f'buffer_load_dwordx4 v[{r}:{r+3}], v{VOFF}, s[{srd}:{srd+3}], s59 offen offset:{3072*g+128*i} {nt}'
                    if adaptive:
                        n = 3 * g + i
                        lf, ls, lb = self.newlab('L_cf'), self.newlab('L_cs'), self.newlab('L_cb')
                        out.append(f's_bitcmp1_b32 s81, {n}')
                        out.append(f's_cbranch_scc1 {lf}')
                        out.append(f's_bitcmp1_b32 s81, {8 + n}')
                        out.append(f's_cbranch_scc1 {ls}')
                        out.append(f's_waitcnt vmcnt({wl - 1})')
                        out.append(ld)
                        out.append(('L', lb))
                        self.ool += [f'{lf}:', f'  s_waitcnt vmcnt({wl - 1 + o["cstep"]})', '  ' + ld, f'  s_branch {lb}',
                                     f'{ls}:', f'  s_waitcnt vmcnt({wl - 2})', '  ' + ld, f'  s_branch {lb}']
                        continue
                    if o['WL'] and o['gran'] == 1 and not (idx * 6 + 3 * g + i + 1 <= wl):
                        out.append(f's_waitcnt vmcnt({wl - 1})')
                    out.append(ld)
            if o['inter'] == 0:
                out.append('s_add_u32 s59, s59, 6144')
            elif o['inter'] == 1:
                out.append('s_add_u32 s59, s59, 24576')
            else:
                out.append(f's_add_u32 s59, s59, {6144 if p % 2 == 0 else 6144 + 3 * 12288}')
            if o['rot']:
                out.append('s_cmp_ge_u32 s59, s86')
                out.append('s_cselect_b32 s57, 98304, 0')
                out.append('s_sub_u32 s59, s59, s57')
            return out

        def emit(lst):
            for ins in lst:
                if isinstance(ins, tuple):
                    self.label(ins[1])
                else:
                    a(ins)

        def mode_read(idx):
            if o['ctrl'] and idx > o['ctrl'][1] and idx + NP < 32:
                a(f'ds_read_b32 v242, v240 offset:{L_FLAG+12}')

        def mode_get(idx):
            if o['ibs'] and idx + NP < 32:
                a('s_getreg_b32 s81, hwreg(HW_REG_IB_STS, 0, 4)')
                a(f's_cmp_le_u32 s81, {o["ibs"]}')
                a('s_cselect_b32 s81, 63, 0')
                return
            if o['ctrl'] and idx > o['ctrl'][1] and idx + NP < 32:
                a('s_waitcnt lgkmcnt(0)')
                a('v_readfirstlane_b32 s81, v242')

        def checkpoint(idx):
            if o['fwait'] and idx == o['fwait']:
                a('s_mov_b64 exec, 1')
                a(f'ds_add_u32 v240, v241 offset:{L_FLAG+16}')
                a('s_mov_b64 exec, -1')
            if o['ctrl'] and idx in o['ctrl']:
                a('s_mov_b64 exec, 1')
                a(f'ds_add_u32 v240, v241 offset:{L_FLAG+8}')
                a('s_mov_b64 exec, -1')

        pre = []
        b2at = o['b2at'] or NP
        for idx in range(b2at):
            pre += issue(idx)
        mark = len(self.L)
        late_setup()
        self.tail_prep(aux=False, tag=False)
        a('s_waitcnt lgkmcnt(0)')
        a('s_add_u32 s36, s36, 1')
        a('v_mov_b32 v238, s36')
        a('v_mov_b32 v239, s37')
        prep = self.L[mark:]
        del self.L[mark:]
        nwait = sum(1 for x in pre if x.startswith('s_waitcnt'))
        per = -(-len(prep) // max(1, min(nwait - 1, o['prepn'])))
        done_prep = False
        nld = 0
        seen_wait = False
        for ins in pre:
            if ins.startswith('buffer_load'):
                if o['b1late'] and nld == o['b1late'] and not o['nob1']:
                    a('s_barrier')
                nld += 1
            if ins.startswith('s_waitcnt'):
                if o['prog'] and not seen_wait:
                    a(ins)
                    self.stamp(11)
                    seen_wait = True
                    continue
                seen_wait = True
            a(ins)
            if ins.startswith('buffer_load') and seen_wait and prep:
                n = min(per, len(prep))
                while n < len(prep) and prep[n].strip().startswith(('s_cselect', 's_addc', 's_cbranch')):
                    n += 1
                self.L += prep[:n]
                prep = prep[n:]
        self.L += prep
        done_prep = True
        assert done_prep
        self.stamp(1)
        a('s_barrier')
        self.stamp(2)
        a(f'v_and_b32 v{T}, 7, v0')
        a(f'v_lshlrev_b32 v{T}, 4, v{T}')
        for i in range(3):
            a(f'ds_read_b128 v[{Q+4*i}:{Q+4*i+3}], v{T} offset:{L_Q + 128*i}')
        if o['local']:
            a(f'ds_read_b32 v{T+9}, v240 offset:{L_FLAG+20}')
        a(f'v_mov_b32 v{T+8}, 0xff800000')
        MX = T + 8
        a(f's_mov_b32 s60, {SCALE}')
        a(f's_mov_b32 s61, 0xffff0000')
        a(f's_mov_b32 s62, {LOG2E}')
        for idx in range(b2at, NP):
            emit(issue(idx))
        a('s_waitcnt lgkmcnt(0)')
        if o['local']:
            a(f'v_readfirstlane_b32 s87, v{T+9}')

        def outstanding_after(idx):
            last = min(idx + NP - 1, len(seq) - 1)
            return (last - idx) * 6

        for p in range(16):
            idx = p
            R = RB + 24 * (idx % NP)
            self.c(f'K pair {p}')
            mode_read(idx)
            a(f's_waitcnt vmcnt({outstanding_after(idx)})')
            A, B = T, T + 1
            a(f'v_mov_b32 v{A}, 0')
            a(f'v_mov_b32 v{B}, 0')
            for g, acc in ((0, A), (1, B)):
                for i in range(3):
                    for r in range(4):
                        a(f'v_dot2c_f32_bf16 v{acc}, v{R+12*g+4*i+r}, v{Q+4*i+r}')
            nxt = issue(idx + NP)
            late_issue = any(isinstance(x, tuple) for x in nxt)
            fill = [] if late_issue else list(nxt)

            def f(n=1):
                for _ in range(n):
                    a(fill.pop(0) if fill else 's_nop 0')
            q1 = 'quad_perm:[1,0,3,2]'; q2 = 'quad_perm:[2,3,0,1]'; hm = 'row_half_mirror'
            self.dpp('v_add_f32', A, A, A, q1)
            f(2)
            self.dpp('v_add_f32', B, B, B, q1)
            self.dpp('v_add_f32', A, A, A, q2)
            f(1)
            self.dpp('v_add_f32', B, B, B, q2)
            self.dpp('v_add_f32', A, A, A, hm)
            f(1)
            self.dpp('v_add_f32', B, B, B, hm)
            while fill:
                f(1)
            if late_issue:
                mode_get(idx)
                emit(nxt)
            checkpoint(idx)
            a(f'v_cvt_pk_bf16_f32 v{T+2}, v{A}, v{B}')
            a(f'v_lshlrev_b32 v{T+3}, 16, v{T+2}')
            a(f'v_and_b32 v{T+4}, s61, v{T+2}')
            a(f'v_mul_f32 v{T+3}, s60, v{T+3}')
            a(f'v_mul_f32 v{T+4}, s60, v{T+4}')
            a(f'v_max3_f32 v{MX}, v{MX}, v{T+3}, v{T+4}')
            a(f'v_cvt_pk_bf16_f32 v{S+p}, v{T+3}, v{T+4}')
            if o['prog'] and p == 7:
                self.stamp(12)
            if o['prog'] and p == 15:
                self.stamp(13)
        self.c('wave max')
        a('s_nop 1')
        self.dpp('v_max_f32', MX, MX, MX, 'row_ror:8')
        self.swap_reduce('v_max_f32', MX, T, 16)
        self.swap_reduce('v_max_f32', MX, T, 32)
        a(f'v_cvt_pk_bf16_f32 v{T}, v{MX}, v{MX}')
        a(f'v_lshlrev_b32 v{MX}, 16, v{T}')
        NM = T + 9
        a(f'v_mul_f32 v{NM}, s62, v{MX}')
        a(f'v_sub_f32 v{NM}, 0, v{NM}')
        LA = T + 10
        a(f'v_mov_b32 v{LA}, 0')
        if o['dbg']:
            a('s_lshl_b32 s63, s2, 2'); a('s_add_u32 s63, s63, s28'); a('s_lshl_b32 s63, s63, 12')
            a(f's_add_u32 s63, s63, {WS_DBG + 0x100000}')
            a(f'v_lshlrev_b32 v{T}, 2, v0')
            for p in range(16):
                a(f'buffer_store_dword v{S+p}, v{T}, s[52:55], s63 offen offset:{256*p}')
            a('s_waitcnt vmcnt(0)')
        PA = T + 12
        for p in range(16):
            idx = 16 + p
            R = RB + 24 * (idx % NP)
            self.c(f'V pair {p}')
            mode_read(idx)
            e0, e1 = T, T + 1
            a(f'v_lshlrev_b32 v{e0}, 16, v{S+p}')
            a(f'v_and_b32 v{e1}, s61, v{S+p}')
            a(f'v_fma_f32 v{e0}, v{e0}, s62, v{NM}')
            a(f'v_fma_f32 v{e1}, v{e1}, s62, v{NM}')
            a(f'v_exp_f32 v{e0}, v{e0}')
            a(f'v_exp_f32 v{e1}, v{e1}')
            a('s_nop 0')
            a(f'v_cvt_pk_bf16_f32 v{T+2}, v{e0}, v{e0}')
            a(f'v_cvt_pk_bf16_f32 v{T+3}, v{e1}, v{e1}')
            for r in range(4):
                a(f'v_and_b32 v{PA+r}, v{T+2}, v{M+r}')
            for r in range(4):
                a(f'v_and_b32 v{PA+4+r}, v{T+3}, v{M+r}')
            a(f'v_add_f32 v{LA}, v{LA}, v{e0}')
            a(f'v_add_f32 v{LA}, v{LA}, v{e1}')
            if o['dbg'] and False:
                pass
            a(f's_waitcnt vmcnt({outstanding_after(idx)})')
            for g in range(2):
                for i in range(3):
                    r = R + 12 * g + 4 * i
                    a(f'v_mfma_f32_16x16x32_bf16 v[{ACC+4*i}:{ACC+4*i+3}], v[{PA+4*g}:{PA+4*g+3}], v[{r}:{r+3}], v[{ACC+4*i}:{ACC+4*i+3}]')
            mode_get(idx)
            emit(issue(idx + NP))
            checkpoint(idx)
            if o['prog'] and p == 7:
                self.stamp(14)
            if o['prog'] and p == 11:
                self.stamp(15)
            if o['nlate'] and idx + NP == 31 - o['wearly']:
                a('s_mov_b64 exec, 1')
                a(f'ds_add_u32 v240, v241 offset:{L_FLAG}')
                a('s_mov_b64 exec, -1')
        self.c('wave epilogue')
        self.stamp(3)
        a('s_nop 1')
        self.dpp('v_add_f32', LA, LA, LA, 'row_ror:8')
        self.swap_reduce('v_add_f32', LA, T, 16)
        self.swap_reduce('v_add_f32', LA, T, 32)
        a('s_mov_b32 exec_lo, 0x00ff00ff')
        a('s_mov_b32 exec_hi, 0xff00ff00')
        for i in range(3):
            a(f'ds_write_b128 v243, v[{ACC+4*i}:{ACC+4*i+3}] offset:{L_OL + 256*i}')
        a('s_mov_b64 exec, 1')
        a(f'ds_write_b32 v244, v{MX} offset:{L_ML}')
        a(f'ds_write_b32 v244, v{LA} offset:{L_ML+16}')
        a('s_waitcnt lgkmcnt(0)')
        if o['nlate']:
            a(f'ds_add_u32 v240, v241 offset:{L_FLAG+4}')
        a('s_mov_b64 exec, -1')
        a('s_branch L_tail')

    def gemv_unit(self, W, XB, ntile, nstep, lastvalid, addr, rowstride, tilebytes, acc):
        a = self.a
        for t in range(nstep):
            for tile in range(ntile):
                av = addr if t < nstep - 1 else addr + 1
                base = t * 32 * rowstride + tile * tilebytes
                r = W + 4 * (tile % 4)
                a(f'ds_read_b64_tr_b16 v[{r}:{r+1}], v{av} offset:{base}')
                a(f'ds_read_b64_tr_b16 v[{r+2}:{r+3}], v{av} offset:{base + 4*rowstride}')
                if tile % 4 == 3 or tile == ntile - 1:
                    a('s_waitcnt lgkmcnt(0)')
                    for tt in range(tile - tile % 4, tile + 1):
                        rr = W + 4 * (tt % 4)
                        a(f'v_mfma_f32_16x16x32_bf16 v[{acc+4*tt}:{acc+4*tt+3}], v[{rr}:{rr+3}], v[{XB+4*t}:{XB+4*t+3}], v[{acc+4*tt}:{acc+4*tt+3}]')

    def aux(self):
        o = self.opt; a = self.a
        ntw = o['ntw']
        self.c('==== aux waves ====')
        if o['noaux']:
            a('s_barrier'); a('s_barrier'); a('s_barrier'); a('s_barrier'); a('s_branch L_end')
        a('s_sub_u32 s38, s28, 4')
        self.srd(40, 4, X_BYTES)
        a('v_lshrrev_b32 v1, 5, v0')
        a('v_and_b32 v2, 31, v0')
        a('v_mul_u32_u24 v3, 1280, v1')
        a('v_mul_u32_u24 v4, 40, v2')
        a('v_add_u32 v3, v3, v4')
        a('buffer_load_dwordx4 v[8:11], v3, s[40:43], 0 offen')
        a('buffer_load_dwordx4 v[12:15], v3, s[40:43], 0 offen offset:16')
        a('buffer_load_dwordx2 v[16:17], v3, s[40:43], 0 offen offset:32')
        a('s_cmp_eq_u32 s38, 3')
        a('s_cbranch_scc1 L_aux_ffn_ld')
        self.srd(44, 10, WQ_BYTES)
        a('v_lshrrev_b32 v4, 3, v0')
        a('v_mul_u32_u24 v4, 12288, v4')
        a('v_and_b32 v5, 7, v0')
        a('v_lshlrev_b32 v5, 4, v5')
        a('v_add_u32 v4, v4, v5')
        a('s_mul_i32 s56, s31, 983040')
        a('s_mul_i32 s57, s35, 384')
        a('s_add_u32 s56, s56, s57')
        a('s_lshl_b32 s57, s38, 7')
        a('s_add_u32 s56, s56, s57')
        a('s_mul_i32 s57, s38, 10240')
        a(f's_add_u32 s57, s57, {L_UQ}')
        for i in range(10):
            a('s_mov_b32 m0, s57')
            a('s_add_u32 s57, s57, 1024')
            a(f'buffer_load_dwordx4 v4, s[44:47], s56 offen {ntw} lds')
            a('s_add_u32 s56, s56, 98304')
        if not o['nob1']:
            a('s_barrier')
        a('s_waitcnt vmcnt(10)')
        a('s_branch L_aux_ln')
        self.label('L_aux_ffn_ld')
        if o['tlbw']:
            a('s_lshl_b32 s56, s32, 5')
            a('s_add_u32 s56, s56, s35')
            a('s_lshl_b32 s56, s56, 12')
            a('s_lshl_b32 s57, s33, 10')
            a('s_add_u32 s56, s56, s57')
            a('s_mul_i32 s58, s56, 384')

            def touch(ptr, offreg, add, dst):
                a(f's_add_u32 s60, s{ptr}, {offreg}')
                a(f's_addc_u32 s61, s{ptr+1}, 0')
                a(f's_load_dword s{dst}, s[60:61], {add}')
            touch(8, 's58', 0, 64)
            touch(8, 's58', 393212, 65)
            touch(6, 's58', 393212, 66)
            if o['tlbw'] > 1:
                a('s_mul_i32 s58, s35, 245760')
                touch(12, 's58', 0, 67)
                touch(12, 's58', 245756, 68)
                a('s_mul_i32 s58, s35, 61440')
                touch(20, 's58', 0, 69)
                a('s_and_b32 s58, s34, 15')
                a('s_mul_i32 s58, s58, 122880')
                a('s_cmp_ge_u32 s34, 16')
                a('s_cselect_b32 s62, s18, s16')
                a('s_cselect_b32 s63, s19, s17')
                touch(62, 's58', 0, 70)
                touch(62, 's58', 122876, 71)
        a('s_cmp_ge_u32 s34, 16')
        a('s_cselect_b32 s56, s18, s16')
        a('s_cselect_b32 s57, s19, s17')
        self.srd(44, 56, WG_BYTES)
        def ffn_dma():
            for i in range(3):
                a(f'v_add_u32 v43, {64*i}, v0')
                a('v_mul_u32_u24 v44, 2731, v43')
                a('v_lshrrev_b32 v44, 16, v44')
                a('v_mul_u32_u24 v45, 24, v44')
                a('v_sub_u32 v43, v43, v45')
                a('v_mul_u32_u24 v44, 3072, v44')
                a('v_lshlrev_b32 v43, 4, v43')
                a(f'v_add_u32 v{40+i}, v43, v44')
            a('s_and_b32 s56, s34, 15')
            a('s_mul_i32 s56, s56, 122880')
            a('s_mul_i32 s57, s29, 384')
            a('s_add_u32 s56, s56, s57')
            a(f's_mov_b32 s57, {L_UF}')
            for i in range(15):
                a('s_mov_b32 m0, s57')
                a('s_add_u32 s57, s57, 1024')
                a(f'buffer_load_dwordx4 v{40+i%3}, s[44:47], s56 offen {ntw} lds')
                if i % 3 == 2:
                    a('s_add_u32 s56, s56, 24576')
        if not o['ffn_late']:
            ffn_dma()
            a('s_barrier')
            a('s_waitcnt vmcnt(15)')
        else:
            if o['local1']:
                a('v_mov_b32 v43, 0')
                a(f'ds_write_b32 v43, v43 offset:{L_FLAG+24}')
                a('s_waitcnt lgkmcnt(0)')
            if not o['nob1']:
                a('s_barrier')
            if o['local1']:
                a('s_waitcnt lgkmcnt(0)')
                a('s_add_u32 s36, s36, 1')
                a('s_getreg_b32 s39, hwreg(HW_REG_XCC_ID, 0, 4)')
                a('s_add_u32 s39, s39, 1')
                a('s_lshl_b32 s39, s39, 24')
                a('s_add_u32 s39, s39, s37')
                a('v_mov_b32 v44, s36')
                a('v_mov_b32 v45, s39')
                a('v_mov_b32 v46, 0')
                a('s_lshl_b32 s56, s35, 7')
                a('s_lshl_b32 s57, s31, 3')
                a('s_add_u32 s56, s56, s57')
                a(f's_add_u32 s56, s56, {WS_F0}')
                a('s_mov_b64 exec, 1')
                a('buffer_store_dwordx2 v[44:45], v46, s[52:55], s56 offen sc1')
                a('s_mov_b64 exec, -1')
                a('s_lshl_b32 s56, s35, 7')
                a(f's_add_u32 s56, s56, {WS_F0}')
                a('s_add_u32 s58, s26, s56')
                a('s_addc_u32 s59, s27, 0')
                a(f's_mov_b32 s81, {o["l1try"]}')
                lt, ld = self.newlab('L_l1'), self.newlab('L_l1d')
                self.label(lt)
                a('s_sleep 4')
                a('s_load_dwordx16 s[64:79], s[58:59], 0 glc')
                a('s_waitcnt lgkmcnt(0)')
                a('s_mov_b32 s87, 1')
                for t in range(8):
                    a(f's_cmp_eq_u32 s{64+2*t}, s36')
                    a('s_cselect_b32 s87, s87, 0')
                    a(f's_cmp_eq_u32 s{65+2*t}, s39')
                    a('s_cselect_b32 s87, s87, 0')
                a('s_cmp_eq_u32 s87, 1')
                a(f's_cbranch_scc1 {ld}')
                a('s_sub_u32 s81, s81, 1')
                a('s_cmp_lg_u32 s81, 0')
                a(f's_cbranch_scc1 {lt}')
                self.label(ld)
                a('v_mov_b32 v43, 0')
                a('v_mov_b32 v44, s87')
                a(f'ds_write_b32 v43, v44 offset:{L_FLAG+24}')
            a('s_waitcnt vmcnt(1)' if o['local1'] else 's_waitcnt vmcnt(0)')
        self.label('L_aux_ln')
        self.stamp(1)
        X = 20
        for k in range(10):
            a(f'v_lshlrev_b32 v{X+2*k}, 16, v{8+k}')
            a(f'v_and_b32 v{X+2*k+1}, 0xffff0000, v{8+k}')
        a(f'v_add_f32 v44, v{X}, v{X+1}')
        a(f'v_add_f32 v45, v{X+2}, v{X+3}')
        for k in range(2, 10):
            a(f'v_add_f32 v{44+k%2}, v{44+k%2}, v{X+2*k}')
            a(f'v_add_f32 v{44+k%2}, v{44+k%2}, v{X+2*k+1}')
        a('v_add_f32 v44, v44, v45')

        def red32(v):
            for ctrl in ('quad_perm:[1,0,3,2]', 'quad_perm:[2,3,0,1]', 'row_half_mirror', 'row_mirror'):
                a('s_nop 1')
                self.dpp('v_add_f32', v, v, v, ctrl)
            self.swap_reduce('v_add_f32', v, 47, 16)
        red32(44)
        a(f's_mov_b32 s56, {INV640}')
        a('v_mul_f32 v44, s56, v44')
        a('v_mov_b32 v45, 0')
        a('v_mov_b32 v46, 0')
        for k in range(20):
            a(f'v_sub_f32 v48, v{X+k}, v44')
            a(f'v_fmac_f32 v{45+k%2}, v48, v48')
        a('v_add_f32 v45, v45, v46')
        red32(45)
        a('v_mul_f32 v45, s56, v45')
        a('v_cvt_pk_bf16_f32 v46, v44, v45')
        a('v_lshlrev_b32 v44, 16, v46')
        a('v_and_b32 v45, 0xffff0000, v46')
        a(f'v_add_f32 v45, {EPS_BF}, v45')
        a('v_cvt_pk_bf16_f32 v45, v45, v45')
        a('v_and_b32 v45, 0xffff0000, v45')
        a('v_sqrt_f32 v45, v45')
        a('s_nop 0')
        a('v_cvt_pk_bf16_f32 v45, v45, v45')
        a('v_and_b32 v45, 0xffff0000, v45')
        a('v_rcp_f32 v45, v45')
        for k in range(10):
            a(f'v_sub_f32 v48, v{X+2*k}, v44')
            a(f'v_sub_f32 v49, v{X+2*k+1}, v44')
            a('v_cvt_pk_bf16_f32 v48, v48, v49')
            a('v_and_b32 v49, 0xffff0000, v48')
            a('v_lshlrev_b32 v48, 16, v48')
            a('v_mul_f32 v48, v48, v45')
            a('v_mul_f32 v49, v49, v45')
            a(f'v_cvt_pk_bf16_f32 v{8+k}, v48, v49')
        for k in range(5):
            a(f'ds_write_b64 v3, v[{8+2*k}:{9+2*k}] offset:{L_XN + 8*k}')
        a('v_and_b32 v4, 15, v0')
        a('v_lshrrev_b32 v5, 4, v0')
        a('v_and_b32 v6, 1, v0')
        a('v_mul_u32_u24 v6, 1280, v6')
        a('v_lshlrev_b32 v7, 4, v5')
        a('v_add_u32 v6, v6, v7')
        a('v_lshlrev_b32 v50, 3, v5')
        a('v_lshrrev_b32 v51, 2, v4')
        a('v_add_u32 v50, v50, v51')
        a('v_and_b32 v51, 3, v4')
        a('v_lshlrev_b32 v51, 3, v51')
        a('s_waitcnt lgkmcnt(0)')
        a('s_cmp_eq_u32 s38, 3')
        a('s_cbranch_scc1 L_aux_ffn')

        XB = 8
        a('s_mul_i32 s56, s31, 160')
        a('v_add_u32 v6, s56, v6')
        for t in range(3):
            a(f'ds_read_b128 v[{XB+4*t}:{XB+4*t+3}], v6 offset:{L_XN + 64*t}')
        a('s_mul_i32 s56, s38, 10240')
        a(f's_add_u32 s56, s56, {L_UQ}')
        a('v_lshlrev_b32 v52, 7, v50')
        a('v_add3_u32 v52, v52, v51, s56')
        a('v_cmp_le_u32 vcc, 2, v5')
        a('v_subrev_u32 v53, 2048, v52')
        a('s_nop 0')
        a('v_cndmask_b32 v53, v52, v53, vcc')
        ACC = 24
        for k in range(16):
            a(f'v_mov_b32 v{ACC+k}, 0')
        a('s_waitcnt lgkmcnt(0)')
        for r in range(4):
            a(f'v_cndmask_b32 v{XB+8+r}, v{XB+8+r}, 0, vcc')
        if o['local1']:
            a('s_add_u32 s36, s36, 1')
            a('s_getreg_b32 s39, hwreg(HW_REG_XCC_ID, 0, 4)')
            a('s_add_u32 s39, s39, 1')
            a('s_lshl_b32 s39, s39, 24')
            a('s_add_u32 s39, s39, s37')
        a('s_waitcnt vmcnt(0)')
        self.stamp(2)
        self.gemv_unit(W=56, XB=XB, ntile=4, nstep=3, lastvalid=2, addr=52, rowstride=128, tilebytes=32, acc=ACC)
        a('v_and_b32 v6, 1, v4')
        a('v_mul_u32_u24 v6, 12288, v6')
        a('v_lshrrev_b32 v7, 1, v4')
        a('v_lshl_add_u32 v7, v5, 1, v7')
        a('v_lshlrev_b32 v7, 4, v7')
        a('v_add_u32 v6, v6, v7')
        a('s_mul_i32 s56, s35, 24576')
        a('s_lshl_b32 s57, s38, 12')
        a('s_add_u32 s56, s56, s57')
        a('s_lshl_b32 s57, s31, 9')
        a('s_add_u32 s56, s56, s57')
        a(f's_add_u32 s56, s56, {WS_E1}')
        a('v_and_b32 v7, 2, v4')
        a('v_cmp_eq_u32 vcc, 2, v7')
        a('s_waitcnt lgkmcnt(0)')
        if not o['local1']:
            a('s_add_u32 s36, s36, 1')
        a('v_mov_b32 v10, s36')
        a('v_mov_b32 v11, s37')
        a('s_nop 7')
        a('s_mov_b64 s[84:85], exec')
        def e1_publish(fl):
            a('s_mov_b32 exec_lo, 0x000f000f')
            a('s_mov_b32 exec_hi, 0x000f000f')
            for tile in range(4):
                a(f'v_cndmask_b32 v8, v{ACC+4*tile}, v{ACC+4*tile+2}, vcc')
                a(f'v_cndmask_b32 v9, v{ACC+4*tile+1}, v{ACC+4*tile+3}, vcc')
                a(f'buffer_store_dwordx4 v[8:11], v6, s[52:55], s56 offen offset:{128*tile} {fl}')
                a('s_nop 1')
            if o['smem']:
                a('s_mul_i32 s56, s35, 768')
                a('s_lshl_b32 s57, s38, 7')
                a('s_add_u32 s56, s56, s57')
                a('s_lshl_b32 s57, s31, 3')
                a('s_add_u32 s56, s56, s57')
                a(f's_add_u32 s56, s56, {WS_F1}')
                a('s_mov_b64 exec, 3')
                a('v_mul_u32_u24 v7, 384, v0')
                if o['local']:
                    if not o['local1']:
                        a('s_getreg_b32 s39, hwreg(HW_REG_XCC_ID, 0, 4)')
                        a('s_add_u32 s39, s39, 1')
                        a('s_lshl_b32 s39, s39, 24')
                        a('s_add_u32 s39, s39, s37')
                    a('v_mov_b32 v9, s39')
                    a('v_mov_b32 v8, s36')
                    a(f'buffer_store_dwordx2 v[8:9], v7, s[52:55], s56 offen {o["hintfl"] if o["hintfl"] is not None else fl}')
                else:
                    a(f'buffer_store_dwordx2 v[10:11], v7, s[52:55], s56 offen {fl}')
        if o['local1']:
            l1, l2 = self.newlab('L_e1'), self.newlab('L_e1')
            a('v_mov_b32 v43, 0')
            a(f'ds_read_b32 v43, v43 offset:{L_FLAG+24}')
            a('s_waitcnt lgkmcnt(0)')
            a('v_readfirstlane_b32 s87, v43')
            a('s_cmp_eq_u32 s87, 1')
            a(f's_cbranch_scc1 {l1}')
            e1_publish('sc1')
            a(f's_branch {l2}')
            self.label(l1)
            e1_publish('')
            self.label(l2)
        else:
            e1_publish('sc1')
        a('s_mov_b64 exec, s[84:85]')
        self.stamp(3)
        a('s_mul_i32 s56, s35, 24576')
        a('s_mul_i32 s57, s32, 12288')
        a('s_add_u32 s56, s56, s57')
        a('s_lshl_b32 s57, s38, 12')
        a('s_add_u32 s56, s56, s57')
        a(f's_add_u32 s56, s56, {WS_E1}')
        a(f's_mov_b32 s80, {o["spin"]}')
        if o['smem']:
            a('s_mul_i32 s57, s35, 768')
            a('s_mul_i32 s58, s32, 384')
            a('s_add_u32 s57, s57, s58')
            a('s_lshl_b32 s58, s38, 7')
            a('s_add_u32 s57, s57, s58')
            a(f's_add_u32 s57, s57, {WS_F1}')
            a('s_add_u32 s58, s26, s57')
            a('s_addc_u32 s59, s27, 0')
            self.smem_poll(58, 8, o['psleep'], lo_only=o['local'])
            if o['local']:
                a('s_mov_b32 s57, 1')
                for t in range(8):
                    a(f's_cmp_eq_u32 s{65+2*t}, s39')
                    a('s_cselect_b32 s57, s57, 0')
                a('v_mov_b32 v7, s57')
                a('v_mov_b32 v6, 0')
                a(f'ds_write_b32 v6, v7 offset:{L_FLAG+20}')
        elif o['sent']:
            a('v_lshlrev_b32 v6, 9, v0')
            a('v_add_u32 v6, 496, v6')
            a('s_mov_b64 exec, 0xff')
            self.label('L_q_sent')
            a('buffer_load_dwordx4 v[24:27], v6, s[52:55], s56 offen sc1')
            a('s_waitcnt vmcnt(0)')
            self.poll_check([24], 'L_q_sent', sleep=o['psleep'])
            a('s_mov_b64 exec, -1')
        a('v_lshlrev_b32 v6, 4, v0')
        self.label('L_q_poll')
        for i in range(4):
            a(f'buffer_load_dwordx4 v[{24+4*i}:{27+4*i}], v6, s[52:55], s56 offen offset:{1024*i} sc1')
        a('s_waitcnt vmcnt(0)')
        self.poll_check([24, 28, 32, 36], 'L_q_poll')
        a('v_add_f32 v24, v24, v28')
        a('v_add_f32 v25, v25, v29')
        a('v_add_f32 v32, v32, v36')
        a('v_add_f32 v33, v33, v37')
        a('v_add_f32 v24, v24, v32')
        a('v_add_f32 v25, v25, v33')
        self.swap_reduce('v_add_f32', 24, 26, 32)
        self.swap_reduce('v_add_f32', 25, 26, 32)
        a('v_cvt_pk_bf16_f32 v24, v24, v25')
        a('v_and_b32 v6, 31, v0')
        a('v_lshlrev_b32 v6, 2, v6')
        a('s_lshl_b32 s57, s38, 7')
        a('v_add_u32 v6, s57, v6')
        a(f'ds_write_b32 v6, v24 offset:{L_Q}')
        if o['dbg']:
            a('s_lshl_b32 s56, s2, 9'); a(f's_add_u32 s56, s56, {WS_DBG}')
            a('buffer_store_dword v24, v6, s[52:55], s56 offen')
        if o['nlate'] or o['fwait']:
            a('v_mov_b32 v7, 0')
            a(f'ds_write_b32 v7, v7 offset:{L_FLAG+16}')
            a(f'ds_write_b32 v7, v7 offset:{L_FLAG}')
            a(f'ds_write_b32 v7, v7 offset:{L_FLAG+4}')
            a(f'ds_write_b32 v7, v7 offset:{L_FLAG+8}')
            a(f'ds_write_b32 v7, v7 offset:{L_FLAG+12}')
        a('s_waitcnt lgkmcnt(0)')
        self.stamp(4)
        a('s_barrier')
        self.tmark(1)
        self.wb_setup()
        self.wb_early()
        self.tail_prep(aux=True)
        if o['ctrl']:
            self.controller()
        if o['nlate']:
            a('s_branch L_wlate')
        a('s_waitcnt vmcnt(0)')
        a('s_branch L_tail')

        self.label('L_aux_ffn')
        a('s_and_b32 s56, s34, 15')
        a('s_mul_i32 s56, s56, 80')
        a('v_add_u32 v6, s56, v6')
        for t in range(2):
            a(f'ds_read_b128 v[{XB+4*t}:{XB+4*t+3}], v6 offset:{L_XN + 64*t}')
        a('v_mul_u32_u24 v52, 384, v50')
        a(f'v_add_u32 v52, {L_UF}, v52')
        a('v_add_u32 v52, v52, v51')
        a('v_lshrrev_b32 v53, 2, v4')
        a('v_mul_u32_u24 v53, 384, v53')
        a(f'v_add_u32 v53, {L_UF}, v53')
        a('v_add_u32 v53, v53, v51')
        a('v_cmp_le_u32 vcc, 1, v5')
        FACC = 64
        for k in range(48):
            a(f'v_mov_b32 v{FACC+k}, 0')
        a('s_waitcnt lgkmcnt(0)')
        for r in range(4):
            a(f'v_cndmask_b32 v{XB+4+r}, v{XB+4+r}, 0, vcc')
        if o['ffn_late']:
            a('s_barrier')
            if o['skipffn']:
                if not o['local1']:
                    a('s_add_u32 s36, s36, 1')
                self.tail_prep(aux=True)
                a('s_branch L_tail')
            ffn_dma()
        a('s_waitcnt vmcnt(0)')
        self.gemv_unit(W=24, XB=XB, ntile=12, nstep=2, lastvalid=1, addr=52, rowstride=384, tilebytes=32, acc=FACC)
        a('v_and_b32 v6, 1, v4')
        a('v_mul_u32_u24 v6, 192, v6')
        a('v_lshlrev_b32 v7, 4, v5')
        a('v_add_u32 v6, v6, v7')
        a('s_mul_i32 s56, s29, 49152')
        a('s_mul_i32 s57, s34, 384')
        a('s_add_u32 s56, s56, s57')
        a(f's_add_u32 s56, s56, {WS_E2}')
        if not o['local1']:
            a('s_add_u32 s36, s36, 1')
        a('s_nop 7')
        a('s_mov_b32 exec_lo, 0x00030003')
        a('s_mov_b32 exec_hi, 0x00030003')
        for tile in range(12):
            r = tile // 3
            if tile % 3 == 0 and tile:
                a('s_add_u32 s56, s56, 12288')
            a(f'buffer_store_dwordx4 v[{FACC+4*tile}:{FACC+4*tile+3}], v6, s[52:55], s56 offen offset:{64*(tile%3)} sc1')
        a('s_mov_b64 exec, -1')
        if not o['ffn_late']:
            a('s_barrier')
        a('s_waitcnt vmcnt(0)')
        a('v_mov_b32 v8, s36')
        a('v_mov_b32 v9, s37')
        a('s_lshl_b32 s56, s29, 8')
        a('s_lshl_b32 s57, s34, 3')
        a('s_add_u32 s57, s57, s56')
        a(f's_add_u32 s57, s57, {WS_E2F}')
        a(f's_add_u32 s56, s56, {WS_E2F}')
        a('v_mov_b32 v10, 0')
        a('s_mov_b64 exec, 1')
        a('buffer_store_dwordx2 v[8:9], v10, s[52:55], s57 offen sc1')
        a('s_mov_b64 exec, -1')
        a(f's_mov_b32 s80, {o["spin"]}')
        if o['fwait']:
            lab, go = self.newlab('L_fw'), self.newlab('L_fg')
            a('v_mov_b32 v12, 0')
            self.label(lab)
            a(f'ds_read_b32 v13, v12 offset:{L_FLAG+16}')
            a('s_waitcnt lgkmcnt(0)')
            a('v_readfirstlane_b32 s57, v13')
            a('s_cmp_ge_u32 s57, 1')
            a(f's_cbranch_scc1 {go}')
            a('s_sleep 8')
            a(f's_branch {lab}')
            self.label(go)
        if o['smem']:
            a('s_add_u32 s58, s26, s56')
            a('s_addc_u32 s59, s27, 0')
            for c4 in range(4):
                self.smem_poll(58, 8, o['fsleep'])
                if c4 < 3:
                    a('s_add_u32 s58, s58, 64')
                    a('s_addc_u32 s59, s59, 0')
        else:
            a('v_and_b32 v10, 31, v0')
            a('v_lshlrev_b32 v10, 3, v10')
            self.label('L_f_poll')
            a('buffer_load_dwordx2 v[14:15], v10, s[52:55], s56 offen sc1')
            a('s_waitcnt vmcnt(0)')
            self.poll_check([12], 'L_f_poll')
        a('v_and_b32 v10, 31, v0')
        a('v_min_u32 v11, 23, v10')
        a('v_lshlrev_b32 v11, 4, v11')
        a('v_lshrrev_b32 v12, 5, v0')
        a('v_mul_u32_u24 v12, 6144, v12')
        a('v_add_u32 v11, v11, v12')
        a('s_mul_i32 s56, s29, 49152')
        a('s_mul_i32 s57, s30, 12288')
        a('s_add_u32 s56, s56, s57')
        a(f's_add_u32 s56, s56, {WS_E2}')
        for i in range(16):
            a(f'buffer_load_dwordx4 v[{64+4*i}:{67+4*i}], v11, s[52:55], s56 offen offset:{384*(i%8)} sc1')
            if i == 7:
                a('s_add_u32 s56, s56, 3072')
        a('s_waitcnt vmcnt(0)')
        for i in range(1, 16):
            for r in range(4):
                a(f'v_add_f32 v{64+r}, v{64+r}, v{64+4*i+r}')
        a('v_cvt_pk_bf16_f32 v64, v64, v65')
        a('v_cvt_pk_bf16_f32 v65, v66, v67')
        a('v_mov_b32 v68, v64')
        a('v_mov_b32 v69, v65')
        a('s_nop 1')
        a('v_permlane32_swap_b32 v64, v68')
        a('v_permlane32_swap_b32 v65, v69')
        for p in range(2):
            g, u = 64 + p, 68 + p
            a(f'v_lshlrev_b32 v72, 16, v{g}')
            a(f'v_and_b32 v73, 0xffff0000, v{g}')
            for t in (72, 73):
                a(f'v_mul_f32 v74, {0xBFB8AA3B}, v{t}')
                a('v_exp_f32 v74, v74')
                a('s_nop 0')
                a('v_add_f32 v74, 1.0, v74')
                a('v_rcp_f32 v74, v74')
                a('s_nop 0')
                a(f'v_mul_f32 v{t}, v{t}, v74')
            a('v_cvt_pk_bf16_f32 v72, v72, v73')
            a('v_and_b32 v73, 0xffff0000, v72')
            a('v_lshlrev_b32 v72, 16, v72')
            a(f'v_and_b32 v75, 0xffff0000, v{u}')
            a(f'v_lshlrev_b32 v74, 16, v{u}')
            a('v_mul_f32 v72, v72, v74')
            a('v_mul_f32 v73, v73, v75')
            a(f'v_cvt_pk_bf16_f32 v{76+p}, v72, v73')
        a('v_cmp_le_u32 vcc, 12, v10')
        a('v_subrev_u32 v11, 12, v10')
        a('s_nop 0')
        a('v_cndmask_b32 v11, v10, v11, vcc')
        a('v_lshlrev_b32 v11, 3, v11')
        a('v_add_u32 v12, 128, v11')
        a('v_cndmask_b32 v11, v11, v12, vcc')
        a('v_subrev_u32 v12, 24, v10')
        a('v_lshrrev_b32 v13, 2, v12')
        a('v_lshlrev_b32 v13, 7, v13')
        a('v_and_b32 v12, 3, v12')
        a('v_lshl_add_u32 v12, v12, 3, v13')
        a('v_add_u32 v12, 96, v12')
        a('v_cmp_le_u32 vcc, 24, v10')
        a('s_nop 1')
        a('v_cndmask_b32 v11, v11, v12, vcc')
        a('v_cndmask_b32 v76, v76, 0, vcc')
        a('v_cndmask_b32 v77, v77, 0, vcc')
        a('s_mov_b32 exec_hi, 0')
        a(f'ds_write_b64 v11, v[76:77] offset:{L_HV}')
        a('s_mov_b64 exec, -1')
        a('s_waitcnt lgkmcnt(0)')
        self.stamp(4)
        self.tail_prep(aux=True)
        if o['nlate']:
            self.wb_setup()
            self.label('L_wlate')
            self.wb_late()
            a('s_waitcnt vmcnt(0)')
            a('s_branch L_bar3b')
        a('s_branch L_tail')

    def controller(self):
        o = self.opt; a = self.a
        skip = self.newlab('L_ct')
        a('s_cmp_lg_u32 s38, 2')
        a(f's_cbranch_scc1 {skip}')
        pat = {0: 0, 1: 0b000001, 2: 0b001001, 3: 0b010101, 4: 0b011011, 5: 0b011111, 6: 0b111111}
        parts = o['cpart']
        for j, px in enumerate(parts):
            a(f's_xor_b32 s56, s2, {px}')
            a('s_lshl_b32 s56, s56, 7')
            a(f's_add_u32 s56, s56, {WS_PR}')
            a(f's_add_u32 s{8+2*j}, s26, s56')
            a(f's_addc_u32 s{9+2*j}, s27, 0')
        a('s_lshl_b32 s63, s2, 7')
        a(f's_add_u32 s63, s63, {WS_PR}')
        for k, ck in enumerate(o['ctrl']):
            lab, go, done = self.newlab('L_cw'), self.newlab('L_cg'), self.newlab('L_cd')
            self.label(lab)
            a(f'ds_read_b32 v5, v240 offset:{L_FLAG+8}')
            a('s_waitcnt lgkmcnt(0)')
            a('v_readfirstlane_b32 s56, v5')
            a(f's_cmp_ge_u32 s56, {4*k + 2}')
            a(f's_cbranch_scc1 {go}')
            a('s_sleep 4')
            a(f's_branch {lab}')
            self.label(go)
            a('s_memrealtime s[60:61]')
            if k:
                for j in range(len(parts)):
                    a(f's_load_dwordx2 s[{16+2*j}:{17+2*j}], s[{8+2*j}:{9+2*j}], {8*(k-1)} glc')
            a('s_waitcnt lgkmcnt(0)')
            a('s_mov_b64 exec, 1')
            a('v_mov_b32 v6, s60')
            a('v_mov_b32 v7, s36')
            a(f'buffer_store_dwordx2 v[6:7], v240, s[52:55], s63 offen offset:{8*k} sc1')
            if k:
                a('s_mov_b32 s56, 0')
                a('s_sub_u32 s57, s93, s60')
                for j in range(len(parts)):
                    a(f's_sub_u32 s58, s93, s{16+2*j}')
                    a(f's_cmp_eq_u32 s{17+2*j}, s36')
                    a('s_cselect_b32 s58, s58, s57')
                    a('s_add_u32 s56, s56, s58')
                trem = (32 - ck) * 85
                kk = int(round(6 * o['WL'] * o['cgain'] / trem / len(parts) * 65536))
                a(f's_mul_i32 s56, s56, {kk}')
                a('s_add_u32 s56, s56, 32768')
                a('s_ashr_i32 s56, s56, 16')
                for lv in range(-o['cmin'], o['cmax'] + 1):
                    bits = pat[lv] if lv >= 0 else pat[-lv] << 8
                    a(f's_mov_b32 s57, {bits}')
                    if lv < o['cmax']:
                        a(f's_cmp_le_i32 s56, {lv}')
                        a(f's_cbranch_scc1 {done}')
                self.label(done)
                a('v_mov_b32 v5, s57')
                a(f'ds_write_b32 v240, v5 offset:{L_FLAG+12}')
            a('s_mov_b32 s93, s60')
            a('s_mov_b64 exec, -1')
        self.label(skip)

    def wb_setup(self):
        a = self.a
        for i in range(5):
            a(f'v_add_u32 v5, {64*i}, v0')
            a('v_mul_u32_u24 v6, 6554, v5')
            a('v_lshrrev_b32 v6, 16, v6')
            a('v_mul_u32_u24 v7, 10, v6')
            a('v_sub_u32 v5, v5, v7')
            a('v_mul_u32_u24 v6, 1280, v6')
            a('v_lshlrev_b32 v5, 4, v5')
            a(f'v_add_u32 v{40+i}, v5, v6')
        self.srd(48, 12, WO_BYTES)
        self.srd(88, 20, WD_BYTES)

    def wb_period(self, preg):
        o = self.opt; a = self.a
        a('s_mul_i32 s56, s35, 245760')
        a('s_mul_i32 s57, s31, 160')
        a('s_add_u32 s56, s56, s57')
        a(f's_mul_i32 s57, {preg}, 40960')
        a('s_add_u32 s56, s56, s57')
        a(f's_mul_i32 s57, {preg}, 5120')
        a(f's_add_u32 s57, s57, {L_WB}')
        for i in range(5):
            a('s_mov_b32 m0, s57')
            a('s_add_u32 s57, s57, 1024')
            a(f'buffer_load_dwordx4 v{40+i}, s[48:51], s56 offen {o["ntwb"]} lds')

    def wb_early(self):
        o = self.opt; a = self.a
        nearly = 6 - o['nlate']
        for t in range((nearly + 2) // 3):
            lab = self.newlab('L_we')
            a(f's_add_u32 s58, s38, {3*t}')
            a(f's_cmp_lt_u32 s58, {nearly}')
            a(f's_cbranch_scc0 {lab}')
            self.wb_period('s58')
            self.label(lab)
        a('s_mul_i32 s56, s35, 61440')
        a('s_mul_i32 s57, s31, 160')
        a('s_add_u32 s56, s56, s57')
        lab0, lab1, labd = self.newlab('L_wd'), self.newlab('L_wd'), self.newlab('L_wd')
        a('s_cmp_eq_u32 s38, 0'); a(f's_cbranch_scc1 {lab0}')
        a('s_cmp_eq_u32 s38, 1'); a(f's_cbranch_scc1 {lab1}')

        def dma(i):
            a(f's_mov_b32 m0, {L_WD + 1024*i}')
            a(f's_add_u32 s57, s56, {40960*(i//5)}')
            a(f'buffer_load_dwordx4 v{40+i%5}, s[88:91], s57 offen {o["ntwb"]} lds')
        dma(6); dma(7); a(f's_branch {labd}')
        self.label(lab0); dma(0); dma(1); dma(2); a(f's_branch {labd}')
        self.label(lab1); dma(3); dma(4); dma(5)
        self.label(labd)

    def wb_late(self):
        o = self.opt; a = self.a
        nlate = o['nlate']
        lab, labd0 = self.newlab('L_ww'), self.newlab('L_wv')
        self.label(lab)
        a(f'ds_read_b32 v5, v240 offset:{L_FLAG}')
        a('s_waitcnt lgkmcnt(0)')
        a('v_readfirstlane_b32 s56, v5')
        a(f's_cmp_ge_u32 s56, {o["wtrig"]}')
        a(f's_cbranch_scc1 {labd0}')
        a('s_sleep 2')
        a(f's_branch {lab}')
        self.label(labd0)
        self.stamp(11)
        for t in range((nlate + 3) // 4):
            lab = self.newlab('L_wl')
            a(f's_add_u32 s58, s38, {4*t}')
            a(f's_cmp_lt_u32 s58, {nlate}')
            a(f's_cbranch_scc0 {lab}')
            a(f's_add_u32 s58, s58, {6 - nlate}')
            self.wb_period('s58')
            self.label(lab)

    def tail_prep(self, aux, tag=True):
        o = self.opt; a = self.a
        self.c('---- tail constants ----')
        if tag:
            a('v_mov_b32 v238, s36')
            a('v_mov_b32 v239, s37')
        a('v_mov_b32 v240, 0')
        a('v_mov_b32 v241, 1')
        a('s_lshl_b32 s64, s28, 6')
        a('v_add_u32 v225, s64, v0')
        a('v_mov_b32 v224, 96')
        a('v_cmp_eq_u32 vcc, v224, v225')
        a('s_mov_b64 s[74:75], vcc')
        a('v_cmp_ge_u32 vcc, v224, v225')
        a('s_mov_b64 s[72:73], vcc')
        a('v_min_u32 v224, 95, v225')
        a('v_lshlrev_b32 v224, 3, v224')
        a('v_lshlrev_b32 v225, 4, v225')
        a('s_lshl_b32 s64, s35, 3')
        a('s_add_u32 s64, s64, s31')
        a('s_lshl_b32 s64, s64, 11')
        a(f's_add_u32 s64, s64, {WS_E3}')
        a('s_sub_u32 s65, s28, 2')
        a('s_cmp_ge_i32 s65, 3')
        a('s_cselect_b32 s66, 1, 0')
        a('s_mul_i32 s67, s66, 3')
        a('s_sub_u32 s67, s65, s67')
        a('v_lshrrev_b32 v227, 5, v0')
        a('v_lshlrev_b32 v227, 11, v227')
        a('v_and_b32 v228, 31, v0')
        a('s_lshl_b32 s68, s67, 5')
        a('v_add_u32 v226, s68, v228')
        a('v_lshl_add_u32 v226, v226, 4, v227')
        a('v_add_u32 v227, 1536, v227')
        a('s_mul_i32 s68, s66, 384')
        a('s_lshl_b32 s69, s67, 7')
        a('s_add_u32 s68, s68, s69')
        a(f's_add_u32 s68, s68, {L_ON}')
        a('v_lshl_add_u32 v228, v228, 2, s68')
        a('s_lshl_b32 s65, s35, 3')
        a('s_lshl_b32 s66, s66, 2')
        a('s_add_u32 s65, s65, s66')
        a('s_lshl_b32 s65, s65, 11')
        a(f's_add_u32 s65, s65, {WS_E3}')
        a('s_add_u32 s66, s65, 4096')
        a('v_and_b32 v234, 15, v0')
        a('v_lshrrev_b32 v235, 4, v0')
        a('v_and_b32 v236, 1, v0')
        a('v_lshlrev_b32 v237, 4, v235')
        a('v_mul_u32_u24 v229, 384, v236')
        a('v_add_u32 v229, v229, v237')
        a(f'v_add_u32 v229, {L_ON}, v229')
        a('v_lshlrev_b32 v230, 7, v236')
        a('v_add_u32 v230, v230, v237')
        a(f'v_add_u32 v230, {L_HV}, v230')
        a('v_lshlrev_b32 v231, 3, v235')
        a('v_lshrrev_b32 v232, 2, v234')
        a('v_add_u32 v231, v231, v232')
        a('v_mul_u32_u24 v231, 160, v231')
        a('v_and_b32 v232, 3, v234')
        a('v_lshlrev_b32 v232, 3, v232')
        a('s_lshl_b32 s67, s28, 5')
        a('v_add3_u32 v231, v231, v232, s67')
        a(f'v_add_u32 v231, {L_WB}, v231')
        a('v_cmp_le_u32 vcc, 2, v235')
        a('v_subrev_u32 v232, 2560, v231')
        a('s_nop 0')
        a('v_cndmask_b32 v232, v231, v232, vcc')
        a('v_and_b32 v233, 1, v235')
        a('v_mul_u32_u24 v233, 40960, v233')
        if o['r160']:
            a('v_lshrrev_b32 v237, 3, v234')
            a('v_lshl_add_u32 v233, v237, 12, v233')
            a('v_and_b32 v237, 7, v234')
            a('v_lshl_add_u32 v233, v237, 4, v233')
        else:
            a('v_lshl_add_u32 v233, v234, 4, v233')
        a('v_and_b32 v237, 16, v0')
        a('v_cmp_eq_u32 vcc, 16, v237')
        a('s_mov_b64 s[76:77], vcc')
        a('s_mul_i32 s67, s31, 10')
        a('s_add_u32 s67, s67, s28')
        a('s_lshl_b32 s67, s67, 13')
        a(f's_lshl_b32 s68, s35, {7 if o["r160"] else 8}')
        a('s_add_u32 s67, s67, s68')
        a(f's_add_u32 s67, s67, {WS_E4}')
        if aux:
            if o['r160']:
                a('s_lshl_b32 s71, s30, 3')
                a('s_add_u32 s71, s71, s29')
                a('s_lshr_b32 s69, s29, 1')
                a('s_add_u32 s69, s69, 16')
                a('s_bitcmp1_b32 s29, 0')
                a('s_cselect_b32 s69, 99, s69')
                a('s_cmp_eq_u32 s30, 2')
                a('s_cselect_b32 s71, s69, s71')
                a('s_cmp_eq_u32 s30, 3')
                a('s_cselect_b32 s71, 99, s71')
                a('s_cmp_ge_u32 s71, 10')
                a('s_cselect_b32 s69, 1, 0')
                a('s_mul_i32 s70, s69, 10')
                a('s_sub_u32 s70, s71, s70')
                a('s_lshl_b32 s68, s31, 1')
                a('s_add_u32 s68, s68, s69')
                a('s_mul_i32 s68, s68, 10')
                a('s_add_u32 s68, s68, s70')
                a('s_lshl_b32 s68, s68, 12')
                a(f's_add_u32 s68, s68, {WS_E4}')
                a('s_mul_i32 s69, s69, 1280')
                a('s_mul_i32 s81, s31, 160')
                a('s_add_u32 s69, s69, s81')
                a('s_lshl_b32 s70, s70, 4')
                a('s_add_u32 s70, s69, s70')
                a('v_and_b32 v234, 7, v0')
            else:
                a('s_mov_b32 s71, s35')
                a('s_cmp_ge_u32 s35, 5')
                a('s_cselect_b32 s69, 1, 0')
                a('s_mul_i32 s70, s69, 5')
                a('s_sub_u32 s70, s35, s70')
                a('s_lshl_b32 s68, s31, 1')
                a('s_add_u32 s68, s68, s69')
                a('s_mul_i32 s68, s68, 5')
                a('s_add_u32 s68, s68, s70')
                a('s_lshl_b32 s68, s68, 13')
                a(f's_add_u32 s68, s68, {WS_E4}')
                a('s_mul_i32 s69, s69, 1280')
                a('s_mul_i32 s81, s31, 160')
                a('s_add_u32 s69, s69, s81')
                a('s_lshl_b32 s70, s70, 5')
                a('s_add_u32 s70, s69, s70')
            a('s_add_u32 s69, s68, 4096')
            self.srd(40, 4, X_BYTES)
            self.srd(44, 22, X_BYTES)
            a('v_lshlrev_b32 v235, 1, v234')
            a('v_lshlrev_b32 v234, 4, v0')
            a('buffer_load_ushort v236, v235, s[40:43], s70 offen')
            a('s_waitcnt vmcnt(0)')
            a('v_lshlrev_b32 v236, 16, v236')
        a(f's_mov_b32 s80, {o["spin"]}')
        a(f's_mov_b32 s62, {LOG2E}')

    def gemv_pre(self):
        a = self.a
        for t in range(2):
            a(f'ds_read_b128 v[{40+4*t}:{43+4*t}], v230 offset:{64*t}')
        a(f'ds_read_b64_tr_b16 v[72:73], v231 offset:{L_WD - L_WB}')
        a(f'ds_read_b64_tr_b16 v[74:75], v231 offset:{L_WD - L_WB + 640}')
        a(f'ds_read_b64_tr_b16 v[76:77], v232 offset:{L_WD - L_WB + 5120}')
        a(f'ds_read_b64_tr_b16 v[78:79], v232 offset:{L_WD - L_WB + 5120 + 640}')
        for t in range(6):
            a(f'ds_read_b64_tr_b16 v[{48+4*t}:{49+4*t}], v231 offset:{5120*t}')
            a(f'ds_read_b64_tr_b16 v[{50+4*t}:{51+4*t}], v231 offset:{5120*t + 640}')
        for k in (4, 5, 6, 7, 0, 1, 2, 3):
            a(f'v_mov_b32 v{80+k}, 0')
        a('s_waitcnt lgkmcnt(12)')
        for t in range(2):
            a(f'v_mfma_f32_16x16x32_bf16 v[84:87], v[{40+4*t}:{43+4*t}], v[{72+4*t}:{75+4*t}], v[84:87]')
        a('s_waitcnt lgkmcnt(0)')

    def tail(self):
        o = self.opt; a = self.a
        self.c('==== tail (all waves) ====')
        if o['noaux']:
            a('s_barrier'); a('s_barrier'); a('s_branch L_end')
        if not o['nlate']:
            a('s_barrier')
            self.stamp(5)
            a('s_cmp_ge_u32 s28, 2')
            a('s_cbranch_scc1 L_gather')
        else:
            a('s_cmp_ge_u32 s28, 2')
            a('s_cbranch_scc1 L_bar3b')
            self.label('L_pw')
            a(f'ds_read_b32 v8, v240 offset:{L_FLAG+4}')
            a('s_waitcnt lgkmcnt(0)')
            a('v_readfirstlane_b32 s56, v8')
            a('s_cmp_ge_u32 s56, 4')
            a('s_cbranch_scc0 L_pw')
            self.stamp(5)
        a(f'ds_read_b128 v[24:27], v240 offset:{L_ML}')
        a(f'ds_read_b128 v[28:31], v240 offset:{L_ML+16}')
        for cidx in range(8):
            a(f'ds_read_b64 v[{8+2*cidx}:{9+2*cidx}], v224 offset:{L_OL + 768*cidx}')
        a('s_waitcnt lgkmcnt(8)')
        a('v_max3_f32 v32, v24, v25, v26')
        a('v_max_f32 v32, v32, v27')
        for w in range(4):
            a(f'v_sub_f32 v{24+w}, v{24+w}, v32')
        for w in range(4):
            a(f'v_mul_f32 v{24+w}, s62, v{24+w}')
        for w in range(4):
            a(f'v_exp_f32 v{24+w}, v{24+w}')
        a('s_waitcnt lgkmcnt(0)')
        for w in range(4):
            a(f'v_add_f32 v{8+4*w}, v{8+4*w}, v{10+4*w}')
            a(f'v_add_f32 v{9+4*w}, v{9+4*w}, v{11+4*w}')
        a('v_mul_f32 v33, v24, v28')
        a('v_mul_f32 v236, v24, v8')
        a('v_mul_f32 v237, v24, v9')
        for w in range(1, 4):
            a(f'v_fmac_f32 v33, v{24+w}, v{28+w}')
            a(f'v_fmac_f32 v236, v{24+w}, v{8+4*w}')
            a(f'v_fmac_f32 v237, v{24+w}, v{9+4*w}')
        a('v_cndmask_b32 v236, v236, v32, s[74:75]')
        a('v_cndmask_b32 v237, v237, v33, s[74:75]')
        a('s_mov_b64 exec, s[72:73]')
        if o['local']:
            l1, l2 = self.newlab('L_pl'), self.newlab('L_pl')
            a('s_cmp_eq_u32 s87, 1')
            a(f's_cbranch_scc1 {l1}')
            a('buffer_store_dwordx4 v[236:239], v225, s[52:55], s64 offen sc1')
            a(f's_branch {l2}')
            self.label(l1)
            a('buffer_store_dwordx4 v[236:239], v225, s[52:55], s64 offen')
            self.label(l2)
        else:
            a('buffer_store_dwordx4 v[236:239], v225, s[52:55], s64 offen sc1')
        a('s_mov_b64 exec, -1')
        self.stamp(6)
        if o['nlate']:
            a('s_barrier')
            self.stamp(10)
        self.gemv_pre()
        a('s_branch L_bar4')
        self.label('L_gather')

        def o_loads(R=8):
            a(f'buffer_load_dwordx4 v[{R}:{R+3}], v226, s[52:55], s65 offen sc1')
            a(f'buffer_load_dwordx4 v[{R+4}:{R+7}], v226, s[52:55], s66 offen sc1')
            a(f'buffer_load_dwordx4 v[{R+8}:{R+11}], v227, s[52:55], s65 offen sc1')
            a(f'buffer_load_dwordx4 v[{R+12}:{R+15}], v227, s[52:55], s66 offen sc1')
        if o['nlate']:
            self.label('L_bar3b')
            a('s_barrier')
        o_loads(128 if o['pp'] & 1 else 8)
        a('s_cmp_ge_u32 s28, 5')
        a('s_cbranch_scc1 L_o_wait')
        self.gemv_pre()
        if o['pp'] & 1:
            self.label('L_o_wait')
            self.pp_poll(o_loads, 128, 96, 8, 4, [0, 1, 4, 5, 8, 9, 12, 13], o['ppst'])
        else:
            a('s_branch L_o_wait')
            self.label('L_o_poll')
            o_loads()
            self.label('L_o_wait')
            a('s_waitcnt vmcnt(0)')
            self.poll_check([8, 12, 16, 20], 'L_o_poll', sleep=o['tsleep'])
        self.stamp(6)
        a('v_max_f32 v24, v16, v20')
        self.swap_reduce('v_max_f32', 24, 25, 32)
        a('v_sub_f32 v16, v16, v24')
        a('v_sub_f32 v20, v20, v24')
        a('v_mul_f32 v16, s62, v16')
        a('v_mul_f32 v20, s62, v20')
        a('v_exp_f32 v16, v16')
        a('v_exp_f32 v20, v20')
        a('s_nop 0')
        a('v_mul_f32 v26, v16, v17')
        a('v_mul_f32 v27, v16, v8')
        a('v_mul_f32 v28, v16, v9')
        a('v_fmac_f32 v26, v20, v21')
        a('v_fmac_f32 v27, v20, v12')
        a('v_fmac_f32 v28, v20, v13')
        a('v_mov_b32 v29, v26')
        a('v_mov_b32 v30, v27')
        a('v_mov_b32 v31, v28')
        a('s_nop 0')
        a('v_permlane32_swap_b32 v26, v29')
        a('v_permlane32_swap_b32 v27, v30')
        a('v_permlane32_swap_b32 v28, v31')
        a('v_add_f32 v26, v26, v29')
        a('v_add_f32 v27, v27, v30')
        a('v_add_f32 v28, v28, v31')
        a('v_rcp_f32 v26, v26')
        a('s_nop 0')
        a('v_mul_f32 v27, v27, v26')
        a('v_mul_f32 v28, v28, v26')
        a('v_cvt_pk_bf16_f32 v27, v27, v28')
        a('ds_write_b32 v228, v27')
        if o['dbg']:
            a('s_lshl_b32 s60, s2, 10'); a(f's_add_u32 s60, s60, {WS_DBG + 0x40000 - L_ON}')
            a('buffer_store_dword v27, v228, s[52:55], s60 offen')
        a('s_waitcnt lgkmcnt(0)')
        self.label('L_bar4')
        a('s_barrier')
        self.stamp(7)
        a('s_cmp_ge_u32 s28, 5')
        a('s_cbranch_scc1 L_reduce')
        for t in range(6):
            a(f'ds_read_b128 v[{16+4*t}:{19+4*t}], v229 offset:{64*t}')
        for t in range(6):
            a(f's_waitcnt lgkmcnt({5-t})')
            a(f'v_mfma_f32_16x16x32_bf16 v[80:83], v[{16+4*t}:{19+4*t}], v[{48+4*t}:{51+4*t}], v[80:83]')
        a('v_cndmask_b32 v237, v84, v85, s[76:77]')
        a('s_mov_b32 exec_hi, 0')
        a('s_nop 5')
        a('v_cndmask_b32 v236, v80, v81, s[76:77]')
        a(f'buffer_store_dwordx4 v[236:239], v233, s[52:55], s67 offen {o["e4st"]}')
        self.stamp(8)
        a('s_branch L_end')
        self.label('L_reduce')
        a('s_cmp_lg_u32 s28, 5')
        a('s_cbranch_scc1 L_end')
        nred = 20 if o['r160'] else 10
        nld = 4 if o['r160'] else 8
        a(f's_cmp_ge_u32 s71, {nred}')
        a('s_cbranch_scc1 L_end')
        def r_loads(R=8):
            for i in range(nld):
                so = 's68' if i < 4 else 's69'
                a(f'buffer_load_dwordx4 v[{R+4*i}:{R+3+4*i}], v234, s[52:55], {so} offen offset:{1024*(i%4)} {o["e4ld"]}')
        if o['pp'] & 2:
            r_loads(128)
            self.pp_poll(r_loads, 128, 96, 8, nld, [k for i in range(nld) for k in (4*i, 4*i+1)], o['ppst'])
        else:
            self.label('L_r_poll')
            r_loads()
            a('s_waitcnt vmcnt(0)')
            self.poll_check([8 + 4 * i for i in range(nld)], 'L_r_poll', sleep=o['rsleep'])
        self.stamp(10)
        for i in range(1, nld):
            a(f'v_add_f32 v8, v8, v{8+4*i}')
            a(f'v_add_f32 v9, v9, v{9+4*i}')
        if o['r160']:
            a('s_nop 0')
            self.dpp('v_add_f32', 8, 8, 8, 'row_ror:8')
            self.dpp('v_add_f32', 9, 9, 9, 'row_ror:8')
        for which in (16, 32):
            a('v_mov_b32 v10, v8')
            a('v_mov_b32 v11, v9')
            a('s_nop 0')
            a(f'v_permlane{which}_swap_b32 v8, v10')
            a(f'v_permlane{which}_swap_b32 v9, v11')
            a('v_add_f32 v8, v8, v10')
            a('v_add_f32 v9, v9, v11')
        a('v_cvt_pk_bf16_f32 v8, v8, v9')
        a('v_lshlrev_b32 v9, 16, v8')
        a('v_add_f32 v9, v236, v9')
        a('v_cvt_pk_bf16_f32 v9, v9, v9')
        a('v_lshlrev_b32 v9, 16, v9')
        a('v_and_b32 v8, 0xffff0000, v8')
        a('v_add_f32 v9, v9, v8')
        a('v_cvt_pk_bf16_f32 v9, v9, v9')
        a(f's_mov_b64 exec, {0xff if o["r160"] else 0xffff}')
        a('buffer_store_short v9, v235, s[44:47], s70 offen')
        self.stamp(9)
        a('s_cmp_lg_u32 s35, 0'); a('s_cbranch_scc1 L_end')
        a('s_cmp_lg_u32 s31, 0'); a('s_cbranch_scc1 L_end')
        a('s_mov_b64 exec, 1')
        a(f'buffer_store_dwordx2 v[238:239], v240, s[52:55], 0 offen offset:{WS_EPOCH} sc1')


if __name__ == '__main__':
    opts = {}
    for arg in sys.argv[2:]:
        k, v = arg.split('=')
        try:
            v = eval(v)
        except Exception:
            pass
        opts[k] = v
    src = Gen(**opts).build()
    open(sys.argv[1], 'w').write(src)
    print('wrote', sys.argv[1], len(src), 'bytes')
```

```python
import sys

NAME = 'parallel_sum__mha_block_cached__swiglu_ffn__decode_kernel'

D = 640; H = 32; SK = 4096; DH = 192; F = 1536
K_BYTES = 2 * H * SK * DH * 2
WQ_BYTES = D * H * DH * 2
WO_BYTES = H * DH * D * 2
WG_BYTES = D * F * 2
WD_BYTES = F * D * 2
X_BYTES = 2 * D * 2

WS_EPOCH = 0
WS_E1 = 0x10000
WS_F1 = 0xD8000
WS_F0 = 0xDE000
WS_E2F = 0xD0000
WS_E2 = 0xE0000
WS_E3 = 0x140000
WS_E4 = 0x1C0000
WS_USED = 0x260000
WS_PR = 0x270000
WS_DBG = 0x300000
WS_SRD_BYTES = 0x800000

L_XN = 0
L_Q = 2560
L_HV = 2944
L_ON = 3200
L_ML = 3968
L_FLAG = 4032
L_OL = 4096
L_UQ = 10240
L_UF = 40960
L_WB = 56320
L_WD = 87040
LDS_BYTES = 95232

LOG2E = 0x3FB8AA3B
SCALE = 0x3D93CD3A
INV640 = 0x3ACCCCCD
EPS_BF = 0x37280000


class Gen:
    def __init__(self, **opt):
        self.L = []
        self.opt = dict(NP=4, WL=5, gran=1, ntk='nt', ntv='nt', ntw='nt', dbg=False, spin=1 << 16, stamps=False, dbgtime=False, noaux=False, sent=True, psleep=4, ffn_late=True, skipffn=False, skipw=False, smem=True, fsleep=16, tsleep=0, wend=8, wendn=4, whalf=False, nlate=6, wtrig=4, wearly=0, ntwb='', prog=False, ctrl=None, cgain=1, catom='noret', fwait=10, cpart=[1,2,4,7], cmax=3, cmin=3, cstep=1, rot=None, inter=0, local=True, rsleep=0, e4ld='sc1', e4st='sc1', e3ld='sc1', r160=True, local1=False, l1try=8, hintfl='sc1', b2at=None, b1late=4, nob1=False, wpat=None, pp=0, ppst=2, prepn=12, tlbw=0, ibs=0, dual1=0, dual3=False, prio=0, wsleep=2)
        self.opt.update(opt)
        self.lab = 0
        self.ool = []

    def a(self, s):
        self.L.append('  ' + s)

    def label(self, s):
        self.L.append(s + ':')

    def newlab(self, p='L'):
        self.lab += 1
        return f'{p}_{self.lab}'

    def c(self, s):
        self.L.append('  ; ' + s)

    def srd(self, r, base, nbytes):
        self.a(f's_mov_b32 s{r}, s{base}')
        self.a(f's_and_b32 s{r+1}, s{base+1}, 0xffff')
        self.a(f's_mov_b32 s{r+2}, {nbytes}')
        self.a(f's_mov_b32 s{r+3}, 0x20000')

    def dpp(self, op, dst, src0, src1, ctrl):
        self.a(f'{op}_dpp v{dst}, v{src0}, v{src1} {ctrl} row_mask:0xf bank_mask:0xf')

    def swap_reduce(self, op, v, t, which):
        self.a(f'v_mov_b32 v{t}, v{v}')
        self.a('s_nop 1')
        self.a(f'v_permlane{which}_swap_b32 v{v}, v{t}')
        self.a(f'{op} v{v}, v{v}, v{t}')

    def stamp(self, idx):
        if not self.opt['stamps']:
            return
        self.a('s_memrealtime s[94:95]')
        self.a('s_waitcnt lgkmcnt(0)')
        self.a(f'v_writelane_b32 v249, s94, {idx}')

    def stamp_dump(self):
        if not self.opt['stamps']:
            return
        a = self.a
        a('s_mov_b64 exec, 0xffff')
        a('s_lshl_b32 s92, s2, 3')
        a('s_add_u32 s92, s92, s28')
        a('s_lshl_b32 s92, s92, 6')
        a(f's_add_u32 s92, s92, {WS_DBG}')
        a('v_lshlrev_b32 v251, 2, v0')
        a(f'buffer_store_dword v249, v251, s[52:55], s92 offen')

    def tmark(self, i):
        if self.opt['dbgtime']:
            self.a(f's_memrealtime s[{84+2*i}:{85+2*i}]')
            self.a('s_waitcnt lgkmcnt(0)')

    def smem_poll(self, base, ntags, sleep, lo_only=False):
        a = self.a
        again, done = self.newlab('L_sp'), self.newlab('L_sd')
        miss = self.newlab('L_sm')
        self.label(again)
        a(f's_load_dwordx16 s[64:79], s[{base}:{base+1}], 0 glc')
        a('s_waitcnt lgkmcnt(0)')
        for t in range(ntags):
            if lo_only:
                a(f's_cmp_eq_u32 s{64+2*t}, s36')
            else:
                a(f's_cmp_eq_u64 s[{64+2*t}:{65+2*t}], s[36:37]')
            a(f's_cbranch_scc0 {miss}')
        a(f's_branch {done}')
        self.label(miss)
        a('s_sub_u32 s80, s80, 1')
        a('s_cmp_eq_u32 s80, 0')
        a(f's_cbranch_scc1 {done}')
        a(f's_sleep {sleep}')
        a(f's_branch {again}')
        self.label(done)

    def pp_poll(self, loads, A, B, C, n, keep, stagger):
        a = self.a
        loop, doneA, doneB = self.newlab('L_pp'), self.newlab('L_pa'), self.newlab('L_pb')

        def bad(base):
            for i in range(n):
                r = base + 4 * i
                a(f'v_cmp_ne_u64 vcc, s[36:37], v[{r+2}:{r+3}]')
                a('s_mov_b64 s[82:83], vcc' if i == 0 else 's_or_b64 s[82:83], s[82:83], vcc')
            a('s_cmp_eq_u64 s[82:83], 0')
        a(f's_sleep {stagger}')
        loads(B)
        self.label(loop)
        a(f's_waitcnt vmcnt({n})')
        bad(A)
        a(f's_cbranch_scc1 {doneA}')
        loads(A)
        a(f's_waitcnt vmcnt({n})')
        bad(B)
        a(f's_cbranch_scc1 {doneB}')
        loads(B)
        a('s_sub_u32 s80, s80, 1')
        a('s_cmp_lg_u32 s80, 0')
        a(f's_cbranch_scc1 {loop}')
        a('s_waitcnt vmcnt(0)')
        a(f's_branch {doneA}')
        self.label(doneB)
        for k in keep:
            a(f'v_mov_b32 v{C+k}, v{B+k}')
        fin = self.newlab('L_pf')
        a(f's_branch {fin}')
        self.label(doneA)
        for k in keep:
            a(f'v_mov_b32 v{C+k}, v{A+k}')
        self.label(fin)

    def poll_check(self, regs, again, cnt='s80', sleep=1):
        first = True
        for r in regs:
            self.a(f'v_cmp_ne_u64 vcc, s[36:37], v[{r+2}:{r+3}]')
            if first:
                self.a('s_mov_b64 s[82:83], vcc')
                first = False
            else:
                self.a('s_or_b64 s[82:83], s[82:83], vcc')
        done = self.newlab('L_pd')
        self.a('s_cmp_eq_u64 s[82:83], 0')
        self.a(f's_cbranch_scc1 {done}')
        self.a(f's_sub_u32 {cnt}, {cnt}, 1')
        self.a(f's_cmp_eq_u32 {cnt}, 0')
        self.a(f's_cbranch_scc1 {done}')
        if sleep:
            self.a(f's_sleep {sleep}')
        self.a(f's_branch {again}')
        self.label(done)

    def build(self):
        o = self.opt
        NP = o['NP']
        a = self.a
        doc = """
;
; (1024 keys).  The eight workgroups of a head have equal w % 8 (one XCD under round-robin dispatch: speed only).
;
;
; Hand-offs between workgroups go through d_ws as 16-byte granules {data, data, tag64}; the tag is the epoch word in
"""
        head = [l for l in doc.strip('\n').split('\n')] + [
                f'; @launch grid=(256,1,1) block=(512,1,1) lds={LDS_BYTES}',
                '.amdgcn_target "amdgcn-amd-amdhsa--gfx950"', '.text', f'.globl {NAME}', '.p2align 8',
                f'.type {NAME},@function', f'{NAME}:']
        a('s_cmp_ge_u32 s2, 256')
        a('s_cbranch_scc1 L_exit')
        if o['stamps']:
            a('v_mov_b32 v249, 0')
        a('s_load_dwordx16 s[4:19], s[0:1], 0')
        a('s_load_dwordx8 s[20:27], s[0:1], 64')
        a('v_lshrrev_b32 v1, 6, v0')
        a('v_and_b32 v0, 63, v0')
        a('s_and_b32 s29, s2, 7')
        a('v_readfirstlane_b32 s28, v1')
        a('s_lshr_b32 s34, s2, 3')
        a('s_lshr_b32 s30, s34, 3')
        a('s_and_b32 s31, s34, 7')
        a('s_lshl_b32 s35, s29, 2')
        a('s_add_u32 s35, s35, s30')
        a('s_lshr_b32 s32, s31, 2')
        a('s_and_b32 s33, s31, 3')
        a('s_lshl_b32 s56, s32, 5')
        a('s_add_u32 s56, s56, s35')
        a('s_lshl_b32 s56, s56, 12')
        a('s_lshl_b32 s57, s33, 10')
        a('s_add_u32 s56, s56, s57')
        if o['inter'] == 0:
            a('s_lshl_b32 s57, s28, 8')
        elif o['inter'] == 1:
            a('s_lshl_b32 s57, s28, 4')
        else:
            a('s_lshl_b32 s57, s28, 5')
        a('s_add_u32 s56, s56, s57')
        a('s_mul_i32 s58, s56, 384')
        a('v_lshrrev_b32 v48, 3, v0')
        a('v_mul_u32_u24 v48, 384, v48')
        a('v_and_b32 v49, 7, v0')
        a('v_lshlrev_b32 v50, 4, v49')
        a('v_add_u32 v1, v48, v50')
        a('s_waitcnt lgkmcnt(0)')
        a(f's_load_dwordx2 s[36:37], s[26:27], {WS_EPOCH}')
        self.srd(52, 26, WS_SRD_BYTES)
        self.stamp(0)
        self.tmark(0)
        a('s_cmp_ge_u32 s28, 4')
        a('s_cbranch_scc1 L_aux')
        self.stream()
        self.L += self.ool
        self.label('L_aux')
        self.aux()
        self.label('L_tail')
        self.tail()
        self.label('L_end')
        self.stamp_dump()
        self.label('L_exit')
        a('s_endpgm')
        nv = 256
        foot = ['.section .rodata,"a"', '.p2align 6', f'.amdhsa_kernel {NAME}',
                f'  .amdhsa_next_free_vgpr {nv}', '  .amdhsa_next_free_sgpr 96', f'  .amdhsa_accum_offset {nv}',
                '  .amdhsa_group_segment_fixed_size 0', '  .amdhsa_kernarg_size 96',
                '  .amdhsa_user_sgpr_count 2', '  .amdhsa_user_sgpr_kernarg_segment_ptr 1',
                '  .amdhsa_system_sgpr_workgroup_id_x 1', '  .amdhsa_float_denorm_mode_32 3',
                '.end_amdhsa_kernel']
        return '\n'.join(head + self.L + foot) + '\n'

    def stream(self):
        o = self.opt; a = self.a
        NP = o['NP']
        VOFF = 1
        M = 2
        Q = 8
        ACC = 20
        S = 32
        T = 48
        RB = 72
        assert RB + 24 * NP <= 250
        self.c('==== stream waves ====')
        if o['prio']:
            a(f's_setprio {o["prio"]}')
        self.srd(40, 6, K_BYTES)
        if o['rot']:
            ra, rb = o['rot']
            a(f's_mul_i32 s57, s2, {ra}')
            a(f's_mul_i32 s59, s28, {rb}')
            a('s_add_u32 s57, s57, s59')
            a('s_and_b32 s57, s57, 15')
            a('s_mul_i32 s57, s57, 6144')
            a('s_add_u32 s86, s58, 98304')
            a('s_add_u32 s58, s58, s57')
        a('s_mov_b32 s59, s58')
        if not o['b1late'] and not o['nob1']:
            a('s_barrier')

        def late_setup():
            self.srd(44, 8, K_BYTES)
            a(f'v_lshrrev_b32 v243, 5, v0')
            a(f's_lshl_b32 s63, s28, 1')
            a(f'v_add_u32 v243, s63, v243')
            a(f'v_mul_u32_u24 v243, 768, v243')
            a(f'v_and_b32 v{T+1}, 7, v0')
            a(f'v_lshlrev_b32 v{T+1}, 5, v{T+1}')
            a(f'v_and_b32 v{T+2}, 16, v0')
            a(f'v_add3_u32 v243, v243, v{T+1}, v{T+2}')
            a(f's_lshl_b32 s63, s28, 2')
            a(f'v_mov_b32 v244, s63')
            a(f'v_and_b32 v{T+1}, 7, v0')
            a(f'v_and_b32 v{T+2}, 1, v0')
            a(f'v_mov_b32 v{T+3}, 0xffff')
            a(f'v_mov_b32 v{T+4}, 0xffff0000')
            a(f'v_cmp_eq_u32 vcc, 1, v{T+2}')
            a(f'v_lshrrev_b32 v{T+1}, 1, v{T+1}')
            a('s_nop 0')
            a(f'v_cndmask_b32 v{T+3}, v{T+3}, v{T+4}, vcc')
            for r in range(4):
                a(f'v_cmp_eq_u32 vcc, {r}, v{T+1}')
                a('s_nop 1')
                a(f'v_cndmask_b32 v{M+r}, 0, v{T+3}, vcc')
            for i in range(12):
                a(f'v_mov_b32 v{ACC+i}, 0')

        seq = [('K', p) for p in range(16)] + [('V', p) for p in range(16)]

        def issue(idx):
            if idx >= len(seq):
                return []
            kind, p = seq[idx]
            srd = 40 if kind == 'K' else 44
            nt = o['ntk'] if kind == 'K' else o['ntv']
            R = RB + 24 * (idx % NP)
            out = []
            if kind == 'V' and p == 0:
                out.append('s_mov_b32 s59, s58')
            for g in range(2):
                if o['WL'] and o['gran'] == 3 and not (idx * 6 + 3 * g + 3 <= o['WL']):
                    out.append(f's_waitcnt vmcnt({o["WL"] - 3})')
                for i in range(3):
                    wl = o['WL']
                    if o['wend'] and idx >= 32 - o['wendn']:
                        wl = o['wend']
                    if o['whalf'] and (3 * g + i) % 2 == 1:
                        wl += 1
                    if o['wpat']:
                        w6 = [w for (st, w) in o['wpat'] if idx >= st][-1]
                        base, frac = divmod(w6, 6)
                        pat = {0: [], 1: [0], 2: [0, 3], 3: [0, 2, 4], 4: [0, 1, 3, 4], 5: [0, 1, 2, 3, 4]}[frac]
                        wl = base + (1 if (3 * g + i) in pat else 0)
                    adaptive = ((o['ctrl'] and idx - NP > o['ctrl'][1]) or (o['ibs'] and idx >= NP + 2)) and not (o['wend'] and idx >= 32 - o['wendn'])
                    r = R + 12 * g + 4 * i
                    ld = f'buffer_load_dwordx4 v[{r}:{r+3}], v{VOFF}, s[{srd}:{srd+3}], s59 offen offset:{3072*g+128*i} {nt}'
                    if adaptive:
                        n = 3 * g + i
                        lf, ls, lb = self.newlab('L_cf'), self.newlab('L_cs'), self.newlab('L_cb')
                        out.append(f's_bitcmp1_b32 s81, {n}')
                        out.append(f's_cbranch_scc1 {lf}')
                        out.append(f's_bitcmp1_b32 s81, {8 + n}')
                        out.append(f's_cbranch_scc1 {ls}')
                        out.append(f's_waitcnt vmcnt({wl - 1})')
                        out.append(ld)
                        out.append(('L', lb))
                        self.ool += [f'{lf}:', f'  s_waitcnt vmcnt({wl - 1 + o["cstep"]})', '  ' + ld, f'  s_branch {lb}',
                                     f'{ls}:', f'  s_waitcnt vmcnt({wl - 2})', '  ' + ld, f'  s_branch {lb}']
                        continue
                    if o['WL'] and o['gran'] == 1 and not (idx * 6 + 3 * g + i + 1 <= wl):
                        out.append(f's_waitcnt vmcnt({wl - 1})')
                    out.append(ld)
            if o['inter'] == 0:
                out.append('s_add_u32 s59, s59, 6144')
            elif o['inter'] == 1:
                out.append('s_add_u32 s59, s59, 24576')
            else:
                out.append(f's_add_u32 s59, s59, {6144 if p % 2 == 0 else 6144 + 3 * 12288}')
            if o['rot']:
                out.append('s_cmp_ge_u32 s59, s86')
                out.append('s_cselect_b32 s57, 98304, 0')
                out.append('s_sub_u32 s59, s59, s57')
            return out

        def emit(lst):
            for ins in lst:
                if isinstance(ins, tuple):
                    self.label(ins[1])
                else:
                    a(ins)

        def mode_read(idx):
            if o['ctrl'] and idx > o['ctrl'][1] and idx + NP < 32:
                a(f'ds_read_b32 v242, v240 offset:{L_FLAG+12}')

        def mode_get(idx):
            if o['ibs'] and idx + NP < 32:
                a('s_getreg_b32 s81, hwreg(HW_REG_IB_STS, 0, 4)')
                a(f's_cmp_le_u32 s81, {o["ibs"]}')
                a('s_cselect_b32 s81, 63, 0')
                return
            if o['ctrl'] and idx > o['ctrl'][1] and idx + NP < 32:
                a('s_waitcnt lgkmcnt(0)')
                a('v_readfirstlane_b32 s81, v242')

        def checkpoint(idx):
            if o['fwait'] and idx == o['fwait']:
                a('s_mov_b64 exec, 1')
                a(f'ds_add_u32 v240, v241 offset:{L_FLAG+16}')
                a('s_mov_b64 exec, -1')
            if o['ctrl'] and idx in o['ctrl']:
                a('s_mov_b64 exec, 1')
                a(f'ds_add_u32 v240, v241 offset:{L_FLAG+8}')
                a('s_mov_b64 exec, -1')

        pre = []
        b2at = o['b2at'] or NP
        for idx in range(b2at):
            pre += issue(idx)
        mark = len(self.L)
        late_setup()
        self.tail_prep(aux=False, tag=False)
        a('s_waitcnt lgkmcnt(0)')
        a('s_add_u32 s36, s36, 1')
        a('v_mov_b32 v238, s36')
        a('v_mov_b32 v239, s37')
        prep = self.L[mark:]
        del self.L[mark:]
        nwait = sum(1 for x in pre if x.startswith('s_waitcnt'))
        per = -(-len(prep) // max(1, min(nwait - 1, o['prepn'])))
        done_prep = False
        nld = 0
        seen_wait = False
        for ins in pre:
            if ins.startswith('buffer_load'):
                if o['b1late'] and nld == o['b1late'] and not o['nob1']:
                    a('s_barrier')
                nld += 1
            if ins.startswith('s_waitcnt'):
                if o['prog'] and not seen_wait:
                    a(ins)
                    self.stamp(11)
                    seen_wait = True
                    continue
                seen_wait = True
            a(ins)
            if ins.startswith('buffer_load') and seen_wait and prep:
                n = min(per, len(prep))
                while n < len(prep) and prep[n].strip().startswith(('s_cselect', 's_addc', 's_cbranch')):
                    n += 1
                self.L += prep[:n]
                prep = prep[n:]
        self.L += prep
        done_prep = True
        assert done_prep
        self.stamp(1)
        a('s_barrier')
        self.stamp(2)
        a(f'v_and_b32 v{T}, 7, v0')
        a(f'v_lshlrev_b32 v{T}, 4, v{T}')
        for i in range(3):
            a(f'ds_read_b128 v[{Q+4*i}:{Q+4*i+3}], v{T} offset:{L_Q + 128*i}')
        if o['local']:
            a(f'ds_read_b32 v{T+9}, v240 offset:{L_FLAG+20}')
        a(f'v_mov_b32 v{T+8}, 0xff800000')
        MX = T + 8
        a(f's_mov_b32 s60, {SCALE}')
        a(f's_mov_b32 s61, 0xffff0000')
        a(f's_mov_b32 s62, {LOG2E}')
        for idx in range(b2at, NP):
            emit(issue(idx))
        a('s_waitcnt lgkmcnt(0)')
        if o['local']:
            a(f'v_readfirstlane_b32 s87, v{T+9}')

        def outstanding_after(idx):
            last = min(idx + NP - 1, len(seq) - 1)
            return (last - idx) * 6

        for p in range(16):
            idx = p
            R = RB + 24 * (idx % NP)
            self.c(f'K pair {p}')
            mode_read(idx)
            a(f's_waitcnt vmcnt({outstanding_after(idx)})')
            A, B = T, T + 1
            a(f'v_mov_b32 v{A}, 0')
            a(f'v_mov_b32 v{B}, 0')
            for g, acc in ((0, A), (1, B)):
                for i in range(3):
                    for r in range(4):
                        a(f'v_dot2c_f32_bf16 v{acc}, v{R+12*g+4*i+r}, v{Q+4*i+r}')
            nxt = issue(idx + NP)
            late_issue = any(isinstance(x, tuple) for x in nxt)
            fill = [] if late_issue else list(nxt)

            def f(n=1):
                for _ in range(n):
                    a(fill.pop(0) if fill else 's_nop 0')
            q1 = 'quad_perm:[1,0,3,2]'; q2 = 'quad_perm:[2,3,0,1]'; hm = 'row_half_mirror'
            self.dpp('v_add_f32', A, A, A, q1)
            f(2)
            self.dpp('v_add_f32', B, B, B, q1)
            self.dpp('v_add_f32', A, A, A, q2)
            f(1)
            self.dpp('v_add_f32', B, B, B, q2)
            self.dpp('v_add_f32', A, A, A, hm)
            f(1)
            self.dpp('v_add_f32', B, B, B, hm)
            while fill:
                f(1)
            if late_issue:
                mode_get(idx)
                emit(nxt)
            checkpoint(idx)
            a(f'v_cvt_pk_bf16_f32 v{T+2}, v{A}, v{B}')
            a(f'v_lshlrev_b32 v{T+3}, 16, v{T+2}')
            a(f'v_and_b32 v{T+4}, s61, v{T+2}')
            a(f'v_mul_f32 v{T+3}, s60, v{T+3}')
            a(f'v_mul_f32 v{T+4}, s60, v{T+4}')
            a(f'v_max3_f32 v{MX}, v{MX}, v{T+3}, v{T+4}')
            a(f'v_cvt_pk_bf16_f32 v{S+p}, v{T+3}, v{T+4}')
            if o['prog'] and p == 7:
                self.stamp(12)
            if o['prog'] and p == 15:
                self.stamp(13)
        self.c('wave max')
        a('s_nop 1')
        self.dpp('v_max_f32', MX, MX, MX, 'row_ror:8')
        self.swap_reduce('v_max_f32', MX, T, 16)
        self.swap_reduce('v_max_f32', MX, T, 32)
        a(f'v_cvt_pk_bf16_f32 v{T}, v{MX}, v{MX}')
        a(f'v_lshlrev_b32 v{MX}, 16, v{T}')
        NM = T + 9
        a(f'v_mul_f32 v{NM}, s62, v{MX}')
        a(f'v_sub_f32 v{NM}, 0, v{NM}')
        LA = T + 10
        a(f'v_mov_b32 v{LA}, 0')
        if o['dbg']:
            a('s_lshl_b32 s63, s2, 2'); a('s_add_u32 s63, s63, s28'); a('s_lshl_b32 s63, s63, 12')
            a(f's_add_u32 s63, s63, {WS_DBG + 0x100000}')
            a(f'v_lshlrev_b32 v{T}, 2, v0')
            for p in range(16):
                a(f'buffer_store_dword v{S+p}, v{T}, s[52:55], s63 offen offset:{256*p}')
            a('s_waitcnt vmcnt(0)')
        PA = T + 12
        for p in range(16):
            idx = 16 + p
            R = RB + 24 * (idx % NP)
            self.c(f'V pair {p}')
            mode_read(idx)
            e0, e1 = T, T + 1
            a(f'v_lshlrev_b32 v{e0}, 16, v{S+p}')
            a(f'v_and_b32 v{e1}, s61, v{S+p}')
            a(f'v_fma_f32 v{e0}, v{e0}, s62, v{NM}')
            a(f'v_fma_f32 v{e1}, v{e1}, s62, v{NM}')
            a(f'v_exp_f32 v{e0}, v{e0}')
            a(f'v_exp_f32 v{e1}, v{e1}')
            a('s_nop 0')
            a(f'v_cvt_pk_bf16_f32 v{T+2}, v{e0}, v{e0}')
            a(f'v_cvt_pk_bf16_f32 v{T+3}, v{e1}, v{e1}')
            for r in range(4):
                a(f'v_and_b32 v{PA+r}, v{T+2}, v{M+r}')
            for r in range(4):
                a(f'v_and_b32 v{PA+4+r}, v{T+3}, v{M+r}')
            a(f'v_add_f32 v{LA}, v{LA}, v{e0}')
            a(f'v_add_f32 v{LA}, v{LA}, v{e1}')
            if o['dbg'] and False:
                pass
            a(f's_waitcnt vmcnt({outstanding_after(idx)})')
            for g in range(2):
                for i in range(3):
                    r = R + 12 * g + 4 * i
                    a(f'v_mfma_f32_16x16x32_bf16 v[{ACC+4*i}:{ACC+4*i+3}], v[{PA+4*g}:{PA+4*g+3}], v[{r}:{r+3}], v[{ACC+4*i}:{ACC+4*i+3}]')
            mode_get(idx)
            emit(issue(idx + NP))
            checkpoint(idx)
            if o['prog'] and p == 7:
                self.stamp(14)
            if o['prog'] and p == 11:
                self.stamp(15)
            if o['nlate'] and idx + NP == 31 - o['wearly']:
                a('s_mov_b64 exec, 1')
                a(f'ds_add_u32 v240, v241 offset:{L_FLAG}')
                a('s_mov_b64 exec, -1')
        self.c('wave epilogue')
        self.stamp(3)
        a('s_nop 1')
        self.dpp('v_add_f32', LA, LA, LA, 'row_ror:8')
        self.swap_reduce('v_add_f32', LA, T, 16)
        self.swap_reduce('v_add_f32', LA, T, 32)
        a('s_mov_b32 exec_lo, 0x00ff00ff')
        a('s_mov_b32 exec_hi, 0xff00ff00')
        for i in range(3):
            a(f'ds_write_b128 v243, v[{ACC+4*i}:{ACC+4*i+3}] offset:{L_OL + 256*i}')
        a('s_mov_b64 exec, 1')
        a(f'ds_write_b32 v244, v{MX} offset:{L_ML}')
        a(f'ds_write_b32 v244, v{LA} offset:{L_ML+16}')
        a('s_waitcnt lgkmcnt(0)')
        if o['nlate']:
            a(f'ds_add_u32 v240, v241 offset:{L_FLAG+4}')
        a('s_mov_b64 exec, -1')
        a('s_branch L_tail')

    def gemv_unit(self, W, XB, ntile, nstep, lastvalid, addr, rowstride, tilebytes, acc):
        a = self.a
        for t in range(nstep):
            for tile in range(ntile):
                av = addr if t < nstep - 1 else addr + 1
                base = t * 32 * rowstride + tile * tilebytes
                r = W + 4 * (tile % 4)
                a(f'ds_read_b64_tr_b16 v[{r}:{r+1}], v{av} offset:{base}')
                a(f'ds_read_b64_tr_b16 v[{r+2}:{r+3}], v{av} offset:{base + 4*rowstride}')
                if tile % 4 == 3 or tile == ntile - 1:
                    a('s_waitcnt lgkmcnt(0)')
                    for tt in range(tile - tile % 4, tile + 1):
                        rr = W + 4 * (tt % 4)
                        a(f'v_mfma_f32_16x16x32_bf16 v[{acc+4*tt}:{acc+4*tt+3}], v[{rr}:{rr+3}], v[{XB+4*t}:{XB+4*t+3}], v[{acc+4*tt}:{acc+4*tt+3}]')

    def aux(self):
        o = self.opt; a = self.a
        ntw = o['ntw']
        self.c('==== aux waves ====')
        if o['noaux']:
            a('s_barrier'); a('s_barrier'); a('s_barrier'); a('s_barrier'); a('s_branch L_end')
        a('s_sub_u32 s38, s28, 4')
        self.srd(40, 4, X_BYTES)
        a('v_lshrrev_b32 v1, 5, v0')
        a('v_and_b32 v2, 31, v0')
        a('v_mul_u32_u24 v3, 1280, v1')
        a('v_mul_u32_u24 v4, 40, v2')
        a('v_add_u32 v3, v3, v4')
        a('buffer_load_dwordx4 v[8:11], v3, s[40:43], 0 offen')
        a('buffer_load_dwordx4 v[12:15], v3, s[40:43], 0 offen offset:16')
        a('buffer_load_dwordx2 v[16:17], v3, s[40:43], 0 offen offset:32')
        a('s_cmp_eq_u32 s38, 3')
        a('s_cbranch_scc1 L_aux_ffn_ld')
        self.srd(44, 10, WQ_BYTES)
        a('v_lshrrev_b32 v4, 3, v0')
        a('v_mul_u32_u24 v4, 12288, v4')
        a('v_and_b32 v5, 7, v0')
        a('v_lshlrev_b32 v5, 4, v5')
        a('v_add_u32 v4, v4, v5')
        a('s_mul_i32 s56, s31, 983040')
        a('s_mul_i32 s57, s35, 384')
        a('s_add_u32 s56, s56, s57')
        a('s_lshl_b32 s57, s38, 7')
        a('s_add_u32 s56, s56, s57')
        a('s_mul_i32 s57, s38, 10240')
        a(f's_add_u32 s57, s57, {L_UQ}')
        for i in range(10):
            a('s_mov_b32 m0, s57')
            a('s_add_u32 s57, s57, 1024')
            a(f'buffer_load_dwordx4 v4, s[44:47], s56 offen {ntw} lds')
            a('s_add_u32 s56, s56, 98304')
        if not o['nob1']:
            a('s_barrier')
        a('s_waitcnt vmcnt(10)')
        a('s_branch L_aux_ln')
        self.label('L_aux_ffn_ld')
        if o['tlbw']:
            a('s_lshl_b32 s56, s32, 5')
            a('s_add_u32 s56, s56, s35')
            a('s_lshl_b32 s56, s56, 12')
            a('s_lshl_b32 s57, s33, 10')
            a('s_add_u32 s56, s56, s57')
            a('s_mul_i32 s58, s56, 384')

            def touch(ptr, offreg, add, dst):
                a(f's_add_u32 s60, s{ptr}, {offreg}')
                a(f's_addc_u32 s61, s{ptr+1}, 0')
                a(f's_load_dword s{dst}, s[60:61], {add}')
            touch(8, 's58', 0, 64)
            touch(8, 's58', 393212, 65)
            touch(6, 's58', 393212, 66)
            if o['tlbw'] > 1:
                a('s_mul_i32 s58, s35, 245760')
                touch(12, 's58', 0, 67)
                touch(12, 's58', 245756, 68)
                a('s_mul_i32 s58, s35, 61440')
                touch(20, 's58', 0, 69)
                a('s_and_b32 s58, s34, 15')
                a('s_mul_i32 s58, s58, 122880')
                a('s_cmp_ge_u32 s34, 16')
                a('s_cselect_b32 s62, s18, s16')
                a('s_cselect_b32 s63, s19, s17')
                touch(62, 's58', 0, 70)
                touch(62, 's58', 122876, 71)
        a('s_cmp_ge_u32 s34, 16')
        a('s_cselect_b32 s56, s18, s16')
        a('s_cselect_b32 s57, s19, s17')
        self.srd(44, 56, WG_BYTES)
        def ffn_dma():
            for i in range(3):
                a(f'v_add_u32 v43, {64*i}, v0')
                a('v_mul_u32_u24 v44, 2731, v43')
                a('v_lshrrev_b32 v44, 16, v44')
                a('v_mul_u32_u24 v45, 24, v44')
                a('v_sub_u32 v43, v43, v45')
                a('v_mul_u32_u24 v44, 3072, v44')
                a('v_lshlrev_b32 v43, 4, v43')
                a(f'v_add_u32 v{40+i}, v43, v44')
            a('s_and_b32 s56, s34, 15')
            a('s_mul_i32 s56, s56, 122880')
            a('s_mul_i32 s57, s29, 384')
            a('s_add_u32 s56, s56, s57')
            a(f's_mov_b32 s57, {L_UF}')
            for i in range(15):
                a('s_mov_b32 m0, s57')
                a('s_add_u32 s57, s57, 1024')
                a(f'buffer_load_dwordx4 v{40+i%3}, s[44:47], s56 offen {ntw} lds')
                if i % 3 == 2:
                    a('s_add_u32 s56, s56, 24576')
        if not o['ffn_late']:
            ffn_dma()
            a('s_barrier')
            a('s_waitcnt vmcnt(15)')
        else:
            if o['local1']:
                a('v_mov_b32 v43, 0')
                a(f'ds_write_b32 v43, v43 offset:{L_FLAG+24}')
                a('s_waitcnt lgkmcnt(0)')
            if not o['nob1']:
                a('s_barrier')
            if o['local1']:
                a('s_waitcnt lgkmcnt(0)')
                a('s_add_u32 s36, s36, 1')
                a('s_getreg_b32 s39, hwreg(HW_REG_XCC_ID, 0, 4)')
                a('s_add_u32 s39, s39, 1')
                a('s_lshl_b32 s39, s39, 24')
                a('s_add_u32 s39, s39, s37')
                a('v_mov_b32 v44, s36')
                a('v_mov_b32 v45, s39')
                a('v_mov_b32 v46, 0')
                a('s_lshl_b32 s56, s35, 7')
                a('s_lshl_b32 s57, s31, 3')
                a('s_add_u32 s56, s56, s57')
                a(f's_add_u32 s56, s56, {WS_F0}')
                a('s_mov_b64 exec, 1')
                a('buffer_store_dwordx2 v[44:45], v46, s[52:55], s56 offen sc1')
                a('s_mov_b64 exec, -1')
                a('s_lshl_b32 s56, s35, 7')
                a(f's_add_u32 s56, s56, {WS_F0}')
                a('s_add_u32 s58, s26, s56')
                a('s_addc_u32 s59, s27, 0')
                a(f's_mov_b32 s81, {o["l1try"]}')
                lt, ld = self.newlab('L_l1'), self.newlab('L_l1d')
                self.label(lt)
                a('s_sleep 4')
                a('s_load_dwordx16 s[64:79], s[58:59], 0 glc')
                a('s_waitcnt lgkmcnt(0)')
                a('s_mov_b32 s87, 1')
                for t in range(8):
                    a(f's_cmp_eq_u32 s{64+2*t}, s36')
                    a('s_cselect_b32 s87, s87, 0')
                    a(f's_cmp_eq_u32 s{65+2*t}, s39')
                    a('s_cselect_b32 s87, s87, 0')
                a('s_cmp_eq_u32 s87, 1')
                a(f's_cbranch_scc1 {ld}')
                a('s_sub_u32 s81, s81, 1')
                a('s_cmp_lg_u32 s81, 0')
                a(f's_cbranch_scc1 {lt}')
                self.label(ld)
                a('v_mov_b32 v43, 0')
                a('v_mov_b32 v44, s87')
                a(f'ds_write_b32 v43, v44 offset:{L_FLAG+24}')
            a('s_waitcnt vmcnt(1)' if o['local1'] else 's_waitcnt vmcnt(0)')
        self.label('L_aux_ln')
        self.stamp(1)
        X = 20
        for k in range(10):
            a(f'v_lshlrev_b32 v{X+2*k}, 16, v{8+k}')
            a(f'v_and_b32 v{X+2*k+1}, 0xffff0000, v{8+k}')
        a(f'v_add_f32 v44, v{X}, v{X+1}')
        a(f'v_add_f32 v45, v{X+2}, v{X+3}')
        for k in range(2, 10):
            a(f'v_add_f32 v{44+k%2}, v{44+k%2}, v{X+2*k}')
            a(f'v_add_f32 v{44+k%2}, v{44+k%2}, v{X+2*k+1}')
        a('v_add_f32 v44, v44, v45')

        def red32(v):
            for ctrl in ('quad_perm:[1,0,3,2]', 'quad_perm:[2,3,0,1]', 'row_half_mirror', 'row_mirror'):
                a('s_nop 1')
                self.dpp('v_add_f32', v, v, v, ctrl)
            self.swap_reduce('v_add_f32', v, 47, 16)
        red32(44)
        a(f's_mov_b32 s56, {INV640}')
        a('v_mul_f32 v44, s56, v44')
        a('v_mov_b32 v45, 0')
        a('v_mov_b32 v46, 0')
        for k in range(20):
            a(f'v_sub_f32 v48, v{X+k}, v44')
            a(f'v_fmac_f32 v{45+k%2}, v48, v48')
        a('v_add_f32 v45, v45, v46')
        red32(45)
        a('v_mul_f32 v45, s56, v45')
        a('v_cvt_pk_bf16_f32 v46, v44, v45')
        a('v_lshlrev_b32 v44, 16, v46')
        a('v_and_b32 v45, 0xffff0000, v46')
        a(f'v_add_f32 v45, {EPS_BF}, v45')
        a('v_cvt_pk_bf16_f32 v45, v45, v45')
        a('v_and_b32 v45, 0xffff0000, v45')
        a('v_sqrt_f32 v45, v45')
        a('s_nop 0')
        a('v_cvt_pk_bf16_f32 v45, v45, v45')
        a('v_and_b32 v45, 0xffff0000, v45')
        a('v_rcp_f32 v45, v45')
        for k in range(10):
            a(f'v_sub_f32 v48, v{X+2*k}, v44')
            a(f'v_sub_f32 v49, v{X+2*k+1}, v44')
            a('v_cvt_pk_bf16_f32 v48, v48, v49')
            a('v_and_b32 v49, 0xffff0000, v48')
            a('v_lshlrev_b32 v48, 16, v48')
            a('v_mul_f32 v48, v48, v45')
            a('v_mul_f32 v49, v49, v45')
            a(f'v_cvt_pk_bf16_f32 v{8+k}, v48, v49')
        for k in range(5):
            a(f'ds_write_b64 v3, v[{8+2*k}:{9+2*k}] offset:{L_XN + 8*k}')
        a('v_and_b32 v4, 15, v0')
        a('v_lshrrev_b32 v5, 4, v0')
        a('v_and_b32 v6, 1, v0')
        a('v_mul_u32_u24 v6, 1280, v6')
        a('v_lshlrev_b32 v7, 4, v5')
        a('v_add_u32 v6, v6, v7')
        a('v_lshlrev_b32 v50, 3, v5')
        a('v_lshrrev_b32 v51, 2, v4')
        a('v_add_u32 v50, v50, v51')
        a('v_and_b32 v51, 3, v4')
        a('v_lshlrev_b32 v51, 3, v51')
        a('s_waitcnt lgkmcnt(0)')
        a('s_cmp_eq_u32 s38, 3')
        a('s_cbranch_scc1 L_aux_ffn')

        XB = 8
        a('s_mul_i32 s56, s31, 160')
        a('v_add_u32 v6, s56, v6')
        for t in range(3):
            a(f'ds_read_b128 v[{XB+4*t}:{XB+4*t+3}], v6 offset:{L_XN + 64*t}')
        a('s_mul_i32 s56, s38, 10240')
        a(f's_add_u32 s56, s56, {L_UQ}')
        a('v_lshlrev_b32 v52, 7, v50')
        a('v_add3_u32 v52, v52, v51, s56')
        a('v_cmp_le_u32 vcc, 2, v5')
        a('v_subrev_u32 v53, 2048, v52')
        a('s_nop 0')
        a('v_cndmask_b32 v53, v52, v53, vcc')
        ACC = 24
        for k in range(16):
            a(f'v_mov_b32 v{ACC+k}, 0')
        a('s_waitcnt lgkmcnt(0)')
        for r in range(4):
            a(f'v_cndmask_b32 v{XB+8+r}, v{XB+8+r}, 0, vcc')
        if o['local1']:
            a('s_add_u32 s36, s36, 1')
            a('s_getreg_b32 s39, hwreg(HW_REG_XCC_ID, 0, 4)')
            a('s_add_u32 s39, s39, 1')
            a('s_lshl_b32 s39, s39, 24')
            a('s_add_u32 s39, s39, s37')
        a('s_waitcnt vmcnt(0)')
        self.stamp(2)
        self.gemv_unit(W=56, XB=XB, ntile=4, nstep=3, lastvalid=2, addr=52, rowstride=128, tilebytes=32, acc=ACC)
        a('v_and_b32 v6, 1, v4')
        a('v_mul_u32_u24 v6, 12288, v6')
        a('v_lshrrev_b32 v7, 1, v4')
        a('v_lshl_add_u32 v7, v5, 1, v7')
        a('v_lshlrev_b32 v7, 4, v7')
        a('v_add_u32 v6, v6, v7')
        a('s_mul_i32 s56, s35, 24576')
        a('s_lshl_b32 s57, s38, 12')
        a('s_add_u32 s56, s56, s57')
        a('s_lshl_b32 s57, s31, 9')
        a('s_add_u32 s56, s56, s57')
        a(f's_add_u32 s56, s56, {WS_E1}')
        a('v_and_b32 v7, 2, v4')
        a('v_cmp_eq_u32 vcc, 2, v7')
        a('s_waitcnt lgkmcnt(0)')
        if not o['local1']:
            a('s_add_u32 s36, s36, 1')
        a('v_mov_b32 v10, s36')
        a('v_mov_b32 v11, s37')
        a('s_nop 7')
        a('s_mov_b64 s[84:85], exec')
        def e1_publish(fl):
            a('s_mov_b32 exec_lo, 0x000f000f')
            a('s_mov_b32 exec_hi, 0x000f000f')
            for tile in range(4):
                a(f'v_cndmask_b32 v8, v{ACC+4*tile}, v{ACC+4*tile+2}, vcc')
                a(f'v_cndmask_b32 v9, v{ACC+4*tile+1}, v{ACC+4*tile+3}, vcc')
                a(f'buffer_store_dwordx4 v[8:11], v6, s[52:55], s56 offen offset:{128*tile} {fl}')
                if o['dual1'] & 1:
                    a(f'buffer_store_dwordx4 v[8:11], v6, s[52:55], s56 offen offset:{128*tile}')
                a('s_nop 1')
            if o['smem']:
                a('s_mul_i32 s56, s35, 768')
                a('s_lshl_b32 s57, s38, 7')
                a('s_add_u32 s56, s56, s57')
                a('s_lshl_b32 s57, s31, 3')
                a('s_add_u32 s56, s56, s57')
                a(f's_add_u32 s56, s56, {WS_F1}')
                a('s_mov_b64 exec, 3')
                a('v_mul_u32_u24 v7, 384, v0')
                if o['local']:
                    if not o['local1']:
                        a('s_getreg_b32 s39, hwreg(HW_REG_XCC_ID, 0, 4)')
                        a('s_add_u32 s39, s39, 1')
                        a('s_lshl_b32 s39, s39, 24')
                        a('s_add_u32 s39, s39, s37')
                    a('v_mov_b32 v9, s39')
                    a('v_mov_b32 v8, s36')
                    a(f'buffer_store_dwordx2 v[8:9], v7, s[52:55], s56 offen {o["hintfl"] if o["hintfl"] is not None else fl}')
                    if o['dual1'] & 2:
                        a('buffer_store_dwordx2 v[8:9], v7, s[52:55], s56 offen')
                else:
                    a(f'buffer_store_dwordx2 v[10:11], v7, s[52:55], s56 offen {fl}')
                    if o['dual1'] & 2:
                        a('buffer_store_dwordx2 v[10:11], v7, s[52:55], s56 offen')
        if o['local1']:
            l1, l2 = self.newlab('L_e1'), self.newlab('L_e1')
            a('v_mov_b32 v43, 0')
            a(f'ds_read_b32 v43, v43 offset:{L_FLAG+24}')
            a('s_waitcnt lgkmcnt(0)')
            a('v_readfirstlane_b32 s87, v43')
            a('s_cmp_eq_u32 s87, 1')
            a(f's_cbranch_scc1 {l1}')
            e1_publish('sc1')
            a(f's_branch {l2}')
            self.label(l1)
            e1_publish('')
            self.label(l2)
        else:
            e1_publish('sc1')
        a('s_mov_b64 exec, s[84:85]')
        self.stamp(3)
        a('s_mul_i32 s56, s35, 24576')
        a('s_mul_i32 s57, s32, 12288')
        a('s_add_u32 s56, s56, s57')
        a('s_lshl_b32 s57, s38, 12')
        a('s_add_u32 s56, s56, s57')
        a(f's_add_u32 s56, s56, {WS_E1}')
        a(f's_mov_b32 s80, {o["spin"]}')
        if o['smem']:
            a('s_mul_i32 s57, s35, 768')
            a('s_mul_i32 s58, s32, 384')
            a('s_add_u32 s57, s57, s58')
            a('s_lshl_b32 s58, s38, 7')
            a('s_add_u32 s57, s57, s58')
            a(f's_add_u32 s57, s57, {WS_F1}')
            a('s_add_u32 s58, s26, s57')
            a('s_addc_u32 s59, s27, 0')
            self.smem_poll(58, 8, o['psleep'], lo_only=o['local'])
            if o['local']:
                a('s_mov_b32 s57, 1')
                for t in range(8):
                    a(f's_cmp_eq_u32 s{65+2*t}, s39')
                    a('s_cselect_b32 s57, s57, 0')
                a('v_mov_b32 v7, s57')
                a('v_mov_b32 v6, 0')
                a(f'ds_write_b32 v6, v7 offset:{L_FLAG+20}')
        elif o['sent']:
            a('v_lshlrev_b32 v6, 9, v0')
            a('v_add_u32 v6, 496, v6')
            a('s_mov_b64 exec, 0xff')
            self.label('L_q_sent')
            a('buffer_load_dwordx4 v[24:27], v6, s[52:55], s56 offen sc1')
            a('s_waitcnt vmcnt(0)')
            self.poll_check([24], 'L_q_sent', sleep=o['psleep'])
            a('s_mov_b64 exec, -1')
        a('v_lshlrev_b32 v6, 4, v0')
        self.label('L_q_poll')
        for i in range(4):
            a(f'buffer_load_dwordx4 v[{24+4*i}:{27+4*i}], v6, s[52:55], s56 offen offset:{1024*i} sc1')
        a('s_waitcnt vmcnt(0)')
        self.poll_check([24, 28, 32, 36], 'L_q_poll')
        a('v_add_f32 v24, v24, v28')
        a('v_add_f32 v25, v25, v29')
        a('v_add_f32 v32, v32, v36')
        a('v_add_f32 v33, v33, v37')
        a('v_add_f32 v24, v24, v32')
        a('v_add_f32 v25, v25, v33')
        self.swap_reduce('v_add_f32', 24, 26, 32)
        self.swap_reduce('v_add_f32', 25, 26, 32)
        a('v_cvt_pk_bf16_f32 v24, v24, v25')
        a('v_and_b32 v6, 31, v0')
        a('v_lshlrev_b32 v6, 2, v6')
        a('s_lshl_b32 s57, s38, 7')
        a('v_add_u32 v6, s57, v6')
        a(f'ds_write_b32 v6, v24 offset:{L_Q}')
        if o['dbg']:
            a('s_lshl_b32 s56, s2, 9'); a(f's_add_u32 s56, s56, {WS_DBG}')
            a('buffer_store_dword v24, v6, s[52:55], s56 offen')
        if o['nlate'] or o['fwait']:
            a('v_mov_b32 v7, 0')
            a(f'ds_write_b32 v7, v7 offset:{L_FLAG+16}')
            a(f'ds_write_b32 v7, v7 offset:{L_FLAG}')
            a(f'ds_write_b32 v7, v7 offset:{L_FLAG+4}')
            a(f'ds_write_b32 v7, v7 offset:{L_FLAG+8}')
            a(f'ds_write_b32 v7, v7 offset:{L_FLAG+12}')
        a('s_waitcnt lgkmcnt(0)')
        self.stamp(4)
        a('s_barrier')
        self.tmark(1)
        self.wb_setup()
        self.wb_early()
        self.tail_prep(aux=True)
        if o['ctrl']:
            self.controller()
        if o['nlate']:
            a('s_branch L_wlate')
        a('s_waitcnt vmcnt(0)')
        a('s_branch L_tail')

        self.label('L_aux_ffn')
        a('s_and_b32 s56, s34, 15')
        a('s_mul_i32 s56, s56, 80')
        a('v_add_u32 v6, s56, v6')
        for t in range(2):
            a(f'ds_read_b128 v[{XB+4*t}:{XB+4*t+3}], v6 offset:{L_XN + 64*t}')
        a('v_mul_u32_u24 v52, 384, v50')
        a(f'v_add_u32 v52, {L_UF}, v52')
        a('v_add_u32 v52, v52, v51')
        a('v_lshrrev_b32 v53, 2, v4')
        a('v_mul_u32_u24 v53, 384, v53')
        a(f'v_add_u32 v53, {L_UF}, v53')
        a('v_add_u32 v53, v53, v51')
        a('v_cmp_le_u32 vcc, 1, v5')
        FACC = 64
        for k in range(48):
            a(f'v_mov_b32 v{FACC+k}, 0')
        a('s_waitcnt lgkmcnt(0)')
        for r in range(4):
            a(f'v_cndmask_b32 v{XB+4+r}, v{XB+4+r}, 0, vcc')
        if o['ffn_late']:
            a('s_barrier')
            if o['skipffn']:
                if not o['local1']:
                    a('s_add_u32 s36, s36, 1')
                self.tail_prep(aux=True)
                a('s_branch L_tail')
            ffn_dma()
        a('s_waitcnt vmcnt(0)')
        self.gemv_unit(W=24, XB=XB, ntile=12, nstep=2, lastvalid=1, addr=52, rowstride=384, tilebytes=32, acc=FACC)
        a('v_and_b32 v6, 1, v4')
        a('v_mul_u32_u24 v6, 192, v6')
        a('v_lshlrev_b32 v7, 4, v5')
        a('v_add_u32 v6, v6, v7')
        a('s_mul_i32 s56, s29, 49152')
        a('s_mul_i32 s57, s34, 384')
        a('s_add_u32 s56, s56, s57')
        a(f's_add_u32 s56, s56, {WS_E2}')
        if not o['local1']:
            a('s_add_u32 s36, s36, 1')
        a('s_nop 7')
        a('s_mov_b32 exec_lo, 0x00030003')
        a('s_mov_b32 exec_hi, 0x00030003')
        for tile in range(12):
            r = tile // 3
            if tile % 3 == 0 and tile:
                a('s_add_u32 s56, s56, 12288')
            a(f'buffer_store_dwordx4 v[{FACC+4*tile}:{FACC+4*tile+3}], v6, s[52:55], s56 offen offset:{64*(tile%3)} sc1')
        a('s_mov_b64 exec, -1')
        if not o['ffn_late']:
            a('s_barrier')
        a('s_waitcnt vmcnt(0)')
        a('v_mov_b32 v8, s36')
        a('v_mov_b32 v9, s37')
        a('s_lshl_b32 s56, s29, 8')
        a('s_lshl_b32 s57, s34, 3')
        a('s_add_u32 s57, s57, s56')
        a(f's_add_u32 s57, s57, {WS_E2F}')
        a(f's_add_u32 s56, s56, {WS_E2F}')
        a('v_mov_b32 v10, 0')
        a('s_mov_b64 exec, 1')
        a('buffer_store_dwordx2 v[8:9], v10, s[52:55], s57 offen sc1')
        a('s_mov_b64 exec, -1')
        a(f's_mov_b32 s80, {o["spin"]}')
        if o['fwait']:
            lab, go = self.newlab('L_fw'), self.newlab('L_fg')
            a('v_mov_b32 v12, 0')
            self.label(lab)
            a(f'ds_read_b32 v13, v12 offset:{L_FLAG+16}')
            a('s_waitcnt lgkmcnt(0)')
            a('v_readfirstlane_b32 s57, v13')
            a('s_cmp_ge_u32 s57, 1')
            a(f's_cbranch_scc1 {go}')
            a('s_sleep 8')
            a(f's_branch {lab}')
            self.label(go)
        if o['smem']:
            a('s_add_u32 s58, s26, s56')
            a('s_addc_u32 s59, s27, 0')
            for c4 in range(4):
                self.smem_poll(58, 8, o['fsleep'])
                if c4 < 3:
                    a('s_add_u32 s58, s58, 64')
                    a('s_addc_u32 s59, s59, 0')
        else:
            a('v_and_b32 v10, 31, v0')
            a('v_lshlrev_b32 v10, 3, v10')
            self.label('L_f_poll')
            a('buffer_load_dwordx2 v[14:15], v10, s[52:55], s56 offen sc1')
            a('s_waitcnt vmcnt(0)')
            self.poll_check([12], 'L_f_poll')
        a('v_and_b32 v10, 31, v0')
        a('v_min_u32 v11, 23, v10')
        a('v_lshlrev_b32 v11, 4, v11')
        a('v_lshrrev_b32 v12, 5, v0')
        a('v_mul_u32_u24 v12, 6144, v12')
        a('v_add_u32 v11, v11, v12')
        a('s_mul_i32 s56, s29, 49152')
        a('s_mul_i32 s57, s30, 12288')
        a('s_add_u32 s56, s56, s57')
        a(f's_add_u32 s56, s56, {WS_E2}')
        for i in range(16):
            a(f'buffer_load_dwordx4 v[{64+4*i}:{67+4*i}], v11, s[52:55], s56 offen offset:{384*(i%8)} sc1')
            if i == 7:
                a('s_add_u32 s56, s56, 3072')
        a('s_waitcnt vmcnt(0)')
        for i in range(1, 16):
            for r in range(4):
                a(f'v_add_f32 v{64+r}, v{64+r}, v{64+4*i+r}')
        a('v_cvt_pk_bf16_f32 v64, v64, v65')
        a('v_cvt_pk_bf16_f32 v65, v66, v67')
        a('v_mov_b32 v68, v64')
        a('v_mov_b32 v69, v65')
        a('s_nop 1')
        a('v_permlane32_swap_b32 v64, v68')
        a('v_permlane32_swap_b32 v65, v69')
        for p in range(2):
            g, u = 64 + p, 68 + p
            a(f'v_lshlrev_b32 v72, 16, v{g}')
            a(f'v_and_b32 v73, 0xffff0000, v{g}')
            for t in (72, 73):
                a(f'v_mul_f32 v74, {0xBFB8AA3B}, v{t}')
                a('v_exp_f32 v74, v74')
                a('s_nop 0')
                a('v_add_f32 v74, 1.0, v74')
                a('v_rcp_f32 v74, v74')
                a('s_nop 0')
                a(f'v_mul_f32 v{t}, v{t}, v74')
            a('v_cvt_pk_bf16_f32 v72, v72, v73')
            a('v_and_b32 v73, 0xffff0000, v72')
            a('v_lshlrev_b32 v72, 16, v72')
            a(f'v_and_b32 v75, 0xffff0000, v{u}')
            a(f'v_lshlrev_b32 v74, 16, v{u}')
            a('v_mul_f32 v72, v72, v74')
            a('v_mul_f32 v73, v73, v75')
            a(f'v_cvt_pk_bf16_f32 v{76+p}, v72, v73')
        a('v_cmp_le_u32 vcc, 12, v10')
        a('v_subrev_u32 v11, 12, v10')
        a('s_nop 0')
        a('v_cndmask_b32 v11, v10, v11, vcc')
        a('v_lshlrev_b32 v11, 3, v11')
        a('v_add_u32 v12, 128, v11')
        a('v_cndmask_b32 v11, v11, v12, vcc')
        a('v_subrev_u32 v12, 24, v10')
        a('v_lshrrev_b32 v13, 2, v12')
        a('v_lshlrev_b32 v13, 7, v13')
        a('v_and_b32 v12, 3, v12')
        a('v_lshl_add_u32 v12, v12, 3, v13')
        a('v_add_u32 v12, 96, v12')
        a('v_cmp_le_u32 vcc, 24, v10')
        a('s_nop 1')
        a('v_cndmask_b32 v11, v11, v12, vcc')
        a('v_cndmask_b32 v76, v76, 0, vcc')
        a('v_cndmask_b32 v77, v77, 0, vcc')
        a('s_mov_b32 exec_hi, 0')
        a(f'ds_write_b64 v11, v[76:77] offset:{L_HV}')
        a('s_mov_b64 exec, -1')
        a('s_waitcnt lgkmcnt(0)')
        self.stamp(4)
        self.tail_prep(aux=True)
        if o['nlate']:
            self.wb_setup()
            self.label('L_wlate')
            self.wb_late()
            a('s_waitcnt vmcnt(0)')
            a('s_branch L_bar3b')
        a('s_branch L_tail')

    def controller(self):
        o = self.opt; a = self.a
        skip = self.newlab('L_ct')
        a('s_cmp_lg_u32 s38, 2')
        a(f's_cbranch_scc1 {skip}')
        pat = {0: 0, 1: 0b000001, 2: 0b001001, 3: 0b010101, 4: 0b011011, 5: 0b011111, 6: 0b111111}
        parts = o['cpart']
        for j, px in enumerate(parts):
            a(f's_xor_b32 s56, s2, {px}')
            a('s_lshl_b32 s56, s56, 7')
            a(f's_add_u32 s56, s56, {WS_PR}')
            a(f's_add_u32 s{8+2*j}, s26, s56')
            a(f's_addc_u32 s{9+2*j}, s27, 0')
        a('s_lshl_b32 s63, s2, 7')
        a(f's_add_u32 s63, s63, {WS_PR}')
        for k, ck in enumerate(o['ctrl']):
            lab, go, done = self.newlab('L_cw'), self.newlab('L_cg'), self.newlab('L_cd')
            self.label(lab)
            a(f'ds_read_b32 v5, v240 offset:{L_FLAG+8}')
            a('s_waitcnt lgkmcnt(0)')
            a('v_readfirstlane_b32 s56, v5')
            a(f's_cmp_ge_u32 s56, {4*k + 2}')
            a(f's_cbranch_scc1 {go}')
            a('s_sleep 4')
            a(f's_branch {lab}')
            self.label(go)
            a('s_memrealtime s[60:61]')
            if k:
                for j in range(len(parts)):
                    a(f's_load_dwordx2 s[{16+2*j}:{17+2*j}], s[{8+2*j}:{9+2*j}], {8*(k-1)} glc')
            a('s_waitcnt lgkmcnt(0)')
            a('s_mov_b64 exec, 1')
            a('v_mov_b32 v6, s60')
            a('v_mov_b32 v7, s36')
            a(f'buffer_store_dwordx2 v[6:7], v240, s[52:55], s63 offen offset:{8*k} sc1')
            if k:
                a('s_mov_b32 s56, 0')
                a('s_sub_u32 s57, s93, s60')
                for j in range(len(parts)):
                    a(f's_sub_u32 s58, s93, s{16+2*j}')
                    a(f's_cmp_eq_u32 s{17+2*j}, s36')
                    a('s_cselect_b32 s58, s58, s57')
                    a('s_add_u32 s56, s56, s58')
                trem = (32 - ck) * 85
                kk = int(round(6 * o['WL'] * o['cgain'] / trem / len(parts) * 65536))
                a(f's_mul_i32 s56, s56, {kk}')
                a('s_add_u32 s56, s56, 32768')
                a('s_ashr_i32 s56, s56, 16')
                for lv in range(-o['cmin'], o['cmax'] + 1):
                    bits = pat[lv] if lv >= 0 else pat[-lv] << 8
                    a(f's_mov_b32 s57, {bits}')
                    if lv < o['cmax']:
                        a(f's_cmp_le_i32 s56, {lv}')
                        a(f's_cbranch_scc1 {done}')
                self.label(done)
                a('v_mov_b32 v5, s57')
                a(f'ds_write_b32 v240, v5 offset:{L_FLAG+12}')
            a('s_mov_b32 s93, s60')
            a('s_mov_b64 exec, -1')
        self.label(skip)

    def wb_setup(self):
        a = self.a
        for i in range(5):
            a(f'v_add_u32 v5, {64*i}, v0')
            a('v_mul_u32_u24 v6, 6554, v5')
            a('v_lshrrev_b32 v6, 16, v6')
            a('v_mul_u32_u24 v7, 10, v6')
            a('v_sub_u32 v5, v5, v7')
            a('v_mul_u32_u24 v6, 1280, v6')
            a('v_lshlrev_b32 v5, 4, v5')
            a(f'v_add_u32 v{40+i}, v5, v6')
        self.srd(48, 12, WO_BYTES)
        self.srd(88, 20, WD_BYTES)

    def wb_period(self, preg):
        o = self.opt; a = self.a
        a('s_mul_i32 s56, s35, 245760')
        a('s_mul_i32 s57, s31, 160')
        a('s_add_u32 s56, s56, s57')
        a(f's_mul_i32 s57, {preg}, 40960')
        a('s_add_u32 s56, s56, s57')
        a(f's_mul_i32 s57, {preg}, 5120')
        a(f's_add_u32 s57, s57, {L_WB}')
        for i in range(5):
            a('s_mov_b32 m0, s57')
            a('s_add_u32 s57, s57, 1024')
            a(f'buffer_load_dwordx4 v{40+i}, s[48:51], s56 offen {o["ntwb"]} lds')

    def wb_early(self):
        o = self.opt; a = self.a
        nearly = 6 - o['nlate']
        for t in range((nearly + 2) // 3):
            lab = self.newlab('L_we')
            a(f's_add_u32 s58, s38, {3*t}')
            a(f's_cmp_lt_u32 s58, {nearly}')
            a(f's_cbranch_scc0 {lab}')
            self.wb_period('s58')
            self.label(lab)
        a('s_mul_i32 s56, s35, 61440')
        a('s_mul_i32 s57, s31, 160')
        a('s_add_u32 s56, s56, s57')
        lab0, lab1, labd = self.newlab('L_wd'), self.newlab('L_wd'), self.newlab('L_wd')
        a('s_cmp_eq_u32 s38, 0'); a(f's_cbranch_scc1 {lab0}')
        a('s_cmp_eq_u32 s38, 1'); a(f's_cbranch_scc1 {lab1}')

        def dma(i):
            a(f's_mov_b32 m0, {L_WD + 1024*i}')
            a(f's_add_u32 s57, s56, {40960*(i//5)}')
            a(f'buffer_load_dwordx4 v{40+i%5}, s[88:91], s57 offen {o["ntwb"]} lds')
        dma(6); dma(7); a(f's_branch {labd}')
        self.label(lab0); dma(0); dma(1); dma(2); a(f's_branch {labd}')
        self.label(lab1); dma(3); dma(4); dma(5)
        self.label(labd)

    def wb_late(self):
        o = self.opt; a = self.a
        nlate = o['nlate']
        lab, labd0 = self.newlab('L_ww'), self.newlab('L_wv')
        self.label(lab)
        a(f'ds_read_b32 v5, v240 offset:{L_FLAG}')
        a('s_waitcnt lgkmcnt(0)')
        a('v_readfirstlane_b32 s56, v5')
        a(f's_cmp_ge_u32 s56, {o["wtrig"]}')
        a(f's_cbranch_scc1 {labd0}')
        if o['wsleep']:
            a(f's_sleep {o["wsleep"]}')
        a(f's_branch {lab}')
        self.label(labd0)
        self.stamp(11)
        for t in range((nlate + 3) // 4):
            lab = self.newlab('L_wl')
            a(f's_add_u32 s58, s38, {4*t}')
            a(f's_cmp_lt_u32 s58, {nlate}')
            a(f's_cbranch_scc0 {lab}')
            a(f's_add_u32 s58, s58, {6 - nlate}')
            self.wb_period('s58')
            self.label(lab)

    def tail_prep(self, aux, tag=True):
        o = self.opt; a = self.a
        self.c('---- tail constants ----')
        if tag:
            a('v_mov_b32 v238, s36')
            a('v_mov_b32 v239, s37')
        a('v_mov_b32 v240, 0')
        a('v_mov_b32 v241, 1')
        a('s_lshl_b32 s64, s28, 6')
        a('v_add_u32 v225, s64, v0')
        a('v_mov_b32 v224, 96')
        a('v_cmp_eq_u32 vcc, v224, v225')
        a('s_mov_b64 s[74:75], vcc')
        a('v_cmp_ge_u32 vcc, v224, v225')
        a('s_mov_b64 s[72:73], vcc')
        a('v_min_u32 v224, 95, v225')
        a('v_lshlrev_b32 v224, 3, v224')
        a('v_lshlrev_b32 v225, 4, v225')
        a('s_lshl_b32 s64, s35, 3')
        a('s_add_u32 s64, s64, s31')
        a('s_lshl_b32 s64, s64, 11')
        a(f's_add_u32 s64, s64, {WS_E3}')
        a('s_sub_u32 s65, s28, 2')
        a('s_cmp_ge_i32 s65, 3')
        a('s_cselect_b32 s66, 1, 0')
        a('s_mul_i32 s67, s66, 3')
        a('s_sub_u32 s67, s65, s67')
        a('v_lshrrev_b32 v227, 5, v0')
        a('v_lshlrev_b32 v227, 11, v227')
        a('v_and_b32 v228, 31, v0')
        a('s_lshl_b32 s68, s67, 5')
        a('v_add_u32 v226, s68, v228')
        a('v_lshl_add_u32 v226, v226, 4, v227')
        a('v_add_u32 v227, 1536, v227')
        a('s_mul_i32 s68, s66, 384')
        a('s_lshl_b32 s69, s67, 7')
        a('s_add_u32 s68, s68, s69')
        a(f's_add_u32 s68, s68, {L_ON}')
        a('v_lshl_add_u32 v228, v228, 2, s68')
        a('s_lshl_b32 s65, s35, 3')
        a('s_lshl_b32 s66, s66, 2')
        a('s_add_u32 s65, s65, s66')
        a('s_lshl_b32 s65, s65, 11')
        a(f's_add_u32 s65, s65, {WS_E3}')
        a('s_add_u32 s66, s65, 4096')
        a('v_and_b32 v234, 15, v0')
        a('v_lshrrev_b32 v235, 4, v0')
        a('v_and_b32 v236, 1, v0')
        a('v_lshlrev_b32 v237, 4, v235')
        a('v_mul_u32_u24 v229, 384, v236')
        a('v_add_u32 v229, v229, v237')
        a(f'v_add_u32 v229, {L_ON}, v229')
        a('v_lshlrev_b32 v230, 7, v236')
        a('v_add_u32 v230, v230, v237')
        a(f'v_add_u32 v230, {L_HV}, v230')
        a('v_lshlrev_b32 v231, 3, v235')
        a('v_lshrrev_b32 v232, 2, v234')
        a('v_add_u32 v231, v231, v232')
        a('v_mul_u32_u24 v231, 160, v231')
        a('v_and_b32 v232, 3, v234')
        a('v_lshlrev_b32 v232, 3, v232')
        a('s_lshl_b32 s67, s28, 5')
        a('v_add3_u32 v231, v231, v232, s67')
        a(f'v_add_u32 v231, {L_WB}, v231')
        a('v_cmp_le_u32 vcc, 2, v235')
        a('v_subrev_u32 v232, 2560, v231')
        a('s_nop 0')
        a('v_cndmask_b32 v232, v231, v232, vcc')
        a('v_and_b32 v233, 1, v235')
        a('v_mul_u32_u24 v233, 40960, v233')
        if o['r160']:
            a('v_lshrrev_b32 v237, 3, v234')
            a('v_lshl_add_u32 v233, v237, 12, v233')
            a('v_and_b32 v237, 7, v234')
            a('v_lshl_add_u32 v233, v237, 4, v233')
        else:
            a('v_lshl_add_u32 v233, v234, 4, v233')
        a('v_and_b32 v237, 16, v0')
        a('v_cmp_eq_u32 vcc, 16, v237')
        a('s_mov_b64 s[76:77], vcc')
        a('s_mul_i32 s67, s31, 10')
        a('s_add_u32 s67, s67, s28')
        a('s_lshl_b32 s67, s67, 13')
        a(f's_lshl_b32 s68, s35, {7 if o["r160"] else 8}')
        a('s_add_u32 s67, s67, s68')
        a(f's_add_u32 s67, s67, {WS_E4}')
        if aux:
            if o['r160']:
                a('s_lshl_b32 s71, s30, 3')
                a('s_add_u32 s71, s71, s29')
                a('s_lshr_b32 s69, s29, 1')
                a('s_add_u32 s69, s69, 16')
                a('s_bitcmp1_b32 s29, 0')
                a('s_cselect_b32 s69, 99, s69')
                a('s_cmp_eq_u32 s30, 2')
                a('s_cselect_b32 s71, s69, s71')
                a('s_cmp_eq_u32 s30, 3')
                a('s_cselect_b32 s71, 99, s71')
                a('s_cmp_ge_u32 s71, 10')
                a('s_cselect_b32 s69, 1, 0')
                a('s_mul_i32 s70, s69, 10')
                a('s_sub_u32 s70, s71, s70')
                a('s_lshl_b32 s68, s31, 1')
                a('s_add_u32 s68, s68, s69')
                a('s_mul_i32 s68, s68, 10')
                a('s_add_u32 s68, s68, s70')
                a('s_lshl_b32 s68, s68, 12')
                a(f's_add_u32 s68, s68, {WS_E4}')
                a('s_mul_i32 s69, s69, 1280')
                a('s_mul_i32 s81, s31, 160')
                a('s_add_u32 s69, s69, s81')
                a('s_lshl_b32 s70, s70, 4')
                a('s_add_u32 s70, s69, s70')
                a('v_and_b32 v234, 7, v0')
            else:
                a('s_mov_b32 s71, s35')
                a('s_cmp_ge_u32 s35, 5')
                a('s_cselect_b32 s69, 1, 0')
                a('s_mul_i32 s70, s69, 5')
                a('s_sub_u32 s70, s35, s70')
                a('s_lshl_b32 s68, s31, 1')
                a('s_add_u32 s68, s68, s69')
                a('s_mul_i32 s68, s68, 5')
                a('s_add_u32 s68, s68, s70')
                a('s_lshl_b32 s68, s68, 13')
                a(f's_add_u32 s68, s68, {WS_E4}')
                a('s_mul_i32 s69, s69, 1280')
                a('s_mul_i32 s81, s31, 160')
                a('s_add_u32 s69, s69, s81')
                a('s_lshl_b32 s70, s70, 5')
                a('s_add_u32 s70, s69, s70')
            a('s_add_u32 s69, s68, 4096')
            self.srd(40, 4, X_BYTES)
            self.srd(44, 22, X_BYTES)
            a('v_lshlrev_b32 v235, 1, v234')
            a('v_lshlrev_b32 v234, 4, v0')
            a('buffer_load_ushort v236, v235, s[40:43], s70 offen')
            a('s_waitcnt vmcnt(0)')
            a('v_lshlrev_b32 v236, 16, v236')
        a(f's_mov_b32 s80, {o["spin"]}')
        a(f's_mov_b32 s62, {LOG2E}')

    def gemv_pre(self):
        a = self.a
        for t in range(2):
            a(f'ds_read_b128 v[{40+4*t}:{43+4*t}], v230 offset:{64*t}')
        a(f'ds_read_b64_tr_b16 v[72:73], v231 offset:{L_WD - L_WB}')
        a(f'ds_read_b64_tr_b16 v[74:75], v231 offset:{L_WD - L_WB + 640}')
        a(f'ds_read_b64_tr_b16 v[76:77], v232 offset:{L_WD - L_WB + 5120}')
        a(f'ds_read_b64_tr_b16 v[78:79], v232 offset:{L_WD - L_WB + 5120 + 640}')
        for t in range(6):
            a(f'ds_read_b64_tr_b16 v[{48+4*t}:{49+4*t}], v231 offset:{5120*t}')
            a(f'ds_read_b64_tr_b16 v[{50+4*t}:{51+4*t}], v231 offset:{5120*t + 640}')
        for k in (4, 5, 6, 7, 0, 1, 2, 3):
            a(f'v_mov_b32 v{80+k}, 0')
        a('s_waitcnt lgkmcnt(12)')
        for t in range(2):
            a(f'v_mfma_f32_16x16x32_bf16 v[84:87], v[{40+4*t}:{43+4*t}], v[{72+4*t}:{75+4*t}], v[84:87]')
        a('s_waitcnt lgkmcnt(0)')

    def tail(self):
        o = self.opt; a = self.a
        self.c('==== tail (all waves) ====')
        if o['noaux']:
            a('s_barrier'); a('s_barrier'); a('s_branch L_end')
        if not o['nlate']:
            a('s_barrier')
            self.stamp(5)
            a('s_cmp_ge_u32 s28, 2')
            a('s_cbranch_scc1 L_gather')
        else:
            a('s_cmp_ge_u32 s28, 2')
            a('s_cbranch_scc1 L_bar3b')
            self.label('L_pw')
            a(f'ds_read_b32 v8, v240 offset:{L_FLAG+4}')
            a('s_waitcnt lgkmcnt(0)')
            a('v_readfirstlane_b32 s56, v8')
            a('s_cmp_ge_u32 s56, 4')
            a('s_cbranch_scc0 L_pw')
            self.stamp(5)
        a(f'ds_read_b128 v[24:27], v240 offset:{L_ML}')
        a(f'ds_read_b128 v[28:31], v240 offset:{L_ML+16}')
        for cidx in range(8):
            a(f'ds_read_b64 v[{8+2*cidx}:{9+2*cidx}], v224 offset:{L_OL + 768*cidx}')
        a('s_waitcnt lgkmcnt(8)')
        a('v_max3_f32 v32, v24, v25, v26')
        a('v_max_f32 v32, v32, v27')
        for w in range(4):
            a(f'v_sub_f32 v{24+w}, v{24+w}, v32')
        for w in range(4):
            a(f'v_mul_f32 v{24+w}, s62, v{24+w}')
        for w in range(4):
            a(f'v_exp_f32 v{24+w}, v{24+w}')
        a('s_waitcnt lgkmcnt(0)')
        for w in range(4):
            a(f'v_add_f32 v{8+4*w}, v{8+4*w}, v{10+4*w}')
            a(f'v_add_f32 v{9+4*w}, v{9+4*w}, v{11+4*w}')
        a('v_mul_f32 v33, v24, v28')
        a('v_mul_f32 v236, v24, v8')
        a('v_mul_f32 v237, v24, v9')
        for w in range(1, 4):
            a(f'v_fmac_f32 v33, v{24+w}, v{28+w}')
            a(f'v_fmac_f32 v236, v{24+w}, v{8+4*w}')
            a(f'v_fmac_f32 v237, v{24+w}, v{9+4*w}')
        a('v_cndmask_b32 v236, v236, v32, s[74:75]')
        a('v_cndmask_b32 v237, v237, v33, s[74:75]')
        a('s_mov_b64 exec, s[72:73]')
        if o['local']:
            l1, l2 = self.newlab('L_pl'), self.newlab('L_pl')
            a('s_cmp_eq_u32 s87, 1')
            a(f's_cbranch_scc1 {l1}')
            a('buffer_store_dwordx4 v[236:239], v225, s[52:55], s64 offen sc1')
            a(f's_branch {l2}')
            self.label(l1)
            a('buffer_store_dwordx4 v[236:239], v225, s[52:55], s64 offen')
            self.label(l2)
        else:
            a('buffer_store_dwordx4 v[236:239], v225, s[52:55], s64 offen sc1')
            if o['dual3']:
                a('buffer_store_dwordx4 v[236:239], v225, s[52:55], s64 offen')
        a('s_mov_b64 exec, -1')
        self.stamp(6)
        if o['nlate']:
            a('s_barrier')
            self.stamp(10)
        self.gemv_pre()
        a('s_branch L_bar4')
        self.label('L_gather')

        def o_loads(R=8):
            a(f'buffer_load_dwordx4 v[{R}:{R+3}], v226, s[52:55], s65 offen sc1')
            a(f'buffer_load_dwordx4 v[{R+4}:{R+7}], v226, s[52:55], s66 offen sc1')
            a(f'buffer_load_dwordx4 v[{R+8}:{R+11}], v227, s[52:55], s65 offen sc1')
            a(f'buffer_load_dwordx4 v[{R+12}:{R+15}], v227, s[52:55], s66 offen sc1')
        if o['nlate']:
            self.label('L_bar3b')
            a('s_barrier')
        o_loads(128 if o['pp'] & 1 else 8)
        a('s_cmp_ge_u32 s28, 5')
        a('s_cbranch_scc1 L_o_wait')
        self.gemv_pre()
        if o['pp'] & 1:
            self.label('L_o_wait')
            self.pp_poll(o_loads, 128, 96, 8, 4, [0, 1, 4, 5, 8, 9, 12, 13], o['ppst'])
        else:
            a('s_branch L_o_wait')
            self.label('L_o_poll')
            o_loads()
            self.label('L_o_wait')
            a('s_waitcnt vmcnt(0)')
            self.poll_check([8, 12, 16, 20], 'L_o_poll', sleep=o['tsleep'])
        self.stamp(6)
        a('v_max_f32 v24, v16, v20')
        self.swap_reduce('v_max_f32', 24, 25, 32)
        a('v_sub_f32 v16, v16, v24')
        a('v_sub_f32 v20, v20, v24')
        a('v_mul_f32 v16, s62, v16')
        a('v_mul_f32 v20, s62, v20')
        a('v_exp_f32 v16, v16')
        a('v_exp_f32 v20, v20')
        a('s_nop 0')
        a('v_mul_f32 v26, v16, v17')
        a('v_mul_f32 v27, v16, v8')
        a('v_mul_f32 v28, v16, v9')
        a('v_fmac_f32 v26, v20, v21')
        a('v_fmac_f32 v27, v20, v12')
        a('v_fmac_f32 v28, v20, v13')
        a('v_mov_b32 v29, v26')
        a('v_mov_b32 v30, v27')
        a('v_mov_b32 v31, v28')
        a('s_nop 0')
        a('v_permlane32_swap_b32 v26, v29')
        a('v_permlane32_swap_b32 v27, v30')
        a('v_permlane32_swap_b32 v28, v31')
        a('v_add_f32 v26, v26, v29')
        a('v_add_f32 v27, v27, v30')
        a('v_add_f32 v28, v28, v31')
        a('v_rcp_f32 v26, v26')
        a('s_nop 0')
        a('v_mul_f32 v27, v27, v26')
        a('v_mul_f32 v28, v28, v26')
        a('v_cvt_pk_bf16_f32 v27, v27, v28')
        a('ds_write_b32 v228, v27')
        if o['dbg']:
            a('s_lshl_b32 s60, s2, 10'); a(f's_add_u32 s60, s60, {WS_DBG + 0x40000 - L_ON}')
            a('buffer_store_dword v27, v228, s[52:55], s60 offen')
        a('s_waitcnt lgkmcnt(0)')
        self.label('L_bar4')
        a('s_barrier')
        self.stamp(7)
        a('s_cmp_ge_u32 s28, 5')
        a('s_cbranch_scc1 L_reduce')
        for t in range(6):
            a(f'ds_read_b128 v[{16+4*t}:{19+4*t}], v229 offset:{64*t}')
        for t in range(6):
            a(f's_waitcnt lgkmcnt({5-t})')
            a(f'v_mfma_f32_16x16x32_bf16 v[80:83], v[{16+4*t}:{19+4*t}], v[{48+4*t}:{51+4*t}], v[80:83]')
        a('v_cndmask_b32 v237, v84, v85, s[76:77]')
        a('s_mov_b32 exec_hi, 0')
        a('s_nop 5')
        a('v_cndmask_b32 v236, v80, v81, s[76:77]')
        a(f'buffer_store_dwordx4 v[236:239], v233, s[52:55], s67 offen {o["e4st"]}')
        self.stamp(8)
        a('s_branch L_end')
        self.label('L_reduce')
        a('s_cmp_lg_u32 s28, 5')
        a('s_cbranch_scc1 L_end')
        nred = 20 if o['r160'] else 10
        nld = 4 if o['r160'] else 8
        a(f's_cmp_ge_u32 s71, {nred}')
        a('s_cbranch_scc1 L_end')
        def r_loads(R=8):
            for i in range(nld):
                so = 's68' if i < 4 else 's69'
                a(f'buffer_load_dwordx4 v[{R+4*i}:{R+3+4*i}], v234, s[52:55], {so} offen offset:{1024*(i%4)} {o["e4ld"]}')
        if o['pp'] & 2:
            r_loads(128)
            self.pp_poll(r_loads, 128, 96, 8, nld, [k for i in range(nld) for k in (4*i, 4*i+1)], o['ppst'])
        else:
            self.label('L_r_poll')
            r_loads()
            a('s_waitcnt vmcnt(0)')
            self.poll_check([8 + 4 * i for i in range(nld)], 'L_r_poll', sleep=o['rsleep'])
        self.stamp(10)
        for i in range(1, nld):
            a(f'v_add_f32 v8, v8, v{8+4*i}')
            a(f'v_add_f32 v9, v9, v{9+4*i}')
        if o['r160']:
            a('s_nop 0')
            self.dpp('v_add_f32', 8, 8, 8, 'row_ror:8')
            self.dpp('v_add_f32', 9, 9, 9, 'row_ror:8')
        for which in (16, 32):
            a('v_mov_b32 v10, v8')
            a('v_mov_b32 v11, v9')
            a('s_nop 0')
            a(f'v_permlane{which}_swap_b32 v8, v10')
            a(f'v_permlane{which}_swap_b32 v9, v11')
            a('v_add_f32 v8, v8, v10')
            a('v_add_f32 v9, v9, v11')
        a('v_cvt_pk_bf16_f32 v8, v8, v9')
        a('v_lshlrev_b32 v9, 16, v8')
        a('v_add_f32 v9, v236, v9')
        a('v_cvt_pk_bf16_f32 v9, v9, v9')
        a('v_lshlrev_b32 v9, 16, v9')
        a('v_and_b32 v8, 0xffff0000, v8')
        a('v_add_f32 v9, v9, v8')
        a('v_cvt_pk_bf16_f32 v9, v9, v9')
        a(f's_mov_b64 exec, {0xff if o["r160"] else 0xffff}')
        a('buffer_store_short v9, v235, s[44:47], s70 offen')
        self.stamp(9)
        a('s_cmp_lg_u32 s35, 0'); a('s_cbranch_scc1 L_end')
        a('s_cmp_lg_u32 s31, 0'); a('s_cbranch_scc1 L_end')
        a('s_mov_b64 exec, 1')
        a(f'buffer_store_dwordx2 v[238:239], v240, s[52:55], 0 offen offset:{WS_EPOCH} sc1')


if __name__ == '__main__':
    opts = {}
    for arg in sys.argv[2:]:
        k, v = arg.split('=')
        try:
            v = eval(v)
        except Exception:
            pass
        opts[k] = v
    src = Gen(**opts).build()
    open(sys.argv[1], 'w').write(src)
    print('wrote', sys.argv[1], len(src), 'bytes')
```
